```python
import torch

def _softmax(x, axis=-1):
    return torch.softmax(x, dim=axis)
def _gelu(x):
    return torch.nn.functional.gelu(x, approximate="tanh")
def _silu(x):
    return torch.nn.functional.silu(x)
def _sigmoid(x):
    return torch.sigmoid(x)
def _layernorm(x, axis=-1, eps=1e-5):
    m = x.mean(dim=axis, keepdim=True)
    v = x.var(dim=axis, keepdim=True, unbiased=False)
    return (x - m) / torch.sqrt(v + eps)
def _scatter_add(tgt, idx, src, axis=0):
    return tgt.clone().index_add_(axis, idx, src)
def _segment_sum(src, seg, n):
    out = torch.zeros((n,) + src.shape[1:], dtype=src.dtype)
    return out.index_add_(0, seg, src)
def _pad(x, pw):
    flat = tuple(v for pair in reversed(pw) for v in pair)
    return torch.nn.functional.pad(x, flat)

kernel_name = 'parallel_sum__sliding_block_cached__glu_gated_swiglu__decode'

def setup_inputs():

    _w = (lambda a: (lambda t: t.to(torch.bfloat16) if t.is_floating_point() else t)(torch.as_tensor(a)))
    def _A_setup():
        B, Sq, D = 1, 1, 640
        Hq, Hkv, Sk, Dh = 32, 32, 32768, 192
        assert Hq % Hkv == 0, (Hq, Hkv)
        return {
            "x": _w((lambda *s: torch.randn(*s, dtype=torch.bfloat16) * 0.05)(B, Sq, D)),
            "k_cache": _w((lambda *s: torch.randn(*s, dtype=torch.bfloat16) * 1.6)(B, Hkv, Sk, Dh)),
            "v_cache": _w((lambda *s: torch.randn(*s, dtype=torch.bfloat16) * 0.8)(B, Hkv, Sk, Dh)),
            "wq": _w((lambda *s: torch.randn(*s, dtype=torch.bfloat16) * 1.6)(D, Hq * Dh) * (D ** -0.5)),
            "wo": _w((lambda *s: torch.randn(*s, dtype=torch.bfloat16) * 0.8)(Hq * Dh, D) * ((Hq * Dh) ** -0.5)),
        }
    _A_in = _A_setup()

    def _B_setup():
        B, S, D, F = 1, 1, 640, 1536
        return {
            "x": _w((lambda *s: torch.randn(*s, dtype=torch.bfloat16) * 0.05)(B, S, D)),
            "w1": _w((lambda *s: torch.randn(*s, dtype=torch.bfloat16) * 0.4)(D, F) * (2.0 / D) ** 0.5),
            "w3": _w((lambda *s: torch.randn(*s, dtype=torch.bfloat16) * 0.4)(D, F) * (2.0 / D) ** 0.5),
            "w2": _w((lambda *s: torch.randn(*s, dtype=torch.bfloat16) * 0.4)(F, D) * (2.0 / F) ** 0.5),
        }
    _B_in = _B_setup()

    return {
        "A_x": _A_in["x"],
        "A_k_cache": _A_in["k_cache"],
        "A_v_cache": _A_in["v_cache"],
        "A_wq": _A_in["wq"],
        "A_wo": _A_in["wo"],
        "B_x": _B_in["x"],
        "B_w1": _B_in["w1"],
        "B_w3": _B_in["w3"],
        "B_w2": _B_in["w2"],
    }

def reference(A_x, A_k_cache, A_v_cache, A_wq, A_wo, B_x, B_w1, B_w3, B_w2):
    def _A_ref(x, k_cache, v_cache, wq, wo):
        B, Sq, D = x.shape
        Hq, Dh = 32, 192
        Hkv, Sk = k_cache.shape[1], k_cache.shape[2]
        W = min(4096, max(256, Sk // 4))
        rep = Hq // Hkv
        q = (lambda x, *d: x.permute(*d))((x @ wq).reshape(B, Sq, Hq, Dh), 0, 2, 1, 3)
        k = (lambda x, n, axis: torch.repeat_interleave(x, n, dim=axis))(k_cache[:, :, Sk - W:, :], rep, axis=1)
        v = (lambda x, n, axis: torch.repeat_interleave(x, n, dim=axis))(v_cache[:, :, Sk - W:, :], rep, axis=1)
        scores = torch.einsum("bhqd,bhkd->bhqk", q, k) * (Dh ** -0.5)
        p = _softmax(scores, axis=-1)
        o = torch.einsum("bhqk,bhkd->bhqd", p, v)
        return (lambda x, *d: x.permute(*d))(o, 0, 2, 1, 3).reshape(B, Sq, Hq * Dh) @ wo

    def _B_ref(x, w1, w3, w2):
        gate = torch.einsum("bsd,df->bsf", x, w1)
        up = torch.einsum("bsd,df->bsf", x, w3)
        h = _silu(gate) * up
        out = torch.einsum("bsf,fd->bsd", h, w2)
        return out

    x = A_x
    xn = _layernorm(x, axis=-1)
    return x + _A_ref(xn, A_k_cache, A_v_cache, A_wq, A_wo) + _B_ref(xn, B_w1, B_w3, B_w2)
```

```python
import sys
STAMPS = '--stamps' in sys.argv
NT_KV = '--no-nt' not in sys.argv
NAME = 'parallel_sum__sliding_block_cached__glu_gated_swiglu__decode_kernel'

L = []
def e(s): L.append('    ' + s)
def lab(s): L.append(s + ':')
def cmt(s): L.append('    ; ' + s)

HEAD_STRIDE = 32768 * 384
WIN = 28672 * 384
WS_SLOT = 1280
WS_Y = 256 * WS_SLOT
WS_Y_BYTES = 40 * 32 * 128
WS_USED = WS_Y + WS_Y_BYTES
WS_STAMP = 1 << 20
OOB = 0x40000000

sX, sK, sV, sWQ, sWO, sW1, sW3, sW2, sOUT, sDBG, sWS = [40 + 4 * i for i in range(11)]
def srd(b): return f's[{b}:{b+3}]'
sHEAD, sSPLIT, sWAVE = 3, 4, 5
sT0, sT1, sT2, sT3 = 6, 7, 8, 9
sKB = 10
sWQB = 11
sSLOT = 12
sGRP = 13
sWOB = 14
sW2B = 15
sCNT = 16
sMEAN, sRSTD = 17, 18
sC = 20
sST = 84

L_RED = 0
L_QBF = 6144
L_XN = 6656
L_WMAX = 7936
L_WSUM = 7968
L_FRED = 8192
L_U = 11264
LDS_BYTES = 12288

vTID = 0
vOFF = 1
vT0, vT1, vT2, vT3 = 2, 3, 4, 5
vLANE = 6
vXN = 7
vT4, vT5, vT6, vT7 = 12, 13, 14, 15
vACC = 16
vWQ = 40
vK = 160

class VM:
    def __init__(self): self.q = []
    def issue(self, tag): self.q.append(tag)
    def wait(self, tag):
        idx = max(i for i, t in enumerate(self.q) if t == tag)
        n = len(self.q) - 1 - idx
        assert n <= 63, n
        e(f's_waitcnt vmcnt({n})')
        self.q = self.q[idx + 1:]
    def check(self): assert len(self.q) <= 63, len(self.q)
vm = VM()

nstamp = [0]
def stamp():
    if not STAMPS: return
    i = nstamp[0]; nstamp[0] += 1
    assert i < 8
    e(f's_memrealtime s[{sST+2*i}:{sST+2*i+1}]')

def nop(n): e(f's_nop {n}')

def v4(b): return f'v[{b}:{b+3}]'
def v2(b): return f'v[{b}:{b+1}]'

DPP = 'row_mask:0xf bank_mask:0xf'

def bf16_round(dst, src):
    e(f'v_cvt_pk_bf16_f32 v{dst}, v{src}, v{src}')
    e(f'v_and_b32 v{dst}, 0xffff0000, v{dst}')

def allreduce_rows(op, v, tmp):
    nop(1)
    e(f'v_mov_b32 v{tmp}, v{v}')
    nop(1)
    e(f'v_permlane16_swap_b32 v{tmp}, v{v}')
    nop(1)
    e(f'{op} v{v}, v{tmp}, v{v}')
    nop(1)
    e(f'v_mov_b32 v{tmp}, v{v}')
    nop(1)
    e(f'v_permlane32_swap_b32 v{tmp}, v{v}')
    nop(1)
    e(f'{op} v{v}, v{tmp}, v{v}')

def allreduce64(op, v, tmp):
    nop(1)
    e(f'{op} v{v}, v{v}, v{v} quad_perm:[1,0,3,2] {DPP}')
    nop(1)
    e(f'{op} v{v}, v{v}, v{v} quad_perm:[2,3,0,1] {DPP}')
    nop(1)
    e(f'{op} v{v}, v{v}, v{v} row_half_mirror {DPP}')
    nop(1)
    e(f'{op} v{v}, v{v}, v{v} row_mirror {DPP}')
    allreduce_rows(op, v, tmp)

def reduce_r8(acc, nj):
    nop(2)
    for j in range(nj):
        for ee in range(4):
            e(f'v_permlane32_swap_b32 v{acc+8*j+ee}, v{acc+8*j+ee+4}')
    nop(1)
    for j in range(nj):
        for ee in range(4):
            e(f'v_add_f32 v{acc+8*j+ee}, v{acc+8*j+ee}, v{acc+8*j+ee+4}')
    nop(1)
    for j in range(nj):
        for ee in range(2):
            e(f'v_permlane16_swap_b32 v{acc+8*j+ee}, v{acc+8*j+ee+2}')
    nop(1)
    for j in range(nj):
        for ee in range(2):
            e(f'v_add_f32 v{acc+8*j+ee}, v{acc+8*j+ee}, v{acc+8*j+ee+2}')
    nop(1)
    for j in range(nj):
        for ee in range(2):
            e(f'v_add_f32 v{acc+8*j+ee}, v{acc+8*j+ee}, v{acc+8*j+ee} row_ror:8 {DPP}')

def axpy(acc, data, lo, hi):
    for d in range(4):
        e(f'v_dot2c_f32_bf16 v{acc+2*d}, v{data+d}, v{lo}')
        e(f'v_dot2c_f32_bf16 v{acc+2*d+1}, v{data+d}, v{hi}')

hdr = open('parallel_sum__sliding_block_cached__glu_gated_swiglu__decode.s.ref').read().split('\n')
top = []
for line in hdr:
    if line.startswith('; @launch'):
        top.append(f'; @launch grid=(256,1,1) block=(512,1,1) lds={LDS_BYTES}')
    elif line.startswith(';'):
        top.append(line)
    else:
        break
L.extend(top)
L.append('.amdgcn_target "amdgcn-amd-amdhsa--gfx950"')
L.append('.text')
L.append(f'.globl {NAME}')
L.append('.p2align 8')
L.append(f'.type {NAME},@function')
lab(NAME)
stamp()
e('s_cmp_ge_u32 s2, 256')
e('s_cbranch_scc1 L_end')
for (sr, off) in [(sX, 0), (sWQ, 24), (sK, 8), (sWS, 88), (sV, 16), (sW1, 48), (sW3, 56), (sDBG, 80), (sWO, 32), (sW2, 64), (sOUT, 72)]:
    e(f's_load_dwordx2 s[{sr}:{sr+1}], s[0:1], {off}')
for (sr, nb) in [(sX, 1280), (sWQ, 7864320), (sK, 402653184), (sWS, (WS_STAMP + 65536*4) if STAMPS else WS_USED), (sV, 402653184), (sW1, 1966080),
                 (sW3, 1966080), (sDBG, 256), (sWO, 7864320), (sW2, 1966080), (sOUT, 1280)]:
    e(f's_mov_b32 s{sr+2}, {nb}')
    e(f's_mov_b32 s{sr+3}, 0x00020000')
e(f'v_lshrrev_b32 v{vT0}, 6, v0')
e(f'v_and_b32 v{vLANE}, 63, v0')
e(f'v_readfirstlane_b32 s{sWAVE}, v{vT0}')
e(f's_and_b32 s{sHEAD}, s2, 7')
e(f's_lshr_b32 s{sSPLIT}, s2, 3')
e(f's_and_b32 s{sT0}, s{sSPLIT}, 3')
e(f's_lshl_b32 s{sHEAD}, s{sHEAD}, 2')
e(f's_add_u32 s{sHEAD}, s{sHEAD}, s{sT0}')
e(f's_lshr_b32 s{sSPLIT}, s{sSPLIT}, 2')
e(f'v_lshrrev_b32 v{vT0}, 3, v{vLANE}')
e(f'v_and_b32 v{vT1}, 7, v{vLANE}')
e(f'v_lshlrev_b32 v{vT1}, 4, v{vT1}')
e(f'v_mul_u32_u24 v{vOFF}, 384, v{vT0}')
e(f'v_add_u32 v{vOFF}, v{vOFF}, v{vT1}')
e(f'v_mul_u32_u24 v{vT2}, 122880, v{vT0}')
e(f'v_add_u32 v{vT2}, v{vT2}, v{vT1}')
e(f'v_mul_u32_u24 v{vT3}, 20, v{vLANE}')
e(f'v_mul_u32_u24 v{vT4}, 20, v{vT0}')
e(f's_lshl_b32 s{sT0}, s{sHEAD}, 3')
e(f's_mul_i32 s{sGRP}, s{sT0}, {WS_SLOT}')
e(f's_mul_i32 s{sT0}, s{sSPLIT}, {WS_SLOT}')
e(f's_add_u32 s{sSLOT}, s{sGRP}, s{sT0}')
e(f'v_lshlrev_b32 v{vT5}, 4, v{vLANE}')
e(f'v_add_u32 v{vT5}, s{sSLOT}, v{vT5}')
e(f'v_subrev_u32 v{vT6}, 16, v{vLANE}')
e(f'v_lshrrev_b32 v{vT7}, 3, v{vT6}')
e(f'v_lshlrev_b32 v{vT7}, 12, v{vT7}')
e(f'v_add_u32 v{vT7}, v{vT7}, v{vT1}')
e(f's_mul_i32 s{sT0}, s{sSPLIT}, {5*4096}')
e(f's_lshl_b32 s{sT1}, s{sHEAD}, 7')
e(f's_add_u32 s{sT0}, s{sT0}, s{sT1}')
e(f's_add_u32 s{sT0}, s{sT0}, {WS_Y}')
e(f'v_add_u32 v{vT7}, s{sT0}, v{vT7}')
e(f'v_add_u32 v{vT6}, 1024, v{vT5}')
e(f'v_cmp_gt_u32 vcc, 16, v{vLANE}')
nop(1)
e(f'v_cndmask_b32 v{vT7}, v{vT7}, v{vT6}, vcc')
e(f'v_mov_b32 v{vT6}, {OOB}')
e(f'v_cmp_gt_u32 vcc, 56, v{vLANE}')
nop(1)
e(f'v_cndmask_b32 v{vT7}, v{vT6}, v{vT7}, vcc')
e(f's_cmp_eq_u32 s{sWAVE}, 7')
e(f's_cselect_b32 s{sT2}, 0, {OOB}')
for i in range(4): e(f'v_mov_b32 v{vACC+20+i}, -1')
e(f's_mul_i32 s{sT3}, s{sWAVE}, 160')
e(f's_mul_i32 s{sWQB}, s{sWAVE}, {80*12288}')
e(f's_mul_i32 s{sT0}, s{sHEAD}, 384')
e(f's_add_u32 s{sWQB}, s{sWQB}, s{sT0}')
e(f's_mul_i32 s{sKB}, s{sHEAD}, {HEAD_STRIDE}')
e(f's_mul_i32 s{sT0}, s{sSPLIT}, {512*384}')
e(f's_add_u32 s{sKB}, s{sKB}, s{sT0}')
e(f's_mul_i32 s{sT0}, s{sWAVE}, 3072')
e(f's_add_u32 s{sKB}, s{sKB}, s{sT0}')
e(f's_add_u32 s{sKB}, s{sKB}, {WIN}')
e('s_waitcnt lgkmcnt(0)')
stamp()
e(f'buffer_load_dwordx4 {v4(vACC)}, v{vT3}, {srd(sX)}, 0 offen'); vm.issue('x')
e(f'buffer_load_dword v{vACC+4}, v{vT3}, {srd(sX)}, 0 offen offset:16'); vm.issue('x')
e(f'buffer_load_dwordx4 {v4(vACC+8)}, v{vT4}, {srd(sX)}, s{sT3} offen'); vm.issue('x')
e(f'buffer_load_dword v{vACC+12}, v{vT4}, {srd(sX)}, s{sT3} offen offset:16'); vm.issue('x')
e(f'buffer_store_dwordx4 {v4(vACC+20)}, v{vT5}, {srd(sWS)}, s{sT2} offen sc1'); vm.issue('clr')
e(f'buffer_store_dwordx4 {v4(vACC+20)}, v{vT7}, {srd(sWS)}, s{sT2} offen sc1'); vm.issue('clr')
for G in range(10):
    for j in range(3):
        e(f'buffer_load_dwordx4 {v4(vWQ+12*G+4*j)}, v{vT2}, {srd(sWQ)}, s{sWQB} offen offset:{128*j}'); vm.issue(f'wq{G}')
    if G < 9: e(f's_add_u32 s{sWQB}, s{sWQB}, 12288')
ntf = ' nt' if NT_KV else ''
for G in range(8):
    for j in range(3):
        e(f'buffer_load_dwordx4 {v4(vK+12*G+4*j)}, v{vOFF}, {srd(sK)}, s{sKB} offen offset:{128*j}{ntf}'); vm.issue(f'k{G}')
    e(f's_add_u32 s{sKB}, s{sKB}, 24576')
e(f's_sub_u32 s{sKB}, s{sKB}, {8*24576}')
vm.check()
stamp()

vm.wait('x')
e(f'v_lshlrev_b32 v{vT0}, 16, v{vACC}')
e(f'v_and_b32 v{vT1}, 0xffff0000, v{vACC}')
e(f'v_add_f32 v{vT3}, v{vT0}, v{vT1}')
for d in range(1, 5):
    e(f'v_lshlrev_b32 v{vT0}, 16, v{vACC+d}')
    e(f'v_and_b32 v{vT1}, 0xffff0000, v{vACC+d}')
    e(f'v_add_f32 v{vT3}, v{vT3}, v{vT0}')
    e(f'v_add_f32 v{vT3}, v{vT3}, v{vT1}')
allreduce64('v_add_f32', vT3, vT4)
e(f'v_mul_f32 v{vT3}, 0x3acccccd, v{vT3}')
e(f'v_mov_b32 v{vT5}, 0')
for d in range(5):
    e(f'v_lshlrev_b32 v{vT0}, 16, v{vACC+d}')
    e(f'v_and_b32 v{vT1}, 0xffff0000, v{vACC+d}')
    e(f'v_sub_f32 v{vT0}, v{vT0}, v{vT3}')
    e(f'v_sub_f32 v{vT1}, v{vT1}, v{vT3}')
    e(f'v_fmac_f32 v{vT5}, v{vT0}, v{vT0}')
    e(f'v_fmac_f32 v{vT5}, v{vT1}, v{vT1}')
allreduce64('v_add_f32', vT5, vT4)
e(f'v_mul_f32 v{vT5}, 0x3acccccd, v{vT5}')
bf16_round(vT3, vT3)
bf16_round(vT5, vT5)
e(f'v_add_f32 v{vT5}, 0x3727c5ac, v{vT5}')
bf16_round(vT5, vT5)
e(f'v_sqrt_f32 v{vT5}, v{vT5}')
nop(0)
bf16_round(vT5, vT5)
e(f'v_rcp_f32 v{vT6}, v{vT5}')
nop(0)
for d in range(5):
    e(f'v_lshlrev_b32 v{vT0}, 16, v{vACC+8+d}')
    e(f'v_and_b32 v{vT1}, 0xffff0000, v{vACC+8+d}')
    e(f'v_sub_f32 v{vT0}, v{vT0}, v{vT3}')
    e(f'v_sub_f32 v{vT1}, v{vT1}, v{vT3}')
    e(f'v_cvt_pk_bf16_f32 v{vT4}, v{vT0}, v{vT1}')
    e(f'v_lshlrev_b32 v{vT0}, 16, v{vT4}')
    e(f'v_and_b32 v{vT1}, 0xffff0000, v{vT4}')
    e(f'v_mul_f32 v{vT4}, v{vT0}, v{vT6}')
    e(f'v_mul_f32 v{vT7}, v{vT1}, v{vT6}')
    e(f'v_fma_f32 v{vT0}, -v{vT4}, v{vT5}, v{vT0}')
    e(f'v_fma_f32 v{vT1}, -v{vT7}, v{vT5}, v{vT1}')
    e(f'v_fmac_f32 v{vT4}, v{vT0}, v{vT6}')
    e(f'v_fmac_f32 v{vT7}, v{vT1}, v{vT6}')
    e(f'v_cvt_pk_bf16_f32 v{vXN+d}, v{vT4}, v{vT7}')
e(f'v_lshrrev_b32 v{vT0}, 3, v{vLANE}')
e(f'v_mul_u32_u24 v{vT0}, 20, v{vT0}')
e(f'v_add_u32 v{vT0}, s{sT3}, v{vT0}')
for d in range(5):
    e(f'ds_write_b32 v{vT0}, v{vXN+d} offset:{L_XN+4*d}')
vm.wait('clr')
e(f'v_mov_b32 v{vT0}, s2')
e(f'v_mov_b32 v{vT1}, {OOB}')
e(f'v_cmp_eq_u32 vcc, 0, v{vLANE}')
nop(1)
e(f'v_cndmask_b32 v{vT0}, v{vT1}, v{vT0}, vcc')
e(f'v_mov_b32 v{vT1}, 1')
e(f'buffer_store_byte v{vT1}, v{vT0}, {srd(sDBG)}, s{sT2} offen sc1'); vm.issue('flag')
for i in range(24): e(f'v_mov_b32 v{vACC+i}, 0')
e(f'v_lshrrev_b32 v{vT0}, 3, v{vLANE}')
e(f'v_and_b32 v{vT1}, 7, v{vLANE}')
e(f'v_mul_u32_u24 v{vT5}, 3072, v{vT0}')
e(f'v_lshlrev_b32 v{vT4}, 4, v{vT1}')
e(f'v_add_u32 v{vT5}, v{vT5}, v{vT4}')
e(f'v_mov_b32 v{vT4}, {OOB}')
e(f'v_cmp_gt_u32 vcc, 6, v{vT1}')
nop(1)
e(f'v_cndmask_b32 v{vT5}, v{vT4}, v{vT5}, vcc')
e(f's_mul_i32 s{sT0}, s{sSPLIT}, {80*3072}')
e(f's_mul_i32 s{sT1}, s{sHEAD}, 96')
e(f's_add_u32 s{sT0}, s{sT0}, s{sT1}')
e(f's_mul_i32 s{sT1}, s{sWAVE}, {8*3072}')
e(f's_add_u32 s{sT0}, s{sT0}, s{sT1}')
e(f's_add_u32 s{sT1}, s{sT0}, {64*3072}')
e(f's_cmp_lt_u32 s{sWAVE}, 2')
e(f's_cselect_b32 s{sT1}, s{sT1}, {OOB}')

vFF = vWQ
vV = vWQ + 24
for G in range(10):
    vm.wait(f'wq{G}')
    if G % 2 == 0:
        e(f'v_and_b32 v{vT0}, 0xffff, v{vXN+G//2}')
        e(f'v_lshlrev_b32 v{vT1}, 16, v{vXN+G//2}')
    else:
        e(f'v_lshrrev_b32 v{vT0}, 16, v{vXN+G//2}')
        e(f'v_and_b32 v{vT1}, 0xffff0000, v{vXN+G//2}')
    for j in range(3):
        axpy(vACC + 8 * j, vWQ + 12 * G + 4 * j, vT0, vT1)
    if G == 1:
        e(f'buffer_load_dwordx4 {v4(vFF)}, v{vT5}, {srd(sW1)}, s{sT0} offen'); vm.issue('ff')
        e(f'buffer_load_dwordx4 {v4(vFF+4)}, v{vT5}, {srd(sW3)}, s{sT0} offen'); vm.issue('ff')
        e(f'buffer_load_dwordx4 {v4(vFF+8)}, v{vT5}, {srd(sW1)}, s{sT1} offen'); vm.issue('ff')
        e(f'buffer_load_dwordx4 {v4(vFF+12)}, v{vT5}, {srd(sW3)}, s{sT1} offen'); vm.issue('ff')
    if G >= 2:
        g = G - 2
        for j in range(3):
            e(f'buffer_load_dwordx4 {v4(vV+12*g+4*j)}, v{vOFF}, {srd(sV)}, s{sKB} offen offset:{128*j}{ntf}'); vm.issue(f'v{g}')
        e(f's_add_u32 s{sKB}, s{sKB}, 24576')
    vm.check()
stamp()
reduce_r8(vACC, 3)
def red_addr(dst):
    e(f'v_and_b32 v{dst}, 7, v{vLANE}')
    e(f'v_lshlrev_b32 v{dst}, 5, v{dst}')
    e(f'v_lshrrev_b32 v{vT6}, 5, v{vLANE}')
    e(f'v_lshlrev_b32 v{vT6}, 4, v{vT6}')
    e(f'v_add_u32 v{dst}, v{dst}, v{vT6}')
    e(f'v_bfe_u32 v{vT6}, v{vLANE}, 4, 1')
    e(f'v_lshlrev_b32 v{vT6}, 3, v{vT6}')
    e(f'v_add_u32 v{dst}, v{dst}, v{vT6}')
red_addr(vT7)
e(f's_mul_i32 s{sT0}, s{sWAVE}, 768')
e(f'v_add_u32 v{vT0}, s{sT0}, v{vT7}')
for j in range(3):
    e(f'ds_write_b64 v{vT0}, {v2(vACC+8*j)} offset:{L_RED+256*j}')
e('s_waitcnt lgkmcnt(0)')
e('s_barrier')
e(f'v_lshlrev_b32 v{vT0}, 2, v{vTID}')
e(f's_cmp_ge_u32 s{sWAVE}, 3')
e('s_cbranch_scc1 L_q_skip')
for w in range(8):
    e(f'ds_read_b32 v{vACC+w}, v{vT0} offset:{L_RED+768*w}')
e('s_waitcnt lgkmcnt(0)')
e(f'v_add_f32 v{vACC}, v{vACC}, v{vACC+1}')
e(f'v_add_f32 v{vACC+2}, v{vACC+2}, v{vACC+3}')
e(f'v_add_f32 v{vACC+4}, v{vACC+4}, v{vACC+5}')
e(f'v_add_f32 v{vACC+6}, v{vACC+6}, v{vACC+7}')
e(f'v_add_f32 v{vACC}, v{vACC}, v{vACC+2}')
e(f'v_add_f32 v{vACC+4}, v{vACC+4}, v{vACC+6}')
e(f'v_add_f32 v{vACC}, v{vACC}, v{vACC+4}')
e(f'v_cvt_pk_bf16_f32 v{vACC}, v{vACC}, v{vACC}')
e(f'v_lshlrev_b32 v{vT0}, 1, v{vTID}')
e(f'ds_write_b16 v{vT0}, v{vACC} offset:{L_QBF}')
e('s_waitcnt lgkmcnt(0)')
lab('L_q_skip')
e('s_barrier')
vQ = vACC
vS = vACC + 12
e(f'v_and_b32 v{vT0}, 7, v{vLANE}')
e(f'v_lshlrev_b32 v{vT0}, 4, v{vT0}')
for j in range(3):
    e(f'ds_read_b128 {v4(vQ+4*j)}, v{vT0} offset:{L_QBF+128*j}')
vWOFF, vW2OFF, vW2OFFB = vT4, vT5, vT6
e(f'v_lshrrev_b32 v{vT0}, 1, v{vLANE}')
e(f'v_and_b32 v{vT1}, 1, v{vLANE}')
e(f'v_lshlrev_b32 v{vT1}, 4, v{vT1}')
e(f'v_mul_u32_u24 v{vWOFF}, {6*1280}, v{vT0}')
e(f'v_add_u32 v{vWOFF}, v{vWOFF}, v{vT1}')
e(f'v_mul_u32_u24 v{vW2OFF}, 1280, v{vT0}')
e(f'v_add_u32 v{vW2OFF}, v{vW2OFF}, v{vT1}')
e(f'v_mov_b32 v{vT2}, {OOB}')
e(f'v_cmp_gt_u32 vcc, 32, v{vLANE}')
nop(1)
e(f'v_cndmask_b32 v{vW2OFFB}, v{vT2}, v{vW2OFF}, vcc')
e(f's_mul_i32 s{sT0}, s{sSPLIT}, 160')
e(f's_lshl_b32 s{sT1}, s{sWAVE}, 5')
e(f's_add_u32 s{sT0}, s{sT0}, s{sT1}')
e(f's_mul_i32 s{sWOB}, s{sHEAD}, {192*1280}')
e(f's_add_u32 s{sWOB}, s{sWOB}, s{sT0}')
e(f's_mul_i32 s{sW2B}, s{sHEAD}, {48*1280}')
e(f's_add_u32 s{sW2B}, s{sW2B}, s{sT0}')
e(f's_cmp_lt_u32 s{sWAVE}, 5')
e(f's_cselect_b32 s{sWOB}, s{sWOB}, {OOB}')
e(f's_cselect_b32 s{sW2B}, s{sW2B}, {OOB}')
e(f's_add_u32 s{sT1}, s{sW2B}, {32*1280}')
e(f's_add_u32 s{sT0}, s{sWOB}, {3*1280}')
e('s_waitcnt lgkmcnt(0)')

vWO = vK
for G in range(8):
    vm.wait(f'k{G}')
    e(f'v_mov_b32 v{vS+G}, 0')
    e(f'v_mov_b32 v{vT0}, 0')
    e(f'v_mov_b32 v{vT1}, 0')
    accs = [vS + G, vT0, vT1]
    for d in range(4):
        for j in range(3):
            e(f'v_dot2c_f32_bf16 v{accs[j]}, v{vK+12*G+4*j+d}, v{vQ+4*j+d}')
    nop(2)
    e(f'v_add_f32 v{vT0}, v{vT0}, v{vT1}')
    e(f'v_add_f32 v{vS+G}, v{vS+G}, v{vT0}')
    nop(1)
    e(f'v_add_f32 v{vS+G}, v{vS+G}, v{vS+G} quad_perm:[1,0,3,2] {DPP}')
    nop(1)
    e(f'v_add_f32 v{vS+G}, v{vS+G}, v{vS+G} quad_perm:[2,3,0,1] {DPP}')
    nop(1)
    e(f'v_add_f32 v{vS+G}, v{vS+G}, v{vS+G} row_half_mirror {DPP}')
    bf16_round(vS + G, vS + G)
    e(f'v_mul_f32 v{vS+G}, 0x3d93cd3a, v{vS+G}')
    bf16_round(vS + G, vS + G)
    if G == 2:
        for i in range(6):
            so = sWOB if i < 3 else sT0
            e(f'buffer_load_dwordx4 {v4(vWO+4*i)}, v{vWOFF}, {srd(sWO)}, s{so} offen offset:{1280*(i%3)}'); vm.issue('wo')
        e(f'buffer_load_dwordx4 {v4(vWO+24)}, v{vW2OFF}, {srd(sW2)}, s{sW2B} offen'); vm.issue('wo')
        e(f'buffer_load_dwordx4 {v4(vWO+28)}, v{vW2OFFB}, {srd(sW2)}, s{sT1} offen'); vm.issue('wo')
    vm.check()
stamp()
e(f'v_max3_f32 v{vT0}, v{vS}, v{vS+1}, v{vS+2}')
e(f'v_max3_f32 v{vT1}, v{vS+3}, v{vS+4}, v{vS+5}')
e(f'v_max3_f32 v{vT0}, v{vT0}, v{vS+6}, v{vS+7}')
e(f'v_max_f32 v{vT0}, v{vT0}, v{vT1}')
nop(1)
e(f'v_max_f32 v{vT0}, v{vT0}, v{vT0} row_ror:8 {DPP}')
allreduce_rows('v_max_f32', vT0, vT1)
e(f's_lshl_b32 s{sT0}, s{sWAVE}, 2')
e(f'v_mov_b32 v{vT1}, s{sT0}')
e(f'ds_write_b32 v{vT1}, v{vT0} offset:{L_WMAX}')
vFA = vK + 36
for i in range(16): e(f'v_mov_b32 v{vFA+i}, 0')
e(f'v_lshrrev_b32 v{vT0}, 3, v{vLANE}')
e(f'v_lshlrev_b32 v{vT0}, 1, v{vT0}')
e(f's_mul_i32 s{sT0}, s{sSPLIT}, 160')
e(f's_lshl_b32 s{sT1}, s{sWAVE}, 4')
e(f's_add_u32 s{sT0}, s{sT0}, s{sT1}')
e(f'v_add_u32 v{vT0}, s{sT0}, v{vT0}')
e(f'ds_read_u16 v{vT2}, v{vT0} offset:{L_XN}')
e(f'ds_read_u16 v{vT3}, v{vT0} offset:{L_XN+128}')
vm.wait('ff')
e('s_waitcnt lgkmcnt(0)')
e(f's_cmp_lt_u32 s{sWAVE}, 2')
e(f's_cselect_b32 s{sT1}, -1, 0')
e(f'v_and_b32 v{vT3}, s{sT1}, v{vT3}')
e(f'v_lshlrev_b32 v{vT0}, 16, v{vT2}')
e(f'v_lshlrev_b32 v{vT1}, 16, v{vT3}')
axpy(vFA, vFF, vT2, vT0)
axpy(vFA + 8, vFF + 4, vT2, vT0)
axpy(vFA, vFF + 8, vT3, vT1)
axpy(vFA + 8, vFF + 12, vT3, vT1)
reduce_r8(vFA, 2)
e(f's_mul_i32 s{sT0}, s{sWAVE}, 384')
e(f'v_add_u32 v{vT0}, s{sT0}, v{vT7}')
e(f'v_and_b32 v{vT1}, 7, v{vLANE}')
e(f'v_cmp_gt_u32 vcc, 6, v{vT1}')
e('s_and_saveexec_b64 s[28:29], vcc')
e(f'ds_write_b64 v{vT0}, {v2(vFA)} offset:{L_FRED}')
e(f'ds_write_b64 v{vT0}, {v2(vFA+8)} offset:{L_FRED+192}')
e('s_mov_b64 exec, s[28:29]')
e('s_waitcnt lgkmcnt(0)')
e('s_barrier')
e(f'v_mov_b32 v{vT0}, 0')
e(f'ds_read_b128 {v4(vFA)}, v{vT0} offset:{L_WMAX}')
e(f'ds_read_b128 {v4(vFA+4)}, v{vT0} offset:{L_WMAX+16}')
e('s_waitcnt lgkmcnt(0)')
vM = vT7 + 0
vM = vXN
e(f'v_max3_f32 v{vM}, v{vFA}, v{vFA+1}, v{vFA+2}')
e(f'v_max3_f32 v{vT1}, v{vFA+3}, v{vFA+4}, v{vFA+5}')
e(f'v_max3_f32 v{vM}, v{vM}, v{vFA+6}, v{vFA+7}')
e(f'v_max_f32 v{vM}, v{vM}, v{vT1}')
vP = vK + 52
e(f'v_mov_b32 v{vT3}, 0')
for G in range(8):
    e(f'v_sub_f32 v{vT0}, v{vS+G}, v{vM}')
    e(f'v_mul_f32 v{vT0}, 0x3fb8aa3b, v{vT0}')
    e(f'v_exp_f32 v{vT0}, v{vT0}')
    nop(0)
    e(f'v_add_f32 v{vT3}, v{vT3}, v{vT0}')
    e(f'v_cvt_pk_bf16_f32 v{vP+2*G}, v{vT0}, 0')
    e(f'v_cvt_pk_bf16_f32 v{vP+2*G+1}, 0, v{vT0}')
nop(1)
e(f'v_add_f32 v{vT3}, v{vT3}, v{vT3} row_ror:8 {DPP}')
allreduce_rows('v_add_f32', vT3, vT1)
e(f's_lshl_b32 s{sT0}, s{sWAVE}, 2')
e(f'v_mov_b32 v{vT1}, s{sT0}')
e(f'ds_write_b32 v{vT1}, v{vT3} offset:{L_WSUM}')
e(f's_cmp_lg_u32 s{sWAVE}, 1')
e('s_cbranch_scc1 L_ff_skip')
e(f'v_lshlrev_b32 v{vT0}, 4, v{vLANE}')
e(f'v_cmp_gt_u32 vcc, 24, v{vLANE}')
e('s_and_saveexec_b64 s[28:29], vcc')
vTM = vK + 68
for half in range(2):
    for w in range(4):
        e(f'ds_read_b128 {v4(vTM+4+4*w)}, v{vT0} offset:{L_FRED+384*(4*half+w)}')
    e('s_waitcnt lgkmcnt(0)')
    for c in range(4):
        if half == 0:
            e(f'v_add_f32 v{vTM+c}, v{vTM+4+c}, v{vTM+8+c}')
        else:
            e(f'v_add_f32 v{vTM+c}, v{vTM+c}, v{vTM+4+c}')
            e(f'v_add_f32 v{vTM+c}, v{vTM+c}, v{vTM+8+c}')
        e(f'v_add_f32 v{vTM+c}, v{vTM+c}, v{vTM+12+c}')
        e(f'v_add_f32 v{vTM+c}, v{vTM+c}, v{vTM+16+c}')
for c in range(4): e(f'v_min_u32 v{vTM+c}, -2, v{vTM+c}')
e(f'buffer_store_dwordx4 {v4(vTM)}, v{vT0}, {srd(sWS)}, s{sSLOT} offen offset:768 sc1')
e('s_mov_b64 exec, s[28:29]')
e('s_branch L_ff_done')
lab('L_ff_skip')
e(f'v_mov_b32 v{vT0}, {OOB}')
e(f'buffer_store_dword v{vT0}, v{vT0}, {srd(sWS)}, 0 offen')
lab('L_ff_done')
vm.issue('ffpub')
for i in range(24): e(f'v_mov_b32 v{vACC+i}, 0')
for G in range(8):
    vm.wait(f'v{G}')
    for j in range(3):
        axpy(vACC + 8 * j, vV + 12 * G + 4 * j, vP + 2 * G, vP + 2 * G + 1)
stamp()
reduce_r8(vACC, 3)
e(f's_mul_i32 s{sT0}, s{sWAVE}, 768')
e(f'v_add_u32 v{vT0}, s{sT0}, v{vT7}')
for j in range(3):
    e(f'ds_write_b64 v{vT0}, {v2(vACC+8*j)} offset:{L_RED+256*j}')
e('s_waitcnt lgkmcnt(0)')
e('s_barrier')
e(f's_cmp_eq_u32 s{sWAVE}, 0')
e('s_cbranch_scc1 L_pub')
e(f's_cmp_lt_u32 s{sWAVE}, 5')
e('s_cbranch_scc1 L_stagec')
e(f's_cmp_eq_u32 s{sWAVE}, 7')
e('s_cbranch_scc1 L_final')
e(f'v_lshlrev_b32 v{vT0}, 2, v{vLANE}')
e(f's_mov_b32 s{sCNT}, 0')
lab('L_chk')
e(f'buffer_load_dword v{vT1}, v{vT0}, {srd(sDBG)}, 0 offen sc1')
e('s_waitcnt vmcnt(0)')
e(f'v_cmp_ne_u32 vcc, 0x01010101, v{vT1}')
e(f's_add_u32 s{sCNT}, s{sCNT}, 1')
e(f's_cmp_gt_u32 s{sCNT}, 0x40000')
e('s_cbranch_scc1 L_chk_done')
e('s_cbranch_vccnz L_chk')
lab('L_chk_done')
e(f's_cmp_eq_u32 s{sWAVE}, 6')
e('s_cbranch_scc1 L_ffn')
vO = vWQ
vML = vWQ + 32
e(f'v_lshlrev_b32 v{vT0}, 4, v{vLANE}')
e(f'v_mov_b32 v{vT1}, {OOB}')
e(f'v_cmp_gt_u32 vcc, 48, v{vLANE}')
nop(1)
e(f'v_cndmask_b32 v{vT0}, v{vT1}, v{vT0}, vcc')
e(f'v_and_b32 v{vT2}, 7, v{vLANE}')
e(f'v_mul_u32_u24 v{vT2}, {WS_SLOT}, v{vT2}')
e(f's_mov_b32 s{sCNT}, 0')
for s in range(1, 8): e(f's_add_u32 s{sC+s}, s{sGRP}, {s*WS_SLOT}')
lab('L_poll1')
e(f'buffer_load_dwordx2 {v2(vML)}, v{vT2}, {srd(sWS)}, s{sGRP} offen offset:1152 sc1')
for s in range(8):
    so = sGRP if s == 0 else sC + s
    e(f'buffer_load_dwordx4 {v4(vO+4*s)}, v{vT0}, {srd(sWS)}, s{so} offen sc1')
e('s_waitcnt vmcnt(0)')
e(f'v_max_u32 v{vT1}, v{vML}, v{vML+1}')
for s in range(8):
    e(f'v_max3_u32 v{vT1}, v{vT1}, v{vO+4*s}, v{vO+4*s+1}')
    e(f'v_max3_u32 v{vT1}, v{vT1}, v{vO+4*s+2}, v{vO+4*s+3}')
e(f'v_cmp_eq_u32 vcc, -1, v{vT1}')
e(f's_add_u32 s{sCNT}, s{sCNT}, 1')
e(f's_cmp_gt_u32 s{sCNT}, 0x40000')
e('s_cbranch_scc1 L_poll1_done')
e('s_cbranch_vccnz L_poll1')
lab('L_poll1_done')
e(f'v_mov_b32 v{vT1}, v{vML}')
nop(1)
e(f'v_max_f32 v{vT1}, v{vT1}, v{vT1} quad_perm:[1,0,3,2] {DPP}')
nop(1)
e(f'v_max_f32 v{vT1}, v{vT1}, v{vT1} quad_perm:[2,3,0,1] {DPP}')
nop(1)
e(f'v_max_f32 v{vT1}, v{vT1}, v{vT1} row_half_mirror {DPP}')
e(f'v_sub_f32 v{vT1}, v{vML}, v{vT1}')
e(f'v_mul_f32 v{vT1}, 0x3fb8aa3b, v{vT1}')
e(f'v_exp_f32 v{vT1}, v{vT1}')
nop(0)
e(f'v_mul_f32 v{vT2}, v{vT1}, v{vML+1}')
nop(1)
e(f'v_add_f32 v{vT2}, v{vT2}, v{vT2} quad_perm:[1,0,3,2] {DPP}')
nop(1)
e(f'v_add_f32 v{vT2}, v{vT2}, v{vT2} quad_perm:[2,3,0,1] {DPP}')
nop(1)
e(f'v_add_f32 v{vT2}, v{vT2}, v{vT2} row_half_mirror {DPP}')
e(f'v_rcp_f32 v{vT2}, v{vT2}')
nop(0)
e(f'v_mul_f32 v{vT1}, v{vT1}, v{vT2}')
nop(0)
for s in range(8): e(f'v_readlane_b32 s{sC+s}, v{vT1}, {s}')
nop(1)
for c in range(4): e(f'v_mul_f32 v{vO+c}, s{sC}, v{vO+c}')
for s in range(1, 8):
    for c in range(4): e(f'v_fmac_f32 v{vO+c}, s{sC+s}, v{vO+4*s+c}')
for c in range(4): e(f'v_cvt_pk_bf16_f32 v{vO+c}, v{vO+c}, 0')
e(f'v_lshlrev_b32 v{vT0}, 4, v{vLANE}')
e(f'v_cmp_gt_u32 vcc, 48, v{vLANE}')
e('s_and_saveexec_b64 s[28:29], vcc')
e(f'ds_write_b128 v{vT0}, {v4(vO)} offset:{L_U}')
e('s_waitcnt lgkmcnt(0)')
e('s_barrier')
e('s_endpgm')
lab('L_ffn')
vG = vWQ
e(f'v_lshlrev_b32 v{vT0}, 2, v{vLANE}')
e(f'v_mov_b32 v{vT1}, {OOB}')
e(f'v_cmp_gt_u32 vcc, 48, v{vLANE}')
nop(1)
e(f'v_cndmask_b32 v{vT0}, v{vT1}, v{vT0}, vcc')
e(f's_mov_b32 s{sCNT}, 0')
for s in range(1, 8): e(f's_add_u32 s{sC+s}, s{sGRP}, {s*WS_SLOT}')
lab('L_poll2')
for s in range(8):
    so = sGRP if s == 0 else sC + s
    e(f'buffer_load_dword v{vG+s}, v{vT0}, {srd(sWS)}, s{so} offen offset:768 sc1')
    e(f'buffer_load_dword v{vG+8+s}, v{vT0}, {srd(sWS)}, s{so} offen offset:960 sc1')
e('s_waitcnt vmcnt(0)')
e(f'v_max_u32 v{vT1}, v{vG}, v{vG+1}')
for s in range(7):
    e(f'v_max3_u32 v{vT1}, v{vT1}, v{vG+2+2*s}, v{vG+3+2*s}')
e(f'v_cmp_eq_u32 vcc, -1, v{vT1}')
e(f's_add_u32 s{sCNT}, s{sCNT}, 1')
e(f's_cmp_gt_u32 s{sCNT}, 0x40000')
e('s_cbranch_scc1 L_poll2_done')
e('s_cbranch_vccnz L_poll2')
lab('L_poll2_done')
for s in range(1, 8):
    e(f'v_add_f32 v{vG}, v{vG}, v{vG+s}')
    e(f'v_add_f32 v{vG+8}, v{vG+8}, v{vG+8+s}')
bf16_round(vG, vG)
bf16_round(vG + 8, vG + 8)
e(f'v_mul_f32 v{vT1}, 0xbfb8aa3b, v{vG}')
e(f'v_exp_f32 v{vT1}, v{vT1}')
nop(0)
e(f'v_add_f32 v{vT1}, 1.0, v{vT1}')
e(f'v_rcp_f32 v{vT1}, v{vT1}')
nop(0)
e(f'v_mul_f32 v{vT1}, v{vG}, v{vT1}')
bf16_round(vT1, vT1)
e(f'v_mul_f32 v{vT1}, v{vT1}, v{vG+8}')
e(f'v_cvt_pk_bf16_f32 v{vT1}, v{vT1}, 0')
e(f'v_lshlrev_b32 v{vT0}, 2, v{vLANE}')
e(f'ds_write_b32 v{vT0}, v{vT1} offset:{L_U+768}')
e('s_waitcnt lgkmcnt(0)')
e('s_barrier')
e('s_endpgm')
lab('L_pub')
vTM = vWQ
e(f'v_lshlrev_b32 v{vT0}, 4, v{vLANE}')
e(f'v_cmp_gt_u32 vcc, 48, v{vLANE}')
e('s_and_saveexec_b64 s[28:29], vcc')
for w in range(8):
    e(f'ds_read_b128 {v4(vTM+4*w)}, v{vT0} offset:{L_RED+768*w}')
e(f'v_mov_b32 v{vT1}, 0')
e(f'ds_read_b128 {v4(vTM+32)}, v{vT1} offset:{L_WSUM}')
e(f'ds_read_b128 {v4(vTM+36)}, v{vT1} offset:{L_WSUM+16}')
e('s_waitcnt lgkmcnt(2)')
for step in (4, 2, 1):
    for w in range(step):
        for c in range(4):
            e(f'v_add_f32 v{vTM+4*w+c}, v{vTM+4*w+c}, v{vTM+4*(w+step)+c}')
for c in range(4): e(f'v_min_u32 v{vTM+c}, -2, v{vTM+c}')
e(f'buffer_store_dwordx4 {v4(vTM)}, v{vT0}, {srd(sWS)}, s{sSLOT} offen sc1')
e('s_waitcnt lgkmcnt(0)')
for c in range(4): e(f'v_add_f32 v{vTM+32+c}, v{vTM+32+c}, v{vTM+36+c}')
e(f'v_add_f32 v{vTM+32}, v{vTM+32}, v{vTM+33}')
e(f'v_add_f32 v{vTM+34}, v{vTM+34}, v{vTM+35}')
e(f'v_add_f32 v{vTM+41}, v{vTM+32}, v{vTM+34}')
e(f'v_min_u32 v{vTM+40}, -2, v{vM}')
e(f'v_min_u32 v{vTM+41}, -2, v{vTM+41}')
e(f'v_cmp_eq_u32 vcc, 0, v{vLANE}')
e('s_and_b64 exec, exec, vcc')
e(f'buffer_store_dwordx2 {v2(vTM+40)}, v{vT1}, {srd(sWS)}, s{sSLOT} offen offset:1152 sc1')
e('s_mov_b64 exec, s[28:29]')
lab('L_stagec')
vA = vACC
for i in range(16): e(f'v_mov_b32 v{vA+i}, 0')
e(f'v_lshrrev_b32 v{vT0}, 1, v{vLANE}')
e(f'v_mul_u32_u24 v{vT1}, 24, v{vT0}')
e(f'v_lshlrev_b32 v{vT0}, 2, v{vT0}')
e(f'v_and_b32 v{vT2}, 1, v{vLANE}')
e(f'v_lshlrev_b32 v{vT2}, 6, v{vT2}')
e(f'v_lshrrev_b32 v{vT3}, 5, v{vLANE}')
e(f'v_lshlrev_b32 v{vT3}, 5, v{vT3}')
e(f'v_add_u32 v{vT2}, v{vT2}, v{vT3}')
e(f'v_bfe_u32 v{vT3}, v{vLANE}, 4, 1')
e(f'v_lshlrev_b32 v{vT3}, 4, v{vT3}')
e(f'v_add_u32 v{vT2}, v{vT2}, v{vT3}')
e(f's_mul_i32 s{sT0}, s{sSPLIT}, 5')
e(f's_add_u32 s{sT0}, s{sT0}, s{sWAVE}')
e(f's_lshl_b32 s{sT0}, s{sT0}, 12')
e(f's_lshl_b32 s{sT1}, s{sHEAD}, 7')
e(f's_add_u32 s{sT0}, s{sT0}, s{sT1}')
e(f's_add_u32 s{sT0}, s{sT0}, {WS_Y}')
e('s_waitcnt vmcnt(0)')
e('s_barrier')
stamp()
vU = vWQ + 48
for i in range(3):
    e(f'ds_read_b64 {v2(vU+2*i)}, v{vT1} offset:{L_U+8*i}')
e(f'ds_read_b32 v{vU+6}, v{vT0} offset:{L_U+768}')
e(f'ds_read_b32 v{vU+7}, v{vT0} offset:{L_U+768+128}')
e('s_waitcnt lgkmcnt(0)')
for i in range(8): e(f'v_lshlrev_b32 v{vU+8+i}, 16, v{vU+i}')
for i in range(6): axpy(vA, vWO + 4 * i, vU + i, vU + 8 + i)
for i in range(6, 8): axpy(vA + 8, vWO + 4 * i, vU + i, vU + 8 + i)
nop(2)
for j in range(2):
    for ee in range(4): e(f'v_permlane32_swap_b32 v{vA+8*j+ee}, v{vA+8*j+ee+4}')
nop(1)
for j in range(2):
    for ee in range(4): e(f'v_add_f32 v{vA+8*j+ee}, v{vA+8*j+ee}, v{vA+8*j+ee+4}')
nop(1)
for j in range(2):
    for ee in range(2): e(f'v_permlane16_swap_b32 v{vA+8*j+ee}, v{vA+8*j+ee+2}')
nop(1)
for j in range(2):
    for ee in range(2): e(f'v_add_f32 v{vA+8*j+ee}, v{vA+8*j+ee}, v{vA+8*j+ee+2}')
for dpp in ('row_ror:8', 'row_ror:4', 'quad_perm:[2,3,0,1]'):
    nop(1)
    for j in range(2):
        for ee in range(2): e(f'v_add_f32 v{vA+8*j+ee}, v{vA+8*j+ee}, v{vA+8*j+ee} {dpp} {DPP}')
e(f'v_min_u32 v{vA}, -2, v{vA}')
e(f'v_min_u32 v{vA+1}, -2, v{vA+1}')
e(f'v_min_u32 v{vA+2}, -2, v{vA+8}')
e(f'v_min_u32 v{vA+3}, -2, v{vA+9}')
e(f'v_and_b32 v{vT3}, 14, v{vLANE}')
e(f'v_cmp_eq_u32 vcc, 0, v{vT3}')
e('s_and_saveexec_b64 s[28:29], vcc')
e(f'buffer_store_dwordx4 {v4(vA)}, v{vT2}, {srd(sWS)}, s{sT0} offen sc1')
if STAMPS:
    e('s_mov_b64 exec, s[28:29]')
    e('s_branch L_stamp_out')
e('s_endpgm')
lab('L_final')
e('s_cmp_ge_u32 s2, 40')
e('s_cbranch_scc1 L_end')
vY = vWQ
e(f'v_lshlrev_b32 v{vT0}, 4, v{vLANE}')
e(f's_lshl_b32 s{sT0}, s2, 12')
e(f's_add_u32 s{sT0}, s{sT0}, {WS_Y}')
e(f'v_and_b32 v{vT2}, 7, v{vLANE}')
e(f'v_lshlrev_b32 v{vT2}, 2, v{vT2}')
e(f'v_lshrrev_b32 v{vT3}, 5, v{vLANE}')
e(f'v_lshlrev_b32 v{vT3}, 1, v{vT3}')
e(f'v_add_u32 v{vT2}, v{vT2}, v{vT3}')
e(f's_lshl_b32 s{sT1}, s2, 5')
e(f'buffer_load_ushort v{vT4}, v{vT2}, {srd(sX)}, s{sT1} offen')
e('s_barrier')
e(f's_mov_b32 s{sCNT}, 0')
lab('L_poll3')
for i in range(4):
    e(f'buffer_load_dwordx4 {v4(vY+4*i)}, v{vT0}, {srd(sWS)}, s{sT0} offen offset:{1024*i} sc1')
e('s_waitcnt vmcnt(0)')
e(f'v_max_u32 v{vT1}, v{vY}, v{vY+1}')
for s in range(7):
    e(f'v_max3_u32 v{vT1}, v{vT1}, v{vY+2+2*s}, v{vY+3+2*s}')
e(f'v_cmp_eq_u32 vcc, -1, v{vT1}')
e(f's_add_u32 s{sCNT}, s{sCNT}, 1')
e(f's_cmp_gt_u32 s{sCNT}, 0x40000')
e('s_cbranch_scc1 L_poll3_done')
e('s_cbranch_vccnz L_poll3')
lab('L_poll3_done')
for c in range(4):
    e(f'v_add_f32 v{vY+c}, v{vY+c}, v{vY+4+c}')
    e(f'v_add_f32 v{vY+8+c}, v{vY+8+c}, v{vY+12+c}')
for c in range(4): e(f'v_add_f32 v{vY+c}, v{vY+c}, v{vY+8+c}')
nop(1)
e(f'v_permlane32_swap_b32 v{vY}, v{vY+1}')
e(f'v_permlane32_swap_b32 v{vY+2}, v{vY+3}')
nop(1)
e(f'v_add_f32 v{vY}, v{vY}, v{vY+1}')
e(f'v_add_f32 v{vY+2}, v{vY+2}, v{vY+3}')
nop(1)
e(f'v_add_f32 v{vY}, v{vY}, v{vY} row_ror:8 {DPP}')
e(f'v_add_f32 v{vY+2}, v{vY+2}, v{vY+2} row_ror:8 {DPP}')
nop(1)
e(f'v_mov_b32 v{vY+1}, v{vY}')
e(f'v_mov_b32 v{vY+3}, v{vY+2}')
nop(1)
e(f'v_permlane16_swap_b32 v{vY+1}, v{vY}')
e(f'v_permlane16_swap_b32 v{vY+3}, v{vY+2}')
nop(1)
e(f'v_add_f32 v{vY}, v{vY}, v{vY+1}')
e(f'v_add_f32 v{vY+2}, v{vY+2}, v{vY+3}')
bf16_round(vY, vY)
bf16_round(vY + 2, vY + 2)
e(f'v_lshlrev_b32 v{vT4}, 16, v{vT4}')
e(f'v_add_f32 v{vY}, v{vT4}, v{vY}')
bf16_round(vY, vY)
e(f'v_add_f32 v{vY}, v{vY}, v{vY+2}')
e(f'v_cvt_pk_bf16_f32 v{vY}, v{vY}, v{vY}')
e(f'v_and_b32 v{vT3}, 24, v{vLANE}')
e(f'v_cmp_eq_u32 vcc, 0, v{vT3}')
e('s_and_saveexec_b64 s[28:29], vcc')
e(f'buffer_store_short v{vY}, v{vT2}, {srd(sOUT)}, s{sT1} offen')
if STAMPS:
    e('s_mov_b64 exec, s[28:29]')
    lab('L_stamp_out')
    e('s_waitcnt vmcnt(0)')
    e(f's_memrealtime s[{sST+14}:{sST+15}]')
    e('s_waitcnt lgkmcnt(0)')
    for i in range(8): e(f'v_mov_b32 v{vWQ+64+i}, s{sST+2*i}')
    e(f's_lshl_b32 s{sT0}, s2, 3')
    e(f's_add_u32 s{sT0}, s{sT0}, s{sWAVE}')
    e(f's_lshl_b32 s{sT0}, s{sT0}, 5')
    e(f's_add_u32 s{sT0}, s{sT0}, {WS_STAMP}')
    e(f'v_mov_b32 v{vT0}, 0')
    e(f'v_cmp_eq_u32 vcc, 0, v{vLANE}')
    e('s_and_saveexec_b64 s[28:29], vcc')
    e(f'buffer_store_dwordx4 {v4(vWQ+64)}, v{vT0}, {srd(sWS)}, s{sT0} offen')
    e(f'buffer_store_dwordx4 {v4(vWQ+68)}, v{vT0}, {srd(sWS)}, s{sT0} offen offset:16')
lab('L_end')
e('s_endpgm')
L.append('.section .rodata,"a"')
L.append('.p2align 6')
L.append(f'.amdhsa_kernel {NAME}')
L.append('  .amdhsa_next_free_vgpr 256')
L.append('  .amdhsa_next_free_sgpr 102')
L.append('  .amdhsa_accum_offset 256')
L.append('  .amdhsa_group_segment_fixed_size 0')
L.append('  .amdhsa_kernarg_size 96')
L.append('  .amdhsa_user_sgpr_count 2')
L.append('  .amdhsa_user_sgpr_kernarg_segment_ptr 1')
L.append('  .amdhsa_system_sgpr_workgroup_id_x 1')
L.append('.end_amdhsa_kernel')
open(sys.argv[1], 'w').write('\n'.join(L) + '\n')
```

```python
import sys
STAMPS = '--stamps' in sys.argv
NODEFER = '--nodefer' in sys.argv
NAME = 'parallel_sum__sliding_block_cached__glu_gated_swiglu__decode_kernel'

L = []
def e(s): L.append('    ' + s)
def lab(s): L.append(s + ':')
def cmt(s): L.append('    ; ' + s)

HEAD_STRIDE = 32768 * 384
WIN = 28672 * 384
WS_SLOT = 2048
SL_O, SL_G, SL_U, SL_ML, SL_Q = 0, 768, 960, 1152, 1280
WS_Y = 256 * WS_SLOT
WS_Y_BYTES = 40 * 32 * 128
WS_USED = WS_Y + WS_Y_BYTES
WS_STAMP = 1 << 20
OOB = 0x40000000
SPIN = 0x40000

sX, sK, sV, sWQ, sWO, sW1, sW3, sW2, sOUT, sDBG, sWS = [40 + 4 * i for i in range(11)]
def srd(b): return f's[{b}:{b+3}]'
sHEAD, sSPLIT, sWAVE = 3, 4, 5
sT0, sT1, sT2, sT3 = 6, 7, 8, 9
sKB = 10
sWQB = 11
sSLOT = 12
sGRP = 13
sWOB = 14
sW2B = 15
sCNT = 16
sFB = 17
sT4 = 18
sT5 = 19
sC = 20
sST = 84

L_RED = 0
L_FRED = 3072
L_QBF = 4608
L_P = 5120
L_WMAX = 7168
L_WSUM = 7184
L_CNT = 7200
C1, C2, C3, C5, C4 = L_CNT, L_CNT + 4, L_CNT + 8, L_CNT + 12, L_CNT + 16
L_COEF = 7232
L_U = 7296 + 128 - 128
L_U = 7424
LDS_BYTES = 8448

vTID = 0
vOFF = 1
vT0, vT1, vT2, vT3 = 2, 3, 4, 5
vLANE = 6
vRA = 7
vM = 8
vT4, vT5, vT6, vT7 = 9, 10, 11, 12
vX = 13
vD = 64

class VM:
    def __init__(self): self.q = []
    def issue(self, tag): self.q.append(tag)
    def wait(self, tag):
        if tag not in self.q: return
        idx = max(i for i, t in enumerate(self.q) if t == tag)
        n = len(self.q) - 1 - idx
        assert n <= 63, n
        e(f's_waitcnt vmcnt({n})')
        self.q = self.q[idx + 1:]
    def drain(self):
        e('s_waitcnt vmcnt(0)'); self.q = []

def stamp(i):
    if STAMPS: e(f's_memrealtime s[{sST+2*i}:{sST+2*i+1}]')

def stamp_out():
    if STAMPS:
        e('s_mov_b64 exec, -1')
        e('s_branch L_stamp_out')
    else:
        e('s_endpgm')

def nop(n): e(f's_nop {n}')
def v4(b): return f'v[{b}:{b+3}]'
def v2(b): return f'v[{b}:{b+1}]'
DPP = 'row_mask:0xf bank_mask:0xf'

def bf16_round(dst, src):
    e(f'v_cvt_pk_bf16_f32 v{dst}, v{src}, v{src}')
    e(f'v_and_b32 v{dst}, 0xffff0000, v{dst}')

def allreduce_rows(op, v, tmp):
    nop(1)
    e(f'v_mov_b32 v{tmp}, v{v}')
    nop(1)
    e(f'v_permlane16_swap_b32 v{tmp}, v{v}')
    nop(1)
    e(f'{op} v{v}, v{tmp}, v{v}')
    nop(1)
    e(f'v_mov_b32 v{tmp}, v{v}')
    nop(1)
    e(f'v_permlane32_swap_b32 v{tmp}, v{v}')
    nop(1)
    e(f'{op} v{v}, v{tmp}, v{v}')

def allreduce8(op, v):
    nop(1)
    e(f'{op} v{v}, v{v}, v{v} quad_perm:[1,0,3,2] {DPP}')
    nop(1)
    e(f'{op} v{v}, v{v}, v{v} quad_perm:[2,3,0,1] {DPP}')
    nop(1)
    e(f'{op} v{v}, v{v}, v{v} row_half_mirror {DPP}')

def allreduce64(op, v, tmp):
    allreduce8(op, v)
    nop(1)
    e(f'{op} v{v}, v{v}, v{v} row_mirror {DPP}')
    allreduce_rows(op, v, tmp)

def reduce_r8(acc, nj):
    nop(2)
    for j in range(nj):
        for ee in range(4): e(f'v_permlane32_swap_b32 v{acc+8*j+ee}, v{acc+8*j+ee+4}')
    nop(1)
    for j in range(nj):
        for ee in range(4): e(f'v_add_f32 v{acc+8*j+ee}, v{acc+8*j+ee}, v{acc+8*j+ee+4}')
    nop(1)
    for j in range(nj):
        for ee in range(2): e(f'v_permlane16_swap_b32 v{acc+8*j+ee}, v{acc+8*j+ee+2}')
    nop(1)
    for j in range(nj):
        for ee in range(2): e(f'v_add_f32 v{acc+8*j+ee}, v{acc+8*j+ee}, v{acc+8*j+ee+2}')
    nop(1)
    for j in range(nj):
        for ee in range(2): e(f'v_add_f32 v{acc+8*j+ee}, v{acc+8*j+ee}, v{acc+8*j+ee} row_ror:8 {DPP}')

def axpy(acc, data, lo, hi):
    for d in range(4):
        e(f'v_dot2c_f32_bf16 v{acc+2*d}, v{data+d}, v{lo}')
        e(f'v_dot2c_f32_bf16 v{acc+2*d+1}, v{data+d}, v{hi}')

uid = [0]
def lds_spin(addr, target, sleep=True):
    uid[0] += 1
    n = uid[0]
    e(f'v_mov_b32 v{vT0}, 0')
    e(f's_mov_b32 s{sCNT}, 0')
    lab(f'L_sp{n}')
    e(f'ds_read_b32 v{vT1}, v{vT0} offset:{addr}')
    e('s_waitcnt lgkmcnt(0)')
    e(f'v_readfirstlane_b32 s{sT5}, v{vT1}')
    e(f's_add_u32 s{sCNT}, s{sCNT}, 1')
    e(f's_cmp_ge_u32 s{sT5}, {target}')
    e(f's_cbranch_scc1 L_spd{n}')
    e(f's_cmp_gt_u32 s{sCNT}, {SPIN*16}')
    e(f's_cbranch_scc1 L_spd{n}')
    if sleep: e('s_sleep 1')
    e(f's_branch L_sp{n}')
    lab(f'L_spd{n}')

def lds_inc(addr):
    e('s_waitcnt lgkmcnt(0)')
    e(f'v_mov_b32 v{vT0}, 0')
    e(f'v_mov_b32 v{vT1}, 1')
    e('s_mov_b64 exec, 1')
    e(f'ds_add_u32 v{vT0}, v{vT1} offset:{addr}')
    e('s_mov_b64 exec, -1')

def poll_tail(name, chk):
    e(f'v_cmp_eq_u32 vcc, -1, v{chk}')
    e(f's_add_u32 s{sCNT}, s{sCNT}, 1')
    e(f's_cmp_gt_u32 s{sCNT}, {SPIN}')
    e(f's_cbranch_scc1 {name}_done')
    e(f's_cbranch_vccnz {name}')
    lab(f'{name}_done')

def umax_chain(dst, regs):
    e(f'v_max_u32 v{dst}, v{regs[0]}, v{regs[1]}')
    i = 2
    while i + 1 < len(regs):
        e(f'v_max3_u32 v{dst}, v{dst}, v{regs[i]}, v{regs[i+1]}'); i += 2
    if i < len(regs): e(f'v_max_u32 v{dst}, v{dst}, v{regs[i]}')

def wo_setup():
    e(f'v_lshrrev_b32 v{vT0}, 1, v{vLANE}')
    e(f'v_and_b32 v{vT1}, 1, v{vLANE}')
    e(f'v_lshlrev_b32 v{vT1}, 4, v{vT1}')
    e(f'v_mul_u32_u24 v{vT4}, {6*1280}, v{vT0}')
    e(f'v_add_u32 v{vT4}, v{vT4}, v{vT1}')
    e(f'v_mul_u32_u24 v{vT5}, 1280, v{vT0}')
    e(f'v_add_u32 v{vT5}, v{vT5}, v{vT1}')
    e(f'v_mov_b32 v{vT2}, {OOB}')
    e(f'v_cmp_gt_u32 vcc, 32, v{vLANE}')
    nop(1)
    e(f'v_cndmask_b32 v{vT6}, v{vT2}, v{vT5}, vcc')
    e(f's_mul_i32 s{sT0}, s{sSPLIT}, 160')
    e(f's_lshl_b32 s{sT1}, s{sWAVE}, 5')
    e(f's_add_u32 s{sT0}, s{sT0}, s{sT1}')
    e(f's_mul_i32 s{sWOB}, s{sHEAD}, {192*1280}')
    e(f's_add_u32 s{sWOB}, s{sWOB}, s{sT0}')
    e(f's_mul_i32 s{sW2B}, s{sHEAD}, {48*1280}')
    e(f's_add_u32 s{sW2B}, s{sW2B}, s{sT0}')
    e(f's_add_u32 s{sT1}, s{sW2B}, {32*1280}')
    e(f's_add_u32 s{sT0}, s{sWOB}, {3*1280}')

def wo_issue(vm, base):
    e(f'buffer_load_dwordx4 {v4(base+24)}, v{vT5}, {srd(sW2)}, s{sW2B} offen nt'); vm.issue('wo')
    e(f'buffer_load_dwordx4 {v4(base+28)}, v{vT6}, {srd(sW2)}, s{sT1} offen nt'); vm.issue('wo')
    for i in range(6):
        so = sWOB if i < 3 else sT0
        e(f'buffer_load_dwordx4 {v4(base+4*i)}, v{vT4}, {srd(sWO)}, s{so} offen offset:{1280*(i%3)} nt'); vm.issue('wo')

hdr = open('parallel_sum__sliding_block_cached__glu_gated_swiglu__decode.s.ref').read().split('\n')
for line in hdr:
    if line.startswith('; @launch'):
        L.append(f'; @launch grid=(256,1,1) block=(512,1,1) lds={LDS_BYTES}')
    elif line.startswith(';'):
        L.append(line)
    else:
        break
L.append('.amdgcn_target "amdgcn-amd-amdhsa--gfx950"')
L.append('.text')
L.append(f'.globl {NAME}')
L.append('.p2align 8')
L.append(f'.type {NAME},@function')
lab(NAME)
stamp(0)
e('s_cmp_ge_u32 s2, 256')
e('s_cbranch_scc1 L_end')
for (sr, off) in [(sX, 0), (sWQ, 24), (sK, 8), (sV, 16), (sW1, 48), (sW3, 56), (sWS, 88), (sDBG, 80), (sWO, 32), (sW2, 64), (sOUT, 72)]:
    e(f's_load_dwordx2 s[{sr}:{sr+1}], s[0:1], {off}')
e(f'v_lshrrev_b32 v{vT0}, 6, v0')
e(f'v_and_b32 v{vLANE}, 63, v0')
e(f'v_readfirstlane_b32 s{sWAVE}, v{vT0}')
for (sr, nb) in [(sX, 1280), (sWQ, 7864320), (sK, 402653184), (sWS, (WS_STAMP + 65536*4) if STAMPS else WS_USED), (sV, 402653184), (sW1, 1966080),
                 (sW3, 1966080), (sDBG, 256), (sWO, 7864320), (sW2, 1966080), (sOUT, 1280)]:
    e(f's_mov_b32 s{sr+2}, {nb}')
    e(f's_mov_b32 s{sr+3}, 0x00020000')
e(f's_and_b32 s{sHEAD}, s2, 7')
e(f's_lshr_b32 s{sSPLIT}, s2, 3')
e(f's_and_b32 s{sT0}, s{sSPLIT}, 3')
e(f's_lshl_b32 s{sHEAD}, s{sHEAD}, 2')
e(f's_add_u32 s{sHEAD}, s{sHEAD}, s{sT0}')
e(f's_lshr_b32 s{sSPLIT}, s{sSPLIT}, 2')
e(f'v_lshrrev_b32 v{vT0}, 3, v{vLANE}')
e(f'v_and_b32 v{vT1}, 7, v{vLANE}')
e(f'v_lshlrev_b32 v{vT2}, 4, v{vT1}')
e(f'v_mul_u32_u24 v{vOFF}, 384, v{vT0}')
e(f'v_add_u32 v{vOFF}, v{vOFF}, v{vT2}')
e(f's_mul_i32 s{sKB}, s{sHEAD}, {HEAD_STRIDE}')
e(f's_mul_i32 s{sT0}, s{sSPLIT}, {512*384}')
e(f's_add_u32 s{sKB}, s{sKB}, s{sT0}')
e(f's_and_b32 s{sT1}, s{sWAVE}, 3')
e(f's_mul_i32 s{sT0}, s{sT1}, {128*384}')
e(f's_add_u32 s{sKB}, s{sKB}, s{sT0}')
e(f's_add_u32 s{sKB}, s{sKB}, {WIN}')
e(f's_lshl_b32 s{sT0}, s{sHEAD}, 3')
e(f's_mul_i32 s{sGRP}, s{sT0}, {WS_SLOT}')
e(f's_mul_i32 s{sT0}, s{sSPLIT}, {WS_SLOT}')
e(f's_add_u32 s{sSLOT}, s{sGRP}, s{sT0}')
e(f's_cmp_ge_u32 s{sWAVE}, 4')
e('s_cbranch_scc1 L_vwave')

vm = VM()
e('s_setprio 2')
vWQ = vD + 12 * 11
vAC = vD + 12 * 7
vFA = vAC + 24
vXS = 16
e(f's_mul_i32 s{sT0}, s{sSPLIT}, 80')
e(f's_mul_i32 s{sT1}, s{sWAVE}, 20')
e(f's_add_u32 s{sT0}, s{sT0}, s{sT1}')
e(f's_lshl_b32 s{sT3}, s{sT0}, 1')
e(f's_mul_i32 s{sWQB}, s{sT0}, 12288')
e(f's_mul_i32 s{sT1}, s{sHEAD}, 384')
e(f's_add_u32 s{sWQB}, s{sWQB}, s{sT1}')
e(f's_mul_i32 s{sFB}, s{sT0}, 3072')
e(f's_mul_i32 s{sT1}, s{sHEAD}, 96')
e(f's_add_u32 s{sFB}, s{sFB}, s{sT1}')
e(f'v_mul_u32_u24 v{vT3}, 20, v{vLANE}')
e(f'v_lshlrev_b32 v{vT4}, 1, v{vT0}')
e(f'v_mul_u32_u24 v{vT5}, 12288, v{vT0}')
e(f'v_add_u32 v{vT5}, v{vT5}, v{vT2}')
e(f'v_mul_u32_u24 v{vT6}, 3072, v{vT0}')
e(f'v_add_u32 v{vT6}, v{vT6}, v{vT2}')
e(f'v_mov_b32 v{vT7}, {OOB}')
e(f'v_cmp_gt_u32 vcc, 6, v{vT1}')
nop(1)
e(f'v_cndmask_b32 v{vT6}, v{vT7}, v{vT6}, vcc')
e(f'v_cmp_gt_u32 vcc, 32, v{vLANE}')
nop(1)
e(f'v_cndmask_b32 v{vM}, v{vT7}, v{vT5}, vcc')
e(f'v_cndmask_b32 v{vRA}, v{vT7}, v{vT6}, vcc')
e('s_waitcnt lgkmcnt(0)')
stamp(1)
e(f'buffer_load_dwordx4 {v4(vXS)}, v{vT3}, {srd(sX)}, 0 offen'); vm.issue('x')
e(f'buffer_load_dword v{vXS+4}, v{vT3}, {srd(sX)}, 0 offen offset:16'); vm.issue('x')
for k in range(3):
    e(f'buffer_load_ushort v{vX+k}, v{vT4}, {srd(sX)}, s{sT3} offen offset:{16*k}'); vm.issue('x')
for k in range(3):
    vo = vT5 if k < 2 else vM
    vf = vT6 if k < 2 else vRA
    for j in range(3):
        e(f'buffer_load_dwordx4 {v4(vWQ+20*k+4*j)}, v{vo}, {srd(sWQ)}, s{sWQB} offen offset:{128*j} nt'); vm.issue('wq')
    e(f'buffer_load_dwordx4 {v4(vWQ+20*k+12)}, v{vf}, {srd(sW1)}, s{sFB} offen nt'); vm.issue('wq')
    e(f'buffer_load_dwordx4 {v4(vWQ+20*k+16)}, v{vf}, {srd(sW3)}, s{sFB} offen nt'); vm.issue('wq')
    if k < 2:
        e(f's_add_u32 s{sWQB}, s{sWQB}, {8*12288}')
        e(f's_add_u32 s{sFB}, s{sFB}, {8*3072}')
def kload(G):
    for j in range(3):
        e(f'buffer_load_dwordx4 {v4(vD+12*G+4*j)}, v{vOFF}, {srd(sK)}, s{sKB} offen offset:{128*j} nt'); vm.issue(f'k{G}')
    e(f's_add_u32 s{sKB}, s{sKB}, 3072')
kload(0)
vCL = 24
for i in range(4): e(f'v_mov_b32 v{vCL+i}, -1')
e(f'v_lshlrev_b32 v{vT3}, 4, v{vLANE}')
e(f'v_lshlrev_b32 v{vT4}, 12, v{vT0}')
e(f'v_add_u32 v{vT4}, v{vT4}, v{vT2}')
e(f'v_cmp_gt_u32 vcc, 40, v{vLANE}')
nop(1)
e(f'v_cndmask_b32 v{vT4}, v{vT7}, v{vT4}, vcc')
e(f's_mul_i32 s{sT0}, s{sSPLIT}, {5*4096}')
e(f's_lshl_b32 s{sT1}, s{sHEAD}, 7')
e(f's_add_u32 s{sT0}, s{sT0}, s{sT1}')
e(f's_add_u32 s{sT0}, s{sT0}, {WS_Y}')
e(f's_cmp_eq_u32 s{sWAVE}, 3')
e(f's_cselect_b32 s{sT0}, s{sT0}, {OOB}')
e(f's_cselect_b32 s{sT1}, s{sSLOT}, {OOB}')
e(f's_cselect_b32 s{sT2}, 0, {OOB}')
e(f'buffer_store_dwordx4 {v4(vCL)}, v{vT3}, {srd(sWS)}, s{sT1} offen sc1'); vm.issue('clr')
e(f'buffer_store_dwordx4 {v4(vCL)}, v{vT3}, {srd(sWS)}, s{sT1} offen offset:1024 sc1'); vm.issue('clr')
e(f'buffer_store_dwordx4 {v4(vCL)}, v{vT4}, {srd(sWS)}, s{sT0} offen sc1'); vm.issue('clr')
kload(1)
e(f'v_mov_b32 v{vT3}, 0')
e(f'v_lshlrev_b32 v{vT4}, 2, v{vT1}')
e(f'ds_write_b32 v{vT4}, v{vT3} offset:{L_CNT}')
e('s_waitcnt lgkmcnt(0)')
e('s_barrier')
for G in range(2, 7): kload(G)
vm.wait('x')
e(f'v_lshlrev_b32 v{vT0}, 16, v{vXS}')
e(f'v_and_b32 v{vT1}, 0xffff0000, v{vXS}')
e(f'v_add_f32 v{vT3}, v{vT0}, v{vT1}')
for d in range(1, 5):
    e(f'v_lshlrev_b32 v{vT0}, 16, v{vXS+d}')
    e(f'v_and_b32 v{vT1}, 0xffff0000, v{vXS+d}')
    e(f'v_add_f32 v{vT3}, v{vT3}, v{vT0}')
    e(f'v_add_f32 v{vT3}, v{vT3}, v{vT1}')
allreduce64('v_add_f32', vT3, vT4)
e(f'v_mul_f32 v{vT3}, 0x3acccccd, v{vT3}')
e(f'v_mov_b32 v{vT5}, 0')
for d in range(5):
    e(f'v_lshlrev_b32 v{vT0}, 16, v{vXS+d}')
    e(f'v_and_b32 v{vT1}, 0xffff0000, v{vXS+d}')
    e(f'v_sub_f32 v{vT0}, v{vT0}, v{vT3}')
    e(f'v_sub_f32 v{vT1}, v{vT1}, v{vT3}')
    e(f'v_fmac_f32 v{vT5}, v{vT0}, v{vT0}')
    e(f'v_fmac_f32 v{vT5}, v{vT1}, v{vT1}')
allreduce64('v_add_f32', vT5, vT4)
e(f'v_mul_f32 v{vT5}, 0x3acccccd, v{vT5}')
bf16_round(vT3, vT3)
bf16_round(vT5, vT5)
e(f'v_add_f32 v{vT5}, 0x3727c5ac, v{vT5}')
bf16_round(vT5, vT5)
e(f'v_sqrt_f32 v{vT5}, v{vT5}')
nop(0)
bf16_round(vT5, vT5)
e(f'v_rcp_f32 v{vT6}, v{vT5}')
nop(0)
for k in range(3):
    e(f'v_lshlrev_b32 v{vT0}, 16, v{vX+k}')
    e(f'v_sub_f32 v{vT0}, v{vT0}, v{vT3}')
    bf16_round(vT0, vT0)
    e(f'v_mul_f32 v{vT4}, v{vT0}, v{vT6}')
    e(f'v_fma_f32 v{vT0}, -v{vT4}, v{vT5}, v{vT0}')
    e(f'v_fmac_f32 v{vT4}, v{vT0}, v{vT6}')
    e(f'v_cvt_pk_bf16_f32 v{vX+k}, v{vT4}, 0')
for i in range(40): e(f'v_mov_b32 v{vAC+i}, 0')
e(f'v_and_b32 v{vRA}, 7, v{vLANE}')
e(f'v_lshlrev_b32 v{vRA}, 5, v{vRA}')
e(f'v_lshrrev_b32 v{vT6}, 5, v{vLANE}')
e(f'v_lshlrev_b32 v{vT6}, 4, v{vT6}')
e(f'v_add_u32 v{vRA}, v{vRA}, v{vT6}')
e(f'v_bfe_u32 v{vT6}, v{vLANE}, 4, 1')
e(f'v_lshlrev_b32 v{vT6}, 3, v{vT6}')
e(f'v_add_u32 v{vRA}, v{vRA}, v{vT6}')
vm.wait('wq')
for k in range(3):
    e(f'v_lshlrev_b32 v{vT1}, 16, v{vX+k}')
    for j in range(3): axpy(vAC + 8 * j, vWQ + 20 * k + 4 * j, vX + k, vT1)
    axpy(vFA, vWQ + 20 * k + 12, vX + k, vT1)
    axpy(vFA + 8, vWQ + 20 * k + 16, vX + k, vT1)
reduce_r8(vAC, 5)
e(f's_mul_i32 s{sT0}, s{sWAVE}, 768')
e(f'v_add_u32 v{vT2}, s{sT0}, v{vRA}')
for j in range(3):
    e(f'ds_write_b64 v{vT2}, {v2(vAC+8*j)} offset:{L_RED+256*j}')
e(f's_mul_i32 s{sT0}, s{sWAVE}, 384')
e(f'v_add_u32 v{vT2}, s{sT0}, v{vRA}')
e(f'v_and_b32 v{vT1}, 7, v{vLANE}')
e(f'v_cmp_gt_u32 vcc, 6, v{vT1}')
e('s_and_saveexec_b64 s[28:29], vcc')
e(f'ds_write_b64 v{vT2}, {v2(vFA)} offset:{L_FRED}')
e(f'ds_write_b64 v{vT2}, {v2(vFA+8)} offset:{L_FRED+192}')
e('s_mov_b64 exec, s[28:29]')
lds_inc(C1)
vm.wait('clr')
e(f'v_mov_b32 v{vT0}, s2')
e(f'v_mov_b32 v{vT1}, {OOB}')
e(f'v_cmp_eq_u32 vcc, 0, v{vLANE}')
nop(1)
e(f'v_cndmask_b32 v{vT0}, v{vT1}, v{vT0}, vcc')
e(f'v_mov_b32 v{vT1}, 1')
e(f'buffer_store_byte v{vT1}, v{vT0}, {srd(sDBG)}, s{sT2} offen sc1'); vm.issue('flag')
stamp(2)
lds_inc(C1)
e(f's_cmp_ge_u32 s{sWAVE}, 2')
e('s_cbranch_scc1 L_pub_skip')
lds_spin(C1, 8, sleep=False)
vTM = 28
e(f'v_lshlrev_b32 v{vT2}, 4, v{vLANE}')
e(f's_cmp_eq_u32 s{sWAVE}, 0')
e(f's_cselect_b32 s{sT0}, 48, 24')
e(f's_cselect_b32 s{sT1}, {L_RED}, {L_FRED}')
e(f's_cselect_b32 s{sT3}, 384, 0')
e(f's_cselect_b32 s{sT4}, {SL_Q-SL_G}, 0')
e(f's_add_u32 s{sT3}, s{sT3}, 384')
e(f's_add_u32 s{sT4}, s{sT4}, {SL_G}')
e(f's_add_u32 s{sT4}, s{sT4}, s{sSLOT}')
e(f'v_add_u32 v{vT3}, s{sT1}, v{vT2}')
e(f'v_cmp_gt_u32 vcc, s{sT0}, v{vLANE}')
e('s_and_saveexec_b64 s[28:29], vcc')
for w in range(4):
    e(f'ds_read_b128 {v4(vTM+4*w)}, v{vT3}')
    if w < 3: e(f'v_add_u32 v{vT3}, s{sT3}, v{vT3}')
e('s_waitcnt lgkmcnt(0)')
for c in range(4):
    e(f'v_add_f32 v{vTM+c}, v{vTM+c}, v{vTM+4+c}')
    e(f'v_add_f32 v{vTM+8+c}, v{vTM+8+c}, v{vTM+12+c}')
for c in range(4): e(f'v_add_f32 v{vTM+c}, v{vTM+c}, v{vTM+8+c}')
for c in range(4): e(f'v_min_u32 v{vTM+c}, -2, v{vTM+c}')
e(f'buffer_store_dwordx4 {v4(vTM)}, v{vT2}, {srd(sWS)}, s{sT4} offen sc1')
e('s_mov_b64 exec, s[28:29]')
e('s_branch L_pub_done')
lab('L_pub_skip')
e(f'v_mov_b32 v{vT0}, {OOB}')
e(f'buffer_store_dword v{vT0}, v{vT0}, {srd(sWS)}, 0 offen')
lab('L_pub_done')
vm.issue('pub')
for G in range(7, 10): kload(G)
e(f's_cmp_eq_u32 s{sWAVE}, 0')
e('s_cbranch_scc1 L_k0')
import copy
vm_other = copy.deepcopy(vm)
vm_save = vm
vm = vm_other
for G in range(10, 16): kload(G)
e('s_branch L_kq')
lab('L_k0')
vm = vm_save
vFL = 28
e(f'v_lshlrev_b32 v{vT2}, 2, v{vLANE}')
e(f'buffer_load_dword v{vFL}, v{vT2}, {srd(sDBG)}, 0 offen sc1'); vm.issue('fl')
for G in range(10, 13): kload(G)
vm.wait('fl')
e(f's_mov_b32 s{sCNT}, 0')
lab('L_chk')
e(f'v_cmp_ne_u32 vcc, 0x01010101, v{vFL}')
e(f's_add_u32 s{sCNT}, s{sCNT}, 1')
e(f's_cmp_gt_u32 s{sCNT}, {SPIN}')
e('s_cbranch_scc1 L_chk_done')
e('s_cbranch_vccz L_chk_done')
e(f'buffer_load_dword v{vFL}, v{vT2}, {srd(sDBG)}, 0 offen sc1')
e('s_waitcnt vmcnt(0)')
e('s_branch L_chk')
lab('L_chk_done')
vQP = 28
e(f'v_lshlrev_b32 v{vT2}, 4, v{vLANE}')
e(f'v_mov_b32 v{vT1}, {OOB}')
e(f'v_cmp_gt_u32 vcc, 48, v{vLANE}')
nop(1)
e(f'v_cndmask_b32 v{vT2}, v{vT1}, v{vT2}, vcc')
for s in range(8): e(f's_add_u32 s{sC+s}, s{sGRP}, {s*WS_SLOT}')
for s in range(8):
    e(f'buffer_load_dwordx4 {v4(vQP+4*s)}, v{vT2}, {srd(sWS)}, s{sC+s} offen offset:{SL_Q} sc1'); vm.issue('qp')
for G in range(13, 16): kload(G)
vm.wait('qp')
e(f's_mov_b32 s{sCNT}, 0')
lab('L_qchk')
umax_chain(vT1, list(range(vQP, vQP + 32)))
e(f'v_cmp_eq_u32 vcc, -1, v{vT1}')
e(f's_add_u32 s{sCNT}, s{sCNT}, 1')
e(f's_cmp_gt_u32 s{sCNT}, {SPIN}')
e('s_cbranch_scc1 L_qchk_done')
e('s_cbranch_vccz L_qchk_done')
for s in range(8):
    e(f'buffer_load_dwordx4 {v4(vQP+4*s)}, v{vT2}, {srd(sWS)}, s{sC+s} offen offset:{SL_Q} sc1')
e('s_waitcnt vmcnt(0)')
e('s_branch L_qchk')
lab('L_qchk_done')
for step in (4, 2, 1):
    for w in range(step):
        for c in range(4):
            e(f'v_add_f32 v{vQP+4*w+c}, v{vQP+4*w+c}, v{vQP+4*(w+step)+c}')
e(f'v_cvt_pk_bf16_f32 v{vQP}, v{vQP}, v{vQP+1}')
e(f'v_cvt_pk_bf16_f32 v{vQP+1}, v{vQP+2}, v{vQP+3}')
e(f'v_lshlrev_b32 v{vT2}, 3, v{vLANE}')
e(f'v_cmp_gt_u32 vcc, 48, v{vLANE}')
e('s_and_saveexec_b64 s[28:29], vcc')
e(f'ds_write_b64 v{vT2}, {v2(vQP)} offset:{L_QBF}')
e('s_mov_b64 exec, s[28:29]')
lds_inc(C2)
lab('L_kq')
vm = vm_other
lds_spin(C2, 1)
stamp(3)
vQ = 16
vS = 28
e(f'v_and_b32 v{vT0}, 7, v{vLANE}')
e(f'v_lshlrev_b32 v{vT0}, 4, v{vT0}')
for j in range(3):
    e(f'ds_read_b128 {v4(vQ+4*j)}, v{vT0} offset:{L_QBF+128*j}')
e('s_waitcnt lgkmcnt(0)')
for G in range(16):
    vm.wait(f'k{G}')
    e(f'v_mov_b32 v{vS+G}, 0')
    e(f'v_mov_b32 v{vT0}, 0')
    e(f'v_mov_b32 v{vT1}, 0')
    accs = [vS + G, vT0, vT1]
    for d in range(4):
        for j in range(3):
            e(f'v_dot2c_f32_bf16 v{accs[j]}, v{vD+12*G+4*j+d}, v{vQ+4*j+d}')
    nop(2)
    e(f'v_add_f32 v{vT0}, v{vT0}, v{vT1}')
    e(f'v_add_f32 v{vS+G}, v{vS+G}, v{vT0}')
for G in range(16):
    e(f'v_add_f32 v{vS+G}, v{vS+G}, v{vS+G} quad_perm:[1,0,3,2] {DPP}')
for G in range(16):
    e(f'v_add_f32 v{vS+G}, v{vS+G}, v{vS+G} quad_perm:[2,3,0,1] {DPP}')
for G in range(16):
    e(f'v_add_f32 v{vS+G}, v{vS+G}, v{vS+G} row_half_mirror {DPP}')
for G in range(16):
    bf16_round(vS + G, vS + G)
    e(f'v_mul_f32 v{vS+G}, 0x3d93cd3a, v{vS+G}')
    bf16_round(vS + G, vS + G)
stamp(4)
e(f'v_max3_f32 v{vT2}, v{vS}, v{vS+1}, v{vS+2}')
for G in range(3, 15, 2): e(f'v_max3_f32 v{vT2}, v{vT2}, v{vS+G}, v{vS+G+1}')
e(f'v_max_f32 v{vT2}, v{vT2}, v{vS+15}')
nop(1)
e(f'v_max_f32 v{vT2}, v{vT2}, v{vT2} row_ror:8 {DPP}')
allreduce_rows('v_max_f32', vT2, vT1)
e(f's_lshl_b32 s{sT0}, s{sWAVE}, 2')
e(f'v_mov_b32 v{vT3}, s{sT0}')
e(f'ds_write_b32 v{vT3}, v{vT2} offset:{L_WMAX}')
lds_inc(C3)
lds_spin(C3, 4, sleep=False)
e(f'ds_read_b128 {v4(44)}, v{vT0} offset:{L_WMAX}')
e('s_waitcnt lgkmcnt(0)')
e(f'v_max3_f32 v{vM}, v44, v45, v46')
e(f'v_max_f32 v{vM}, v{vM}, v47')
e(f'v_mov_b32 v{vT2}, 0')
for G in range(16):
    e(f'v_sub_f32 v{vS+G}, v{vS+G}, v{vM}')
    e(f'v_mul_f32 v{vS+G}, 0x3fb8aa3b, v{vS+G}')
    e(f'v_exp_f32 v{vS+G}, v{vS+G}')
    nop(0)
    e(f'v_add_f32 v{vT2}, v{vT2}, v{vS+G}')
    e(f'v_cvt_pk_bf16_f32 v{vS+G}, v{vS+G}, 0')
e(f'v_lshrrev_b32 v{vT4}, 3, v{vLANE}')
e(f'v_lshlrev_b32 v{vT4}, 6, v{vT4}')
e(f's_lshl_b32 s{sT1}, s{sWAVE}, 9')
e(f'v_add_u32 v{vT4}, s{sT1}, v{vT4}')
e(f'v_and_b32 v{vT1}, 7, v{vLANE}')
e(f'v_cmp_eq_u32 vcc, 0, v{vT1}')
e('s_and_saveexec_b64 s[28:29], vcc')
for i in range(4): e(f'ds_write_b128 v{vT4}, {v4(vS+4*i)} offset:{L_P+16*i}')
e('s_mov_b64 exec, s[28:29]')
e('s_waitcnt lgkmcnt(0)')
e(f'v_mov_b32 v{vT1}, 1')
e(f'ds_write_b32 v{vT3}, v{vT1} offset:{C4}')
nop(1)
e(f'v_add_f32 v{vT2}, v{vT2}, v{vT2} row_ror:8 {DPP}')
allreduce_rows('v_add_f32', vT2, vT1)
e(f'ds_write_b32 v{vT3}, v{vT2} offset:{L_WSUM}')
lds_inc(C5)
e(f's_cmp_eq_u32 s{sWAVE}, 0')
e('s_cbranch_scc1 L_coef')
e(f's_cmp_eq_u32 s{sWAVE}, 2')
e('s_cbranch_scc1 L_ffn')
e(f's_cmp_eq_u32 s{sWAVE}, 3')
e('s_cbranch_scc1 L_kwo')
lds_spin(C5, 4, sleep=False)
e(f'ds_read_b128 {v4(44)}, v{vT0} offset:{L_WSUM}')
e('s_waitcnt lgkmcnt(0)')
e('v_add_f32 v44, v44, v45')
e('v_add_f32 v46, v46, v47')
e('v_add_f32 v45, v44, v46')
e(f'v_min_u32 v44, -2, v{vM}')
e('v_min_u32 v45, -2, v45')
e('s_mov_b64 exec, 1')
e(f'buffer_store_dwordx2 v[44:45], v{vT0}, {srd(sWS)}, s{sSLOT} offen offset:{SL_ML} sc1')
e('s_mov_b64 exec, -1')
e('s_branch L_kwo')
lab('L_coef')
vML = 44
e(f'v_and_b32 v{vT2}, 7, v{vLANE}')
e(f'v_mul_u32_u24 v{vT2}, {WS_SLOT}, v{vT2}')
e(f's_mov_b32 s{sCNT}, 0')
lab('L_pml')
e(f'buffer_load_dwordx2 {v2(vML)}, v{vT2}, {srd(sWS)}, s{sGRP} offen offset:{SL_ML} sc1')
e('s_waitcnt vmcnt(0)')
e(f'v_max_u32 v{vT1}, v{vML}, v{vML+1}')
poll_tail('L_pml', vT1)
e(f'v_mov_b32 v{vT1}, v{vML}')
allreduce8('v_max_f32', vT1)
e(f'v_sub_f32 v{vT1}, v{vML}, v{vT1}')
e(f'v_mul_f32 v{vT1}, 0x3fb8aa3b, v{vT1}')
e(f'v_exp_f32 v{vT1}, v{vT1}')
nop(0)
e(f'v_mul_f32 v{vT2}, v{vT1}, v{vML+1}')
allreduce8('v_add_f32', vT2)
e(f'v_rcp_f32 v{vT2}, v{vT2}')
nop(0)
e(f'v_mul_f32 v{vT1}, v{vT1}, v{vT2}')
e(f'v_and_b32 v{vT2}, 7, v{vLANE}')
e(f'v_lshlrev_b32 v{vT2}, 2, v{vT2}')
e(f'ds_write_b32 v{vT2}, v{vT1} offset:{L_COEF}')
e('s_branch L_kwo')
lab('L_ffn')
vG = 44
e(f'v_lshlrev_b32 v{vT2}, 2, v{vLANE}')
e(f'v_mov_b32 v{vT1}, {OOB}')
e(f'v_cmp_gt_u32 vcc, 48, v{vLANE}')
nop(1)
e(f'v_cndmask_b32 v{vT2}, v{vT1}, v{vT2}, vcc')
e(f's_mov_b32 s{sCNT}, 0')
for s in range(8): e(f's_add_u32 s{sC+s}, s{sGRP}, {s*WS_SLOT}')
lab('L_pff')
for s in range(8):
    e(f'buffer_load_dword v{vG+s}, v{vT2}, {srd(sWS)}, s{sC+s} offen offset:{SL_G} sc1')
    e(f'buffer_load_dword v{vG+8+s}, v{vT2}, {srd(sWS)}, s{sC+s} offen offset:{SL_U} sc1')
e('s_waitcnt vmcnt(0)')
umax_chain(vT1, list(range(vG, vG + 16)))
poll_tail('L_pff', vT1)
for s in range(1, 8):
    e(f'v_add_f32 v{vG}, v{vG}, v{vG+s}')
    e(f'v_add_f32 v{vG+8}, v{vG+8}, v{vG+8+s}')
bf16_round(vG, vG)
bf16_round(vG + 8, vG + 8)
e(f'v_mul_f32 v{vT1}, 0xbfb8aa3b, v{vG}')
e(f'v_exp_f32 v{vT1}, v{vT1}')
nop(0)
e(f'v_add_f32 v{vT1}, 1.0, v{vT1}')
e(f'v_rcp_f32 v{vT1}, v{vT1}')
nop(0)
e(f'v_mul_f32 v{vT1}, v{vG}, v{vT1}')
bf16_round(vT1, vT1)
e(f'v_mul_f32 v{vT1}, v{vT1}, v{vG+8}')
e(f'v_cvt_pk_bf16_f32 v{vT1}, v{vT1}, 0')
e(f'v_lshlrev_b32 v{vT2}, 2, v{vLANE}')
e(f'ds_write_b32 v{vT2}, v{vT1} offset:{L_U+768}')
lab('L_kwo')
wo_setup()
if not NODEFER: e('s_setprio 0')
vWO = vD
wo_issue(vm, vWO)
e('s_setprio 3')
e('s_waitcnt lgkmcnt(0)')
e('s_barrier')
stamp(5)
e('s_branch L_stagec')

lab('L_vwave')
vm = VM()
e('s_setprio 1')
vACC = 16
vP = 40
e('s_waitcnt lgkmcnt(0)')
e('s_barrier')
stamp(1)
for G in range(16):
    for j in range(3):
        e(f'buffer_load_dwordx4 {v4(vD+12*G+4*j)}, v{vOFF}, {srd(sV)}, s{sKB} offen offset:{128*j} nt'); vm.issue(f'v{G}')
    e(f's_add_u32 s{sKB}, s{sKB}, 3072')
stamp(2)
for i in range(24): e(f'v_mov_b32 v{vACC+i}, 0')
e(f'v_and_b32 v{vRA}, 7, v{vLANE}')
e(f'v_lshlrev_b32 v{vRA}, 5, v{vRA}')
e(f'v_lshrrev_b32 v{vT6}, 5, v{vLANE}')
e(f'v_lshlrev_b32 v{vT6}, 4, v{vT6}')
e(f'v_add_u32 v{vRA}, v{vRA}, v{vT6}')
e(f'v_bfe_u32 v{vT6}, v{vLANE}, 4, 1')
e(f'v_lshlrev_b32 v{vT6}, 3, v{vT6}')
e(f'v_add_u32 v{vRA}, v{vRA}, v{vT6}')
e(f's_sub_u32 s{sT4}, s{sWAVE}, 4')
e(f's_mul_i32 s{sT0}, s{sT4}, 768')
e(f'v_add_u32 v{vRA}, s{sT0}, v{vRA}')
wo_setup()
e(f's_cmp_eq_u32 s{sWAVE}, 4')
e(f's_cselect_b32 s{sWOB}, s{sWOB}, {OOB}')
e(f's_cselect_b32 s{sW2B}, s{sW2B}, {OOB}')
e(f's_cselect_b32 s{sT0}, s{sT0}, {OOB}')
e(f's_cselect_b32 s{sT1}, s{sT1}, {OOB}')
e(f's_lshl_b32 s{sT3}, s{sT4}, 2')
e(f'v_mov_b32 v{vT0}, s{sT3}')
e(f's_mov_b32 s{sCNT}, 0')
lab('L_pw')
e(f'ds_read_b32 v{vT1}, v{vT0} offset:{C4}')
e('s_waitcnt lgkmcnt(0)')
e(f'v_readfirstlane_b32 s{sT5}, v{vT1}')
e(f's_add_u32 s{sCNT}, s{sCNT}, 1')
e(f's_cmp_ge_u32 s{sT5}, 1')
e('s_cbranch_scc1 L_pwd')
e(f's_cmp_gt_u32 s{sCNT}, {SPIN*16}')
e('s_cbranch_scc1 L_pwd')
e('s_sleep 1')
e('s_branch L_pw')
lab('L_pwd')
stamp(3)
e(f'v_lshrrev_b32 v{vT2}, 3, v{vLANE}')
e(f'v_lshlrev_b32 v{vT2}, 6, v{vT2}')
e(f's_lshl_b32 s{sT3}, s{sT4}, 9')
e(f'v_add_u32 v{vT2}, s{sT3}, v{vT2}')
for i in range(4): e(f'ds_read_b128 {v4(vP+4*i)}, v{vT2} offset:{L_P+16*i}')
e('s_waitcnt lgkmcnt(0)')
e('s_setprio 3')
for G in range(16):
    vm.wait(f'v{G}')
    e(f'v_lshlrev_b32 v{vT0+(G&1)}, 16, v{vP+G}')
    for j in range(3):
        axpy(vACC + 8 * j, vD + 12 * G + 4 * j, vP + G, vT0 + (G & 1))
    if G == 2:
        wo_issue(vm, vD)
stamp(4)
reduce_r8(vACC, 3)
for j in range(3):
    e(f'ds_write_b64 v{vRA}, {v2(vACC+8*j)} offset:{L_RED+256*j}')
e('s_waitcnt lgkmcnt(0)')
e('s_barrier')
stamp(5)
e(f's_cmp_eq_u32 s{sWAVE}, 4')
e('s_cbranch_scc1 L_stagec')
e(f's_cmp_eq_u32 s{sWAVE}, 6')
e('s_cbranch_scc1 L_merge')
e(f's_cmp_eq_u32 s{sWAVE}, 7')
e('s_cbranch_scc1 L_final')
vTM = 128
e(f'v_lshlrev_b32 v{vT0}, 4, v{vLANE}')
e(f'v_cmp_gt_u32 vcc, 48, v{vLANE}')
e('s_and_saveexec_b64 s[28:29], vcc')
for w in range(4):
    e(f'ds_read_b128 {v4(vTM+4*w)}, v{vT0} offset:{L_RED+768*w}')
e('s_waitcnt lgkmcnt(0)')
for c in range(4):
    e(f'v_add_f32 v{vTM+c}, v{vTM+c}, v{vTM+4+c}')
    e(f'v_add_f32 v{vTM+8+c}, v{vTM+8+c}, v{vTM+12+c}')
for c in range(4): e(f'v_add_f32 v{vTM+c}, v{vTM+c}, v{vTM+8+c}')
for c in range(4): e(f'v_min_u32 v{vTM+c}, -2, v{vTM+c}')
e(f'buffer_store_dwordx4 {v4(vTM)}, v{vT0}, {srd(sWS)}, s{sSLOT} offen offset:{SL_O} sc1')
stamp(6)
stamp_out()
lab('L_merge')
vO = 128
vCF = 164
e(f'v_mov_b32 v{vT1}, 0')
e(f'ds_read_b128 {v4(vCF)}, v{vT1} offset:{L_COEF}')
e(f'ds_read_b128 {v4(vCF+4)}, v{vT1} offset:{L_COEF+16}')
e(f'v_lshlrev_b32 v{vT3}, 4, v{vLANE}')
e(f'v_mov_b32 v{vT1}, {OOB}')
e(f'v_cmp_gt_u32 vcc, 48, v{vLANE}')
nop(1)
e(f'v_cndmask_b32 v{vT0}, v{vT1}, v{vT3}, vcc')
e(f's_mov_b32 s{sCNT}, 0')
for s in range(8): e(f's_add_u32 s{sC+s}, s{sGRP}, {s*WS_SLOT}')
lab('L_po')
for s in range(8):
    e(f'buffer_load_dwordx4 {v4(vO+4*s)}, v{vT0}, {srd(sWS)}, s{sC+s} offen offset:{SL_O} sc1')
e('s_waitcnt vmcnt(0)')
umax_chain(vT1, list(range(vO, vO + 32)))
poll_tail('L_po', vT1)
e('s_waitcnt lgkmcnt(0)')
for c in range(4): e(f'v_mul_f32 v{vO+c}, v{vCF}, v{vO+c}')
for s in range(1, 8):
    for c in range(4): e(f'v_fmac_f32 v{vO+c}, v{vCF+s}, v{vO+4*s+c}')
for c in range(4): e(f'v_cvt_pk_bf16_f32 v{vO+c}, v{vO+c}, 0')
e(f'v_cmp_gt_u32 vcc, 48, v{vLANE}')
e('s_and_saveexec_b64 s[28:29], vcc')
e(f'ds_write_b128 v{vT3}, {v4(vO)} offset:{L_U}')
e('s_waitcnt lgkmcnt(0)')
e('s_barrier')
stamp(6)
stamp_out()
lab('L_stagec')
vA = 16
vU = 32
for i in range(16): e(f'v_mov_b32 v{vA+i}, 0')
e(f'v_lshrrev_b32 v{vT0}, 1, v{vLANE}')
e(f'v_mul_u32_u24 v{vT1}, 24, v{vT0}')
e(f'v_lshlrev_b32 v{vT0}, 2, v{vT0}')
e(f'ds_read_b32 v{vU+6}, v{vT0} offset:{L_U+768}')
e(f'ds_read_b32 v{vU+7}, v{vT0} offset:{L_U+768+128}')
e(f'v_and_b32 v{vT2}, 1, v{vLANE}')
e(f'v_lshlrev_b32 v{vT2}, 6, v{vT2}')
e(f'v_lshrrev_b32 v{vT3}, 5, v{vLANE}')
e(f'v_lshlrev_b32 v{vT3}, 5, v{vT3}')
e(f'v_add_u32 v{vT2}, v{vT2}, v{vT3}')
e(f'v_bfe_u32 v{vT3}, v{vLANE}, 4, 1')
e(f'v_lshlrev_b32 v{vT3}, 4, v{vT3}')
e(f'v_add_u32 v{vT2}, v{vT2}, v{vT3}')
e(f's_mul_i32 s{sT0}, s{sSPLIT}, 5')
e(f's_add_u32 s{sT0}, s{sT0}, s{sWAVE}')
e(f's_lshl_b32 s{sT0}, s{sT0}, 12')
e(f's_lshl_b32 s{sT1}, s{sHEAD}, 7')
e(f's_add_u32 s{sT0}, s{sT0}, s{sT1}')
e(f's_add_u32 s{sT0}, s{sT0}, {WS_Y}')
e(f'v_and_b32 v{vT3}, 14, v{vLANE}')
e(f'v_cmp_eq_u32 s[30:31], 0, v{vT3}')
e('s_waitcnt vmcnt(6) lgkmcnt(0)')
for i in range(6, 8): e(f'v_lshlrev_b32 v{vU+8+i}, 16, v{vU+i}')
for i in range(6, 8): axpy(vA + 8, vWO + 4 * i, vU + i, vU + 8 + i)
def red32(a):
    nop(2)
    for ee in range(4): e(f'v_permlane32_swap_b32 v{a+ee}, v{a+ee+4}')
    nop(1)
    for ee in range(4): e(f'v_add_f32 v{a+ee}, v{a+ee}, v{a+ee+4}')
    nop(1)
    for ee in range(2): e(f'v_permlane16_swap_b32 v{a+ee}, v{a+ee+2}')
    nop(1)
    for ee in range(2): e(f'v_add_f32 v{a+ee}, v{a+ee}, v{a+ee+2}')
    for dpp in ('row_ror:8', 'row_ror:4', 'quad_perm:[2,3,0,1]'):
        nop(1)
        for ee in range(2): e(f'v_add_f32 v{a+ee}, v{a+ee}, v{a+ee} {dpp} {DPP}')
red32(vA + 8)
e(f'v_min_u32 v{vA+10}, -2, v{vA+8}')
e(f'v_min_u32 v{vA+11}, -2, v{vA+9}')
e('s_waitcnt vmcnt(0)')
e('s_barrier')
stamp(6)
for i in range(3):
    e(f'ds_read_b64 {v2(vU+2*i)}, v{vT1} offset:{L_U+8*i}')
e('s_waitcnt lgkmcnt(0)')
for i in range(6): e(f'v_lshlrev_b32 v{vU+8+i}, 16, v{vU+i}')
for i in range(6): axpy(vA, vWO + 4 * i, vU + i, vU + 8 + i)
red32(vA)
e(f'v_min_u32 v{vA+8}, -2, v{vA}')
e(f'v_min_u32 v{vA+9}, -2, v{vA+1}')
e('s_mov_b64 exec, s[30:31]')
e(f'buffer_store_dwordx4 {v4(vA+8)}, v{vT2}, {srd(sWS)}, s{sT0} offen sc1')
stamp_out()
lab('L_final')
e('s_cmp_ge_u32 s2, 40')
e('s_cbranch_scc1 L_end2')
vY = 128
e(f'v_lshlrev_b32 v{vT0}, 4, v{vLANE}')
e(f's_lshl_b32 s{sT0}, s2, 12')
e(f's_add_u32 s{sT0}, s{sT0}, {WS_Y}')
e(f'v_and_b32 v{vT2}, 7, v{vLANE}')
e(f'v_lshlrev_b32 v{vT2}, 2, v{vT2}')
e(f'v_lshrrev_b32 v{vT3}, 5, v{vLANE}')
e(f'v_lshlrev_b32 v{vT3}, 1, v{vT3}')
e(f'v_add_u32 v{vT2}, v{vT2}, v{vT3}')
e(f's_lshl_b32 s{sT1}, s2, 5')
e(f'buffer_load_ushort v{vT4}, v{vT2}, {srd(sX)}, s{sT1} offen')
e(f'v_and_b32 v{vT3}, 24, v{vLANE}')
e(f'v_cmp_eq_u32 s[30:31], 0, v{vT3}')
e('s_barrier')
stamp(6)
e(f's_mov_b32 s{sCNT}, 0')
lab('L_py')
for i in range(4):
    e(f'buffer_load_dwordx4 {v4(vY+4*i)}, v{vT0}, {srd(sWS)}, s{sT0} offen offset:{1024*i} sc1')
e('s_waitcnt vmcnt(0)')
umax_chain(vT1, list(range(vY, vY + 16)))
poll_tail('L_py', vT1)
for c in range(4):
    e(f'v_add_f32 v{vY+c}, v{vY+c}, v{vY+4+c}')
    e(f'v_add_f32 v{vY+8+c}, v{vY+8+c}, v{vY+12+c}')
for c in range(4): e(f'v_add_f32 v{vY+c}, v{vY+c}, v{vY+8+c}')
nop(1)
e(f'v_permlane32_swap_b32 v{vY}, v{vY+1}')
e(f'v_permlane32_swap_b32 v{vY+2}, v{vY+3}')
nop(1)
e(f'v_add_f32 v{vY}, v{vY}, v{vY+1}')
e(f'v_add_f32 v{vY+2}, v{vY+2}, v{vY+3}')
nop(1)
e(f'v_add_f32 v{vY}, v{vY}, v{vY} row_ror:8 {DPP}')
e(f'v_add_f32 v{vY+2}, v{vY+2}, v{vY+2} row_ror:8 {DPP}')
nop(1)
e(f'v_mov_b32 v{vY+1}, v{vY}')
e(f'v_mov_b32 v{vY+3}, v{vY+2}')
nop(1)
e(f'v_permlane16_swap_b32 v{vY+1}, v{vY}')
e(f'v_permlane16_swap_b32 v{vY+3}, v{vY+2}')
nop(1)
e(f'v_add_f32 v{vY}, v{vY}, v{vY+1}')
e(f'v_add_f32 v{vY+2}, v{vY+2}, v{vY+3}')
bf16_round(vY, vY)
bf16_round(vY + 2, vY + 2)
e(f'v_lshlrev_b32 v{vT4}, 16, v{vT4}')
e(f'v_add_f32 v{vY}, v{vT4}, v{vY}')
bf16_round(vY, vY)
e(f'v_add_f32 v{vY}, v{vY}, v{vY+2}')
e(f'v_cvt_pk_bf16_f32 v{vY}, v{vY}, v{vY}')
e('s_mov_b64 exec, s[30:31]')
e(f'buffer_store_short v{vY}, v{vT2}, {srd(sOUT)}, s{sT1} offen')
lab('L_end2')
if STAMPS:
    e('s_mov_b64 exec, -1')
    lab('L_stamp_out')
    e(f's_memrealtime s[{sST+14}:{sST+15}]')
    e('s_waitcnt lgkmcnt(0)')
    for i in range(8): e(f'v_mov_b32 v{200+i}, s{sST+2*i}')
    e(f's_lshl_b32 s{sT0}, s2, 3')
    e(f's_add_u32 s{sT0}, s{sT0}, s{sWAVE}')
    e(f's_lshl_b32 s{sT0}, s{sT0}, 5')
    e(f's_add_u32 s{sT0}, s{sT0}, {WS_STAMP}')
    e(f'v_mov_b32 v{vT0}, 0')
    e('s_mov_b64 exec, 1')
    e(f'buffer_store_dwordx4 {v4(200)}, v{vT0}, {srd(sWS)}, s{sT0} offen')
    e(f'buffer_store_dwordx4 {v4(204)}, v{vT0}, {srd(sWS)}, s{sT0} offen offset:16')
lab('L_end')
e('s_endpgm')
L.append('.section .rodata,"a"')
L.append('.p2align 6')
L.append(f'.amdhsa_kernel {NAME}')
L.append('  .amdhsa_next_free_vgpr 256')
L.append('  .amdhsa_next_free_sgpr 102')
L.append('  .amdhsa_accum_offset 256')
L.append('  .amdhsa_group_segment_fixed_size 0')
L.append('  .amdhsa_kernarg_size 96')
L.append('  .amdhsa_user_sgpr_count 2')
L.append('  .amdhsa_user_sgpr_kernarg_segment_ptr 1')
L.append('  .amdhsa_system_sgpr_workgroup_id_x 1')
L.append('.end_amdhsa_kernel')
open(sys.argv[1], 'w').write('\n'.join(L) + '\n')
```

```python
import sys
DBG = '--dbg' in sys.argv
STAMPS = '--stamps' in sys.argv or DBG
NODEFER = '--nodefer' in sys.argv
NAME = 'parallel_sum__sliding_block_cached__glu_gated_swiglu__decode_kernel'

L = []
def e(s): L.append('    ' + s)
def lab(s): L.append(s + ':')
def cmt(s): L.append('    ; ' + s)

HEAD_STRIDE = 32768 * 384
WIN = 28672 * 384
WS_SLOT = 2048
SL_O, SL_G, SL_U, SL_ML, SL_Q = 0, 768, 960, 1152, 1280
WS_Y = 256 * WS_SLOT
WS_Y_BYTES = 40 * 32 * 128
WS_USED = WS_Y + WS_Y_BYTES
WS_STAMP = 1 << 20
OOB = 0x40000000
SPIN = 0x40000

sX, sK, sV, sWQ, sWO, sW1, sW3, sW2, sOUT, sDBG, sWS = [40 + 4 * i for i in range(11)]
def srd(b): return f's[{b}:{b+3}]'
sHEAD, sSPLIT, sWAVE = 3, 4, 5
sT0, sT1, sT2, sT3 = 6, 7, 8, 9
sKB = 10
sWQB = 11
sSLOT = 12
sGRP = 13
sWOB = 14
sW2B = 15
sCNT = 16
sFB = 17
sT4 = 18
sT5 = 19
sC = 20
sST = 84

L_RED = 0
L_FRED = 3072
L_QBF = 4608
L_P = 5120
L_WMAX = 7168
L_WSUM = 7184
L_CNT = 7200
C1, C2, C3, C5, C4 = L_CNT, L_CNT + 4, L_CNT + 8, L_CNT + 12, L_CNT + 16
L_COEF = 7232
L_U = 7296 + 128 - 128
L_U = 7424
LDS_BYTES = 8448

vTID = 0
vOFF = 1
vT0, vT1, vT2, vT3 = 2, 3, 4, 5
vLANE = 6
vRA = 7
vM = 8
vT4, vT5, vT6, vT7 = 9, 10, 11, 12
vX = 13
vD = 64

class VM:
    def __init__(self): self.q = []
    def issue(self, tag): self.q.append(tag)
    def wait(self, tag):
        if tag not in self.q: return
        idx = max(i for i, t in enumerate(self.q) if t == tag)
        n = len(self.q) - 1 - idx
        assert n <= 63, n
        e(f's_waitcnt vmcnt({n})')
        self.q = self.q[idx + 1:]
    def drain(self):
        e('s_waitcnt vmcnt(0)'); self.q = []

def stamp(i):
    if STAMPS: e(f's_memrealtime s[{sST+2*i}:{sST+2*i+1}]')

def stamp_out():
    if STAMPS:
        e('s_mov_b64 exec, -1')
        e('s_branch L_stamp_out')
    else:
        e('s_endpgm')

def nop(n): e(f's_nop {n}')
def v4(b): return f'v[{b}:{b+3}]'
def v2(b): return f'v[{b}:{b+1}]'
DPP = 'row_mask:0xf bank_mask:0xf'

def bf16_round(dst, src):
    e(f'v_cvt_pk_bf16_f32 v{dst}, v{src}, v{src}')
    e(f'v_and_b32 v{dst}, 0xffff0000, v{dst}')

def allreduce_rows(op, v, tmp):
    nop(1)
    e(f'v_mov_b32 v{tmp}, v{v}')
    nop(1)
    e(f'v_permlane16_swap_b32 v{tmp}, v{v}')
    nop(1)
    e(f'{op} v{v}, v{tmp}, v{v}')
    nop(1)
    e(f'v_mov_b32 v{tmp}, v{v}')
    nop(1)
    e(f'v_permlane32_swap_b32 v{tmp}, v{v}')
    nop(1)
    e(f'{op} v{v}, v{tmp}, v{v}')

def allreduce8(op, v):
    nop(1)
    e(f'{op} v{v}, v{v}, v{v} quad_perm:[1,0,3,2] {DPP}')
    nop(1)
    e(f'{op} v{v}, v{v}, v{v} quad_perm:[2,3,0,1] {DPP}')
    nop(1)
    e(f'{op} v{v}, v{v}, v{v} row_half_mirror {DPP}')

def allreduce64(op, v, tmp):
    allreduce8(op, v)
    nop(1)
    e(f'{op} v{v}, v{v}, v{v} row_mirror {DPP}')
    allreduce_rows(op, v, tmp)

def reduce_r8(acc, nj):
    nop(2)
    for j in range(nj):
        for ee in range(4): e(f'v_permlane32_swap_b32 v{acc+8*j+ee}, v{acc+8*j+ee+4}')
    nop(1)
    for j in range(nj):
        for ee in range(4): e(f'v_add_f32 v{acc+8*j+ee}, v{acc+8*j+ee}, v{acc+8*j+ee+4}')
    nop(1)
    for j in range(nj):
        for ee in range(2): e(f'v_permlane16_swap_b32 v{acc+8*j+ee}, v{acc+8*j+ee+2}')
    nop(1)
    for j in range(nj):
        for ee in range(2): e(f'v_add_f32 v{acc+8*j+ee}, v{acc+8*j+ee}, v{acc+8*j+ee+2}')
    nop(1)
    for j in range(nj):
        for ee in range(2): e(f'v_add_f32 v{acc+8*j+ee}, v{acc+8*j+ee}, v{acc+8*j+ee} row_ror:8 {DPP}')

def axpy(acc, data, lo, hi):
    for d in range(4):
        e(f'v_dot2c_f32_bf16 v{acc+2*d}, v{data+d}, v{lo}')
        e(f'v_dot2c_f32_bf16 v{acc+2*d+1}, v{data+d}, v{hi}')

uid = [0]
def lds_spin(addr, target, sleep=True):
    uid[0] += 1
    n = uid[0]
    e(f'v_mov_b32 v{vT0}, 0')
    e(f's_mov_b32 s{sCNT}, 0')
    lab(f'L_sp{n}')
    e(f'ds_read_b32 v{vT1}, v{vT0} offset:{addr}')
    e('s_waitcnt lgkmcnt(0)')
    e(f'v_readfirstlane_b32 s{sT5}, v{vT1}')
    e(f's_add_u32 s{sCNT}, s{sCNT}, 1')
    e(f's_cmp_ge_u32 s{sT5}, {target}')
    e(f's_cbranch_scc1 L_spd{n}')
    e(f's_cmp_gt_u32 s{sCNT}, {SPIN*16}')
    e(f's_cbranch_scc1 L_spd{n}')
    if sleep: e('s_sleep 1')
    e(f's_branch L_sp{n}')
    lab(f'L_spd{n}')

def lds_inc(addr):
    e('s_waitcnt lgkmcnt(0)')
    e(f'v_mov_b32 v{vT0}, 0')
    e(f'v_mov_b32 v{vT1}, 1')
    e('s_mov_b64 exec, 1')
    e(f'ds_add_u32 v{vT0}, v{vT1} offset:{addr}')
    e('s_mov_b64 exec, -1')

def poll_tail(name, chk):
    e(f'v_cmp_eq_u32 vcc, -1, v{chk}')
    e(f's_add_u32 s{sCNT}, s{sCNT}, 1')
    e(f's_cmp_gt_u32 s{sCNT}, {SPIN}')
    e(f's_cbranch_scc1 {name}_done')
    e(f's_cbranch_vccnz {name}')
    lab(f'{name}_done')

def umax_chain(dst, regs):
    e(f'v_max_u32 v{dst}, v{regs[0]}, v{regs[1]}')
    i = 2
    while i + 1 < len(regs):
        e(f'v_max3_u32 v{dst}, v{dst}, v{regs[i]}, v{regs[i+1]}'); i += 2
    if i < len(regs): e(f'v_max_u32 v{dst}, v{dst}, v{regs[i]}')

def wo_setup():
    e(f'v_lshrrev_b32 v{vT0}, 1, v{vLANE}')
    e(f'v_and_b32 v{vT1}, 1, v{vLANE}')
    e(f'v_lshlrev_b32 v{vT1}, 4, v{vT1}')
    e(f'v_mul_u32_u24 v{vT4}, {6*1280}, v{vT0}')
    e(f'v_add_u32 v{vT4}, v{vT4}, v{vT1}')
    e(f'v_mul_u32_u24 v{vT5}, 1280, v{vT0}')
    e(f'v_add_u32 v{vT5}, v{vT5}, v{vT1}')
    e(f'v_mov_b32 v{vT2}, {OOB}')
    e(f'v_cmp_gt_u32 vcc, 32, v{vLANE}')
    nop(1)
    e(f'v_cndmask_b32 v{vT6}, v{vT2}, v{vT5}, vcc')
    e(f's_mul_i32 s{sT0}, s{sSPLIT}, 160')
    e(f's_lshl_b32 s{sT1}, s{sWAVE}, 5')
    e(f's_add_u32 s{sT0}, s{sT0}, s{sT1}')
    e(f's_mul_i32 s{sWOB}, s{sHEAD}, {192*1280}')
    e(f's_add_u32 s{sWOB}, s{sWOB}, s{sT0}')
    e(f's_mul_i32 s{sW2B}, s{sHEAD}, {48*1280}')
    e(f's_add_u32 s{sW2B}, s{sW2B}, s{sT0}')
    e(f's_add_u32 s{sT1}, s{sW2B}, {32*1280}')
    e(f's_add_u32 s{sT0}, s{sWOB}, {3*1280}')

def wo_issue(vm, base):
    e(f'buffer_load_dwordx4 {v4(base+24)}, v{vT5}, {srd(sW2)}, s{sW2B} offen nt'); vm.issue('wo')
    e(f'buffer_load_dwordx4 {v4(base+28)}, v{vT6}, {srd(sW2)}, s{sT1} offen nt'); vm.issue('wo')
    for i in range(6):
        so = sWOB if i < 3 else sT0
        e(f'buffer_load_dwordx4 {v4(base+4*i)}, v{vT4}, {srd(sWO)}, s{so} offen offset:{1280*(i%3)} nt'); vm.issue('wo')

hdr = open('parallel_sum__sliding_block_cached__glu_gated_swiglu__decode.s.ref').read().split('\n')
for line in hdr:
    if line.startswith('; @launch'):
        L.append(f'; @launch grid=(256,1,1) block=(512,1,1) lds={LDS_BYTES}')
    elif line.startswith(';'):
        L.append(line)
    else:
        break
L.append('.amdgcn_target "amdgcn-amd-amdhsa--gfx950"')
L.append('.text')
L.append(f'.globl {NAME}')
L.append('.p2align 8')
L.append(f'.type {NAME},@function')
lab(NAME)
stamp(0)
e('s_cmp_ge_u32 s2, 256')
e('s_cbranch_scc1 L_end')
for (sr, off) in [(sX, 0), (sWQ, 24), (sK, 8), (sV, 16), (sW1, 48), (sW3, 56), (sWS, 88), (sDBG, 80), (sWO, 32), (sW2, 64), (sOUT, 72)]:
    e(f's_load_dwordx2 s[{sr}:{sr+1}], s[0:1], {off}')
e(f'v_lshrrev_b32 v{vT0}, 6, v0')
e(f'v_and_b32 v{vLANE}, 63, v0')
e(f'v_readfirstlane_b32 s{sWAVE}, v{vT0}')
for (sr, nb) in [(sX, 1280), (sWQ, 7864320), (sK, 402653184), (sWS, (WS_STAMP + 65536*4) if STAMPS else WS_USED), (sV, 402653184), (sW1, 1966080),
                 (sW3, 1966080), (sDBG, 256), (sWO, 7864320), (sW2, 1966080), (sOUT, 1280)]:
    e(f's_mov_b32 s{sr+2}, {nb}')
    e(f's_mov_b32 s{sr+3}, 0x00020000')
e(f's_and_b32 s{sHEAD}, s2, 7')
e(f's_lshr_b32 s{sSPLIT}, s2, 3')
e(f's_and_b32 s{sT0}, s{sSPLIT}, 3')
e(f's_lshl_b32 s{sHEAD}, s{sHEAD}, 2')
e(f's_add_u32 s{sHEAD}, s{sHEAD}, s{sT0}')
e(f's_lshr_b32 s{sSPLIT}, s{sSPLIT}, 2')
e(f'v_lshrrev_b32 v{vT0}, 3, v{vLANE}')
e(f'v_and_b32 v{vT1}, 7, v{vLANE}')
e(f'v_lshlrev_b32 v{vT2}, 4, v{vT1}')
e(f'v_mul_u32_u24 v{vOFF}, 384, v{vT0}')
e(f'v_add_u32 v{vOFF}, v{vOFF}, v{vT2}')
e(f's_mul_i32 s{sKB}, s{sHEAD}, {HEAD_STRIDE}')
e(f's_mul_i32 s{sT0}, s{sSPLIT}, {512*384}')
e(f's_add_u32 s{sKB}, s{sKB}, s{sT0}')
e(f's_and_b32 s{sT1}, s{sWAVE}, 3')
e(f's_mul_i32 s{sT0}, s{sT1}, {128*384}')
e(f's_add_u32 s{sKB}, s{sKB}, s{sT0}')
e(f's_add_u32 s{sKB}, s{sKB}, {WIN}')
e(f's_lshl_b32 s{sT0}, s{sHEAD}, 3')
e(f's_mul_i32 s{sGRP}, s{sT0}, {WS_SLOT}')
e(f's_mul_i32 s{sT0}, s{sSPLIT}, {WS_SLOT}')
e(f's_add_u32 s{sSLOT}, s{sGRP}, s{sT0}')
e(f's_cmp_ge_u32 s{sWAVE}, 4')
e('s_cbranch_scc1 L_vwave')

vm = VM()
e('s_setprio 2')
vWQ = vD + 12 * 11
vAC = vD + 12 * 7
vFA = vAC + 24
vXS = 16
e(f's_mul_i32 s{sT0}, s{sSPLIT}, 80')
e(f's_mul_i32 s{sT1}, s{sWAVE}, 20')
e(f's_add_u32 s{sT0}, s{sT0}, s{sT1}')
e(f's_lshl_b32 s{sT3}, s{sT0}, 1')
e(f's_mul_i32 s{sWQB}, s{sT0}, 12288')
e(f's_mul_i32 s{sT1}, s{sHEAD}, 384')
e(f's_add_u32 s{sWQB}, s{sWQB}, s{sT1}')
e(f's_mul_i32 s{sFB}, s{sT0}, 3072')
e(f's_mul_i32 s{sT1}, s{sHEAD}, 96')
e(f's_add_u32 s{sFB}, s{sFB}, s{sT1}')
e(f'v_mul_u32_u24 v{vT3}, 20, v{vLANE}')
e(f'v_lshlrev_b32 v{vT4}, 1, v{vT0}')
e(f'v_mul_u32_u24 v{vT5}, 12288, v{vT0}')
e(f'v_add_u32 v{vT5}, v{vT5}, v{vT2}')
e(f'v_mul_u32_u24 v{vT6}, 3072, v{vT0}')
e(f'v_add_u32 v{vT6}, v{vT6}, v{vT2}')
e(f'v_mov_b32 v{vT7}, {OOB}')
e(f'v_cmp_gt_u32 vcc, 6, v{vT1}')
nop(1)
e(f'v_cndmask_b32 v{vT6}, v{vT7}, v{vT6}, vcc')
e(f'v_cmp_gt_u32 vcc, 32, v{vLANE}')
nop(1)
e(f'v_cndmask_b32 v{vM}, v{vT7}, v{vT5}, vcc')
e(f'v_cndmask_b32 v{vRA}, v{vT7}, v{vT6}, vcc')
e('s_waitcnt lgkmcnt(0)')
stamp(1)
e(f'buffer_load_dwordx4 {v4(vXS)}, v{vT3}, {srd(sX)}, 0 offen'); vm.issue('x')
e(f'buffer_load_dword v{vXS+4}, v{vT3}, {srd(sX)}, 0 offen offset:16'); vm.issue('x')
for k in range(3):
    e(f'buffer_load_ushort v{vX+k}, v{vT4}, {srd(sX)}, s{sT3} offen offset:{16*k}'); vm.issue('x')
for k in range(3):
    vo = vT5 if k < 2 else vM
    vf = vT6 if k < 2 else vRA
    for j in range(3):
        e(f'buffer_load_dwordx4 {v4(vWQ+20*k+4*j)}, v{vo}, {srd(sWQ)}, s{sWQB} offen offset:{128*j} nt'); vm.issue('wq')
    e(f'buffer_load_dwordx4 {v4(vWQ+20*k+12)}, v{vf}, {srd(sW1)}, s{sFB} offen nt'); vm.issue('wq')
    e(f'buffer_load_dwordx4 {v4(vWQ+20*k+16)}, v{vf}, {srd(sW3)}, s{sFB} offen nt'); vm.issue('wq')
    if k < 2:
        e(f's_add_u32 s{sWQB}, s{sWQB}, {8*12288}')
        e(f's_add_u32 s{sFB}, s{sFB}, {8*3072}')
def kload(G):
    for j in range(3):
        e(f'buffer_load_dwordx4 {v4(vD+12*G+4*j)}, v{vOFF}, {srd(sK)}, s{sKB} offen offset:{128*j} nt'); vm.issue(f'k{G}')
    e(f's_add_u32 s{sKB}, s{sKB}, 3072')
kload(0)
vCL = 24
for i in range(4): e(f'v_mov_b32 v{vCL+i}, -1')
e(f'v_lshlrev_b32 v{vT3}, 4, v{vLANE}')
e(f'v_lshlrev_b32 v{vT4}, 12, v{vT0}')
e(f'v_add_u32 v{vT4}, v{vT4}, v{vT2}')
e(f'v_cmp_gt_u32 vcc, 40, v{vLANE}')
nop(1)
e(f'v_cndmask_b32 v{vT4}, v{vT7}, v{vT4}, vcc')
e(f's_mul_i32 s{sT0}, s{sSPLIT}, {5*4096}')
e(f's_lshl_b32 s{sT1}, s{sHEAD}, 7')
e(f's_add_u32 s{sT0}, s{sT0}, s{sT1}')
e(f's_add_u32 s{sT0}, s{sT0}, {WS_Y}')
e(f's_cmp_eq_u32 s{sWAVE}, 3')
e(f's_cselect_b32 s{sT0}, s{sT0}, {OOB}')
e(f's_cselect_b32 s{sT1}, s{sSLOT}, {OOB}')
e(f's_cselect_b32 s{sT2}, 0, {OOB}')
e(f'buffer_store_dwordx4 {v4(vCL)}, v{vT3}, {srd(sWS)}, s{sT1} offen sc1'); vm.issue('clr')
e(f'buffer_store_dwordx4 {v4(vCL)}, v{vT3}, {srd(sWS)}, s{sT1} offen offset:1024 sc1'); vm.issue('clr')
e(f'buffer_store_dwordx4 {v4(vCL)}, v{vT4}, {srd(sWS)}, s{sT0} offen sc1'); vm.issue('clr')
kload(1)
e(f'v_mov_b32 v{vT3}, 0')
e(f'v_lshlrev_b32 v{vT4}, 2, v{vT1}')
e(f'ds_write_b32 v{vT4}, v{vT3} offset:{L_CNT}')
e('s_waitcnt lgkmcnt(0)')
e('s_barrier')
for G in range(2, 7): kload(G)
vm.wait('x')
e(f'v_lshlrev_b32 v{vT0}, 16, v{vXS}')
e(f'v_and_b32 v{vT1}, 0xffff0000, v{vXS}')
e(f'v_add_f32 v{vT3}, v{vT0}, v{vT1}')
for d in range(1, 5):
    e(f'v_lshlrev_b32 v{vT0}, 16, v{vXS+d}')
    e(f'v_and_b32 v{vT1}, 0xffff0000, v{vXS+d}')
    e(f'v_add_f32 v{vT3}, v{vT3}, v{vT0}')
    e(f'v_add_f32 v{vT3}, v{vT3}, v{vT1}')
allreduce64('v_add_f32', vT3, vT4)
e(f'v_mul_f32 v{vT3}, 0x3acccccd, v{vT3}')
e(f'v_mov_b32 v{vT5}, 0')
for d in range(5):
    e(f'v_lshlrev_b32 v{vT0}, 16, v{vXS+d}')
    e(f'v_and_b32 v{vT1}, 0xffff0000, v{vXS+d}')
    e(f'v_sub_f32 v{vT0}, v{vT0}, v{vT3}')
    e(f'v_sub_f32 v{vT1}, v{vT1}, v{vT3}')
    e(f'v_fmac_f32 v{vT5}, v{vT0}, v{vT0}')
    e(f'v_fmac_f32 v{vT5}, v{vT1}, v{vT1}')
allreduce64('v_add_f32', vT5, vT4)
e(f'v_mul_f32 v{vT5}, 0x3acccccd, v{vT5}')
bf16_round(vT3, vT3)
bf16_round(vT5, vT5)
e(f'v_add_f32 v{vT5}, 0x3727c5ac, v{vT5}')
bf16_round(vT5, vT5)
e(f'v_sqrt_f32 v{vT5}, v{vT5}')
nop(0)
bf16_round(vT5, vT5)
e(f'v_rcp_f32 v{vT6}, v{vT5}')
nop(0)
for k in range(3):
    e(f'v_lshlrev_b32 v{vT0}, 16, v{vX+k}')
    e(f'v_sub_f32 v{vT0}, v{vT0}, v{vT3}')
    bf16_round(vT0, vT0)
    e(f'v_mul_f32 v{vT4}, v{vT0}, v{vT6}')
    e(f'v_fma_f32 v{vT0}, -v{vT4}, v{vT5}, v{vT0}')
    e(f'v_fmac_f32 v{vT4}, v{vT0}, v{vT6}')
    e(f'v_cvt_pk_bf16_f32 v{vX+k}, v{vT4}, 0')
for i in range(40): e(f'v_mov_b32 v{vAC+i}, 0')
e(f'v_and_b32 v{vRA}, 7, v{vLANE}')
e(f'v_lshlrev_b32 v{vRA}, 5, v{vRA}')
e(f'v_lshrrev_b32 v{vT6}, 5, v{vLANE}')
e(f'v_lshlrev_b32 v{vT6}, 4, v{vT6}')
e(f'v_add_u32 v{vRA}, v{vRA}, v{vT6}')
e(f'v_bfe_u32 v{vT6}, v{vLANE}, 4, 1')
e(f'v_lshlrev_b32 v{vT6}, 3, v{vT6}')
e(f'v_add_u32 v{vRA}, v{vRA}, v{vT6}')
vm.wait('wq')
for k in range(3):
    e(f'v_lshlrev_b32 v{vT1}, 16, v{vX+k}')
    for j in range(3): axpy(vAC + 8 * j, vWQ + 20 * k + 4 * j, vX + k, vT1)
    axpy(vFA, vWQ + 20 * k + 12, vX + k, vT1)
    axpy(vFA + 8, vWQ + 20 * k + 16, vX + k, vT1)
reduce_r8(vAC, 5)
e(f's_mul_i32 s{sT0}, s{sWAVE}, 768')
e(f'v_add_u32 v{vT2}, s{sT0}, v{vRA}')
for j in range(3):
    e(f'ds_write_b64 v{vT2}, {v2(vAC+8*j)} offset:{L_RED+256*j}')
e(f's_mul_i32 s{sT0}, s{sWAVE}, 384')
e(f'v_add_u32 v{vT2}, s{sT0}, v{vRA}')
e(f'v_and_b32 v{vT1}, 7, v{vLANE}')
e(f'v_cmp_gt_u32 vcc, 6, v{vT1}')
e('s_and_saveexec_b64 s[28:29], vcc')
e(f'ds_write_b64 v{vT2}, {v2(vFA)} offset:{L_FRED}')
e(f'ds_write_b64 v{vT2}, {v2(vFA+8)} offset:{L_FRED+192}')
e('s_mov_b64 exec, s[28:29]')
lds_inc(C1)
vm.wait('clr')
if DBG:
    e(f's_lshr_b32 s{sT5}, s2, 5')
    e(f's_lshl_b32 s{sT5}, s{sT5}, 2')
    e(f's_add_u32 s{sT5}, s{sT5}, 224')
    e(f'v_mov_b32 v{vT0}, s{sT5}')
else:
    e(f'v_mov_b32 v{vT0}, s2')
e(f'v_mov_b32 v{vT1}, {OOB}')
e(f'v_cmp_eq_u32 vcc, 0, v{vLANE}')
nop(1)
e(f'v_cndmask_b32 v{vT0}, v{vT1}, v{vT0}, vcc')
if DBG:
    e(f's_and_b32 s{sT5}, s2, 31')
    e(f's_lshl_b32 s{sT5}, 1, s{sT5}')
    e(f'v_mov_b32 v{vT1}, s{sT5}')
    e(f'buffer_atomic_or v{vT1}, v{vT0}, {srd(sDBG)}, s{sT2} offen sc1'); vm.issue('flag')
else:
    e(f'v_mov_b32 v{vT1}, 1')
    e(f'buffer_store_byte v{vT1}, v{vT0}, {srd(sDBG)}, s{sT2} offen sc1'); vm.issue('flag')
stamp(2)
lds_inc(C1)
e(f's_cmp_ge_u32 s{sWAVE}, 2')
e('s_cbranch_scc1 L_pub_skip')
lds_spin(C1, 8, sleep=False)
vTM = 28
e(f'v_lshlrev_b32 v{vT2}, 4, v{vLANE}')
e(f's_cmp_eq_u32 s{sWAVE}, 0')
e(f's_cselect_b32 s{sT0}, 48, 24')
e(f's_cselect_b32 s{sT1}, {L_RED}, {L_FRED}')
e(f's_cselect_b32 s{sT3}, 384, 0')
e(f's_cselect_b32 s{sT4}, {SL_Q-SL_G}, 0')
e(f's_add_u32 s{sT3}, s{sT3}, 384')
e(f's_add_u32 s{sT4}, s{sT4}, {SL_G}')
e(f's_add_u32 s{sT4}, s{sT4}, s{sSLOT}')
e(f'v_add_u32 v{vT3}, s{sT1}, v{vT2}')
e(f'v_cmp_gt_u32 vcc, s{sT0}, v{vLANE}')
e('s_and_saveexec_b64 s[28:29], vcc')
for w in range(4):
    e(f'ds_read_b128 {v4(vTM+4*w)}, v{vT3}')
    if w < 3: e(f'v_add_u32 v{vT3}, s{sT3}, v{vT3}')
e('s_waitcnt lgkmcnt(0)')
for c in range(4):
    e(f'v_add_f32 v{vTM+c}, v{vTM+c}, v{vTM+4+c}')
    e(f'v_add_f32 v{vTM+8+c}, v{vTM+8+c}, v{vTM+12+c}')
for c in range(4): e(f'v_add_f32 v{vTM+c}, v{vTM+c}, v{vTM+8+c}')
for c in range(4): e(f'v_min_u32 v{vTM+c}, -2, v{vTM+c}')
e(f'buffer_store_dwordx4 {v4(vTM)}, v{vT2}, {srd(sWS)}, s{sT4} offen sc1')
e('s_mov_b64 exec, s[28:29]')
e('s_branch L_pub_done')
lab('L_pub_skip')
e(f'v_mov_b32 v{vT0}, {OOB}')
e(f'buffer_store_dword v{vT0}, v{vT0}, {srd(sWS)}, 0 offen')
lab('L_pub_done')
vm.issue('pub')
for G in range(7, 10): kload(G)
e(f's_cmp_eq_u32 s{sWAVE}, 0')
e('s_cbranch_scc1 L_k0')
import copy
vm_other = copy.deepcopy(vm)
vm_save = vm
vm = vm_other
for G in range(10, 16): kload(G)
e('s_branch L_kq')
lab('L_k0')
vm = vm_save
vFL = 28
e(f'v_lshlrev_b32 v{vT2}, 2, v{vLANE}')
if DBG:
    e(f'v_and_b32 v{vT2}, 28, v{vT2}')
    e(f'v_add_u32 v{vT2}, 224, v{vT2}')
e(f'buffer_load_dword v{vFL}, v{vT2}, {srd(sDBG)}, 0 offen sc1'); vm.issue('fl')
for G in range(10, 13): kload(G)
vm.wait('fl')
e(f's_mov_b32 s{sCNT}, 0')
lab('L_chk')
e(f'v_cmp_ne_u32 vcc, {-1 if DBG else 0x01010101}, v{vFL}')
e(f's_add_u32 s{sCNT}, s{sCNT}, 1')
e(f's_cmp_gt_u32 s{sCNT}, {SPIN}')
e('s_cbranch_scc1 L_chk_done')
e('s_cbranch_vccz L_chk_done')
e(f'buffer_load_dword v{vFL}, v{vT2}, {srd(sDBG)}, 0 offen sc1')
e('s_waitcnt vmcnt(0)')
e('s_branch L_chk')
lab('L_chk_done')
vQP = 28
e(f'v_lshlrev_b32 v{vT2}, 4, v{vLANE}')
e(f'v_mov_b32 v{vT1}, {OOB}')
e(f'v_cmp_gt_u32 vcc, 48, v{vLANE}')
nop(1)
e(f'v_cndmask_b32 v{vT2}, v{vT1}, v{vT2}, vcc')
for s in range(8): e(f's_add_u32 s{sC+s}, s{sGRP}, {s*WS_SLOT}')
for s in range(8):
    e(f'buffer_load_dwordx4 {v4(vQP+4*s)}, v{vT2}, {srd(sWS)}, s{sC+s} offen offset:{SL_Q} sc1'); vm.issue('qp')
for G in range(13, 16): kload(G)
vm.wait('qp')
e(f's_mov_b32 s{sCNT}, 0')
lab('L_qchk')
umax_chain(vT1, list(range(vQP, vQP + 32)))
e(f'v_cmp_eq_u32 vcc, -1, v{vT1}')
e(f's_add_u32 s{sCNT}, s{sCNT}, 1')
e(f's_cmp_gt_u32 s{sCNT}, {SPIN}')
e('s_cbranch_scc1 L_qchk_done')
e('s_cbranch_vccz L_qchk_done')
for s in range(8):
    e(f'buffer_load_dwordx4 {v4(vQP+4*s)}, v{vT2}, {srd(sWS)}, s{sC+s} offen offset:{SL_Q} sc1')
e('s_waitcnt vmcnt(0)')
e('s_branch L_qchk')
lab('L_qchk_done')
for step in (4, 2, 1):
    for w in range(step):
        for c in range(4):
            e(f'v_add_f32 v{vQP+4*w+c}, v{vQP+4*w+c}, v{vQP+4*(w+step)+c}')
e(f'v_cvt_pk_bf16_f32 v{vQP}, v{vQP}, v{vQP+1}')
e(f'v_cvt_pk_bf16_f32 v{vQP+1}, v{vQP+2}, v{vQP+3}')
e(f'v_lshlrev_b32 v{vT2}, 3, v{vLANE}')
e(f'v_cmp_gt_u32 vcc, 48, v{vLANE}')
e('s_and_saveexec_b64 s[28:29], vcc')
e(f'ds_write_b64 v{vT2}, {v2(vQP)} offset:{L_QBF}')
e('s_mov_b64 exec, s[28:29]')
lds_inc(C2)
lab('L_kq')
vm = vm_other
lds_spin(C2, 1)
stamp(3)
vQ = 16
vS = 28
e(f'v_and_b32 v{vT0}, 7, v{vLANE}')
e(f'v_lshlrev_b32 v{vT0}, 4, v{vT0}')
for j in range(3):
    e(f'ds_read_b128 {v4(vQ+4*j)}, v{vT0} offset:{L_QBF+128*j}')
e('s_waitcnt lgkmcnt(0)')
for G in range(16):
    vm.wait(f'k{G}')
    e(f'v_mov_b32 v{vS+G}, 0')
    e(f'v_mov_b32 v{vT0}, 0')
    e(f'v_mov_b32 v{vT1}, 0')
    accs = [vS + G, vT0, vT1]
    for d in range(4):
        for j in range(3):
            e(f'v_dot2c_f32_bf16 v{accs[j]}, v{vD+12*G+4*j+d}, v{vQ+4*j+d}')
    nop(2)
    e(f'v_add_f32 v{vT0}, v{vT0}, v{vT1}')
    e(f'v_add_f32 v{vS+G}, v{vS+G}, v{vT0}')
for G in range(16):
    e(f'v_add_f32 v{vS+G}, v{vS+G}, v{vS+G} quad_perm:[1,0,3,2] {DPP}')
for G in range(16):
    e(f'v_add_f32 v{vS+G}, v{vS+G}, v{vS+G} quad_perm:[2,3,0,1] {DPP}')
for G in range(16):
    e(f'v_add_f32 v{vS+G}, v{vS+G}, v{vS+G} row_half_mirror {DPP}')
for G in range(16):
    bf16_round(vS + G, vS + G)
    e(f'v_mul_f32 v{vS+G}, 0x3d93cd3a, v{vS+G}')
    bf16_round(vS + G, vS + G)
stamp(4)
e(f'v_max3_f32 v{vT2}, v{vS}, v{vS+1}, v{vS+2}')
for G in range(3, 15, 2): e(f'v_max3_f32 v{vT2}, v{vT2}, v{vS+G}, v{vS+G+1}')
e(f'v_max_f32 v{vT2}, v{vT2}, v{vS+15}')
nop(1)
e(f'v_max_f32 v{vT2}, v{vT2}, v{vT2} row_ror:8 {DPP}')
allreduce_rows('v_max_f32', vT2, vT1)
e(f's_lshl_b32 s{sT0}, s{sWAVE}, 2')
e(f'v_mov_b32 v{vT3}, s{sT0}')
e(f'ds_write_b32 v{vT3}, v{vT2} offset:{L_WMAX}')
lds_inc(C3)
lds_spin(C3, 4, sleep=False)
e(f'ds_read_b128 {v4(44)}, v{vT0} offset:{L_WMAX}')
e('s_waitcnt lgkmcnt(0)')
e(f'v_max3_f32 v{vM}, v44, v45, v46')
e(f'v_max_f32 v{vM}, v{vM}, v47')
e(f'v_mov_b32 v{vT2}, 0')
for G in range(16):
    e(f'v_sub_f32 v{vS+G}, v{vS+G}, v{vM}')
    e(f'v_mul_f32 v{vS+G}, 0x3fb8aa3b, v{vS+G}')
    e(f'v_exp_f32 v{vS+G}, v{vS+G}')
    nop(0)
    e(f'v_add_f32 v{vT2}, v{vT2}, v{vS+G}')
    e(f'v_cvt_pk_bf16_f32 v{vS+G}, v{vS+G}, 0')
e(f'v_lshrrev_b32 v{vT4}, 3, v{vLANE}')
e(f'v_lshlrev_b32 v{vT4}, 6, v{vT4}')
e(f's_lshl_b32 s{sT1}, s{sWAVE}, 9')
e(f'v_add_u32 v{vT4}, s{sT1}, v{vT4}')
e(f'v_and_b32 v{vT1}, 7, v{vLANE}')
e(f'v_cmp_eq_u32 vcc, 0, v{vT1}')
e('s_and_saveexec_b64 s[28:29], vcc')
for i in range(4): e(f'ds_write_b128 v{vT4}, {v4(vS+4*i)} offset:{L_P+16*i}')
e('s_mov_b64 exec, s[28:29]')
e('s_waitcnt lgkmcnt(0)')
e(f'v_mov_b32 v{vT1}, 1')
e(f'ds_write_b32 v{vT3}, v{vT1} offset:{C4}')
nop(1)
e(f'v_add_f32 v{vT2}, v{vT2}, v{vT2} row_ror:8 {DPP}')
allreduce_rows('v_add_f32', vT2, vT1)
e(f'ds_write_b32 v{vT3}, v{vT2} offset:{L_WSUM}')
lds_inc(C5)
e(f's_cmp_eq_u32 s{sWAVE}, 0')
e('s_cbranch_scc1 L_coef')
e(f's_cmp_eq_u32 s{sWAVE}, 2')
e('s_cbranch_scc1 L_ffn')
e(f's_cmp_eq_u32 s{sWAVE}, 3')
e('s_cbranch_scc1 L_kwo')
lds_spin(C5, 4, sleep=False)
e(f'ds_read_b128 {v4(44)}, v{vT0} offset:{L_WSUM}')
e('s_waitcnt lgkmcnt(0)')
e('v_add_f32 v44, v44, v45')
e('v_add_f32 v46, v46, v47')
e('v_add_f32 v45, v44, v46')
e(f'v_min_u32 v44, -2, v{vM}')
e('v_min_u32 v45, -2, v45')
e('s_mov_b64 exec, 1')
e(f'buffer_store_dwordx2 v[44:45], v{vT0}, {srd(sWS)}, s{sSLOT} offen offset:{SL_ML} sc1')
e('s_mov_b64 exec, -1')
e('s_branch L_kwo')
lab('L_coef')
vML = 44
e(f'v_and_b32 v{vT2}, 7, v{vLANE}')
e(f'v_mul_u32_u24 v{vT2}, {WS_SLOT}, v{vT2}')
e(f's_mov_b32 s{sCNT}, 0')
lab('L_pml')
e(f'buffer_load_dwordx2 {v2(vML)}, v{vT2}, {srd(sWS)}, s{sGRP} offen offset:{SL_ML} sc1')
e('s_waitcnt vmcnt(0)')
e(f'v_max_u32 v{vT1}, v{vML}, v{vML+1}')
poll_tail('L_pml', vT1)
e(f'v_mov_b32 v{vT1}, v{vML}')
allreduce8('v_max_f32', vT1)
e(f'v_sub_f32 v{vT1}, v{vML}, v{vT1}')
e(f'v_mul_f32 v{vT1}, 0x3fb8aa3b, v{vT1}')
e(f'v_exp_f32 v{vT1}, v{vT1}')
nop(0)
e(f'v_mul_f32 v{vT2}, v{vT1}, v{vML+1}')
allreduce8('v_add_f32', vT2)
e(f'v_rcp_f32 v{vT2}, v{vT2}')
nop(0)
e(f'v_mul_f32 v{vT1}, v{vT1}, v{vT2}')
e(f'v_and_b32 v{vT2}, 7, v{vLANE}')
e(f'v_lshlrev_b32 v{vT2}, 2, v{vT2}')
e(f'ds_write_b32 v{vT2}, v{vT1} offset:{L_COEF}')
e('s_branch L_kwo')
lab('L_ffn')
vG = 44
e(f'v_lshlrev_b32 v{vT2}, 2, v{vLANE}')
e(f'v_mov_b32 v{vT1}, {OOB}')
e(f'v_cmp_gt_u32 vcc, 48, v{vLANE}')
nop(1)
e(f'v_cndmask_b32 v{vT2}, v{vT1}, v{vT2}, vcc')
e(f's_mov_b32 s{sCNT}, 0')
for s in range(8): e(f's_add_u32 s{sC+s}, s{sGRP}, {s*WS_SLOT}')
lab('L_pff')
for s in range(8):
    e(f'buffer_load_dword v{vG+s}, v{vT2}, {srd(sWS)}, s{sC+s} offen offset:{SL_G} sc1')
    e(f'buffer_load_dword v{vG+8+s}, v{vT2}, {srd(sWS)}, s{sC+s} offen offset:{SL_U} sc1')
e('s_waitcnt vmcnt(0)')
umax_chain(vT1, list(range(vG, vG + 16)))
poll_tail('L_pff', vT1)
for s in range(1, 8):
    e(f'v_add_f32 v{vG}, v{vG}, v{vG+s}')
    e(f'v_add_f32 v{vG+8}, v{vG+8}, v{vG+8+s}')
bf16_round(vG, vG)
bf16_round(vG + 8, vG + 8)
e(f'v_mul_f32 v{vT1}, 0xbfb8aa3b, v{vG}')
e(f'v_exp_f32 v{vT1}, v{vT1}')
nop(0)
e(f'v_add_f32 v{vT1}, 1.0, v{vT1}')
e(f'v_rcp_f32 v{vT1}, v{vT1}')
nop(0)
e(f'v_mul_f32 v{vT1}, v{vG}, v{vT1}')
bf16_round(vT1, vT1)
e(f'v_mul_f32 v{vT1}, v{vT1}, v{vG+8}')
e(f'v_cvt_pk_bf16_f32 v{vT1}, v{vT1}, 0')
e(f'v_lshlrev_b32 v{vT2}, 2, v{vLANE}')
e(f'ds_write_b32 v{vT2}, v{vT1} offset:{L_U+768}')
lab('L_kwo')
wo_setup()
if not NODEFER: e('s_setprio 0')
vWO = vD
wo_issue(vm, vWO)
e('s_setprio 3')
e('s_waitcnt lgkmcnt(0)')
e('s_barrier')
stamp(5)
e('s_branch L_stagec')

lab('L_vwave')
vm = VM()
e('s_setprio 1')
vACC = 16
vP = 40
e('s_waitcnt lgkmcnt(0)')
e('s_barrier')
stamp(1)
for G in range(16):
    for j in range(3):
        e(f'buffer_load_dwordx4 {v4(vD+12*G+4*j)}, v{vOFF}, {srd(sV)}, s{sKB} offen offset:{128*j} nt'); vm.issue(f'v{G}')
    e(f's_add_u32 s{sKB}, s{sKB}, 3072')
stamp(2)
for i in range(24): e(f'v_mov_b32 v{vACC+i}, 0')
e(f'v_and_b32 v{vRA}, 7, v{vLANE}')
e(f'v_lshlrev_b32 v{vRA}, 5, v{vRA}')
e(f'v_lshrrev_b32 v{vT6}, 5, v{vLANE}')
e(f'v_lshlrev_b32 v{vT6}, 4, v{vT6}')
e(f'v_add_u32 v{vRA}, v{vRA}, v{vT6}')
e(f'v_bfe_u32 v{vT6}, v{vLANE}, 4, 1')
e(f'v_lshlrev_b32 v{vT6}, 3, v{vT6}')
e(f'v_add_u32 v{vRA}, v{vRA}, v{vT6}')
e(f's_sub_u32 s{sT4}, s{sWAVE}, 4')
e(f's_mul_i32 s{sT0}, s{sT4}, 768')
e(f'v_add_u32 v{vRA}, s{sT0}, v{vRA}')
wo_setup()
e(f's_cmp_eq_u32 s{sWAVE}, 4')
e(f's_cselect_b32 s{sWOB}, s{sWOB}, {OOB}')
e(f's_cselect_b32 s{sW2B}, s{sW2B}, {OOB}')
e(f's_cselect_b32 s{sT0}, s{sT0}, {OOB}')
e(f's_cselect_b32 s{sT1}, s{sT1}, {OOB}')
e(f's_lshl_b32 s{sT3}, s{sT4}, 2')
e(f'v_mov_b32 v{vT0}, s{sT3}')
e(f's_mov_b32 s{sCNT}, 0')
lab('L_pw')
e(f'ds_read_b32 v{vT1}, v{vT0} offset:{C4}')
e('s_waitcnt lgkmcnt(0)')
e(f'v_readfirstlane_b32 s{sT5}, v{vT1}')
e(f's_add_u32 s{sCNT}, s{sCNT}, 1')
e(f's_cmp_ge_u32 s{sT5}, 1')
e('s_cbranch_scc1 L_pwd')
e(f's_cmp_gt_u32 s{sCNT}, {SPIN*16}')
e('s_cbranch_scc1 L_pwd')
e('s_sleep 1')
e('s_branch L_pw')
lab('L_pwd')
stamp(3)
e(f'v_lshrrev_b32 v{vT2}, 3, v{vLANE}')
e(f'v_lshlrev_b32 v{vT2}, 6, v{vT2}')
e(f's_lshl_b32 s{sT3}, s{sT4}, 9')
e(f'v_add_u32 v{vT2}, s{sT3}, v{vT2}')
for i in range(4): e(f'ds_read_b128 {v4(vP+4*i)}, v{vT2} offset:{L_P+16*i}')
e('s_waitcnt lgkmcnt(0)')
e('s_setprio 3')
for G in range(16):
    vm.wait(f'v{G}')
    e(f'v_lshlrev_b32 v{vT0+(G&1)}, 16, v{vP+G}')
    for j in range(3):
        axpy(vACC + 8 * j, vD + 12 * G + 4 * j, vP + G, vT0 + (G & 1))
    if G == 2:
        wo_issue(vm, vD)
stamp(4)
reduce_r8(vACC, 3)
for j in range(3):
    e(f'ds_write_b64 v{vRA}, {v2(vACC+8*j)} offset:{L_RED+256*j}')
e('s_waitcnt lgkmcnt(0)')
e('s_barrier')
stamp(5)
e(f's_cmp_eq_u32 s{sWAVE}, 4')
e('s_cbranch_scc1 L_stagec')
e(f's_cmp_eq_u32 s{sWAVE}, 6')
e('s_cbranch_scc1 L_merge')
e(f's_cmp_eq_u32 s{sWAVE}, 7')
e('s_cbranch_scc1 L_final')
vTM = 128
e(f'v_lshlrev_b32 v{vT0}, 4, v{vLANE}')
e(f'v_cmp_gt_u32 vcc, 48, v{vLANE}')
e('s_and_saveexec_b64 s[28:29], vcc')
for w in range(4):
    e(f'ds_read_b128 {v4(vTM+4*w)}, v{vT0} offset:{L_RED+768*w}')
e('s_waitcnt lgkmcnt(0)')
for c in range(4):
    e(f'v_add_f32 v{vTM+c}, v{vTM+c}, v{vTM+4+c}')
    e(f'v_add_f32 v{vTM+8+c}, v{vTM+8+c}, v{vTM+12+c}')
for c in range(4): e(f'v_add_f32 v{vTM+c}, v{vTM+c}, v{vTM+8+c}')
for c in range(4): e(f'v_min_u32 v{vTM+c}, -2, v{vTM+c}')
e(f'buffer_store_dwordx4 {v4(vTM)}, v{vT0}, {srd(sWS)}, s{sSLOT} offen offset:{SL_O} sc1')
stamp(6)
stamp_out()
lab('L_merge')
vO = 128
vCF = 164
e(f'v_mov_b32 v{vT1}, 0')
e(f'ds_read_b128 {v4(vCF)}, v{vT1} offset:{L_COEF}')
e(f'ds_read_b128 {v4(vCF+4)}, v{vT1} offset:{L_COEF+16}')
e(f'v_lshlrev_b32 v{vT3}, 4, v{vLANE}')
e(f'v_mov_b32 v{vT1}, {OOB}')
e(f'v_cmp_gt_u32 vcc, 48, v{vLANE}')
nop(1)
e(f'v_cndmask_b32 v{vT0}, v{vT1}, v{vT3}, vcc')
e(f's_mov_b32 s{sCNT}, 0')
for s in range(8): e(f's_add_u32 s{sC+s}, s{sGRP}, {s*WS_SLOT}')
lab('L_po')
for s in range(8):
    e(f'buffer_load_dwordx4 {v4(vO+4*s)}, v{vT0}, {srd(sWS)}, s{sC+s} offen offset:{SL_O} sc1')
e('s_waitcnt vmcnt(0)')
umax_chain(vT1, list(range(vO, vO + 32)))
poll_tail('L_po', vT1)
e('s_waitcnt lgkmcnt(0)')
for c in range(4): e(f'v_mul_f32 v{vO+c}, v{vCF}, v{vO+c}')
for s in range(1, 8):
    for c in range(4): e(f'v_fmac_f32 v{vO+c}, v{vCF+s}, v{vO+4*s+c}')
for c in range(4): e(f'v_cvt_pk_bf16_f32 v{vO+c}, v{vO+c}, 0')
e(f'v_cmp_gt_u32 vcc, 48, v{vLANE}')
e('s_and_saveexec_b64 s[28:29], vcc')
e(f'ds_write_b128 v{vT3}, {v4(vO)} offset:{L_U}')
e('s_waitcnt lgkmcnt(0)')
e('s_barrier')
stamp(6)
stamp_out()
lab('L_stagec')
vA = 16
vU = 32
for i in range(16): e(f'v_mov_b32 v{vA+i}, 0')
e(f'v_lshrrev_b32 v{vT0}, 1, v{vLANE}')
e(f'v_mul_u32_u24 v{vT1}, 24, v{vT0}')
e(f'v_lshlrev_b32 v{vT0}, 2, v{vT0}')
e(f'ds_read_b32 v{vU+6}, v{vT0} offset:{L_U+768}')
e(f'ds_read_b32 v{vU+7}, v{vT0} offset:{L_U+768+128}')
e(f'v_and_b32 v{vT2}, 1, v{vLANE}')
e(f'v_lshlrev_b32 v{vT2}, 6, v{vT2}')
e(f'v_lshrrev_b32 v{vT3}, 5, v{vLANE}')
e(f'v_lshlrev_b32 v{vT3}, 5, v{vT3}')
e(f'v_add_u32 v{vT2}, v{vT2}, v{vT3}')
e(f'v_bfe_u32 v{vT3}, v{vLANE}, 4, 1')
e(f'v_lshlrev_b32 v{vT3}, 4, v{vT3}')
e(f'v_add_u32 v{vT2}, v{vT2}, v{vT3}')
e(f's_mul_i32 s{sT0}, s{sSPLIT}, 5')
e(f's_add_u32 s{sT0}, s{sT0}, s{sWAVE}')
e(f's_lshl_b32 s{sT0}, s{sT0}, 12')
e(f's_lshl_b32 s{sT1}, s{sHEAD}, 7')
e(f's_add_u32 s{sT0}, s{sT0}, s{sT1}')
e(f's_add_u32 s{sT0}, s{sT0}, {WS_Y}')
e(f'v_and_b32 v{vT3}, 14, v{vLANE}')
e(f'v_cmp_eq_u32 s[30:31], 0, v{vT3}')
e('s_waitcnt vmcnt(6) lgkmcnt(0)')
for i in range(6, 8): e(f'v_lshlrev_b32 v{vU+8+i}, 16, v{vU+i}')
for i in range(6, 8): axpy(vA + 8, vWO + 4 * i, vU + i, vU + 8 + i)
def red32(a):
    nop(2)
    for ee in range(4): e(f'v_permlane32_swap_b32 v{a+ee}, v{a+ee+4}')
    nop(1)
    for ee in range(4): e(f'v_add_f32 v{a+ee}, v{a+ee}, v{a+ee+4}')
    nop(1)
    for ee in range(2): e(f'v_permlane16_swap_b32 v{a+ee}, v{a+ee+2}')
    nop(1)
    for ee in range(2): e(f'v_add_f32 v{a+ee}, v{a+ee}, v{a+ee+2}')
    for dpp in ('row_ror:8', 'row_ror:4', 'quad_perm:[2,3,0,1]'):
        nop(1)
        for ee in range(2): e(f'v_add_f32 v{a+ee}, v{a+ee}, v{a+ee} {dpp} {DPP}')
red32(vA + 8)
e(f'v_min_u32 v{vA+10}, -2, v{vA+8}')
e(f'v_min_u32 v{vA+11}, -2, v{vA+9}')
e('s_waitcnt vmcnt(0)')
e('s_barrier')
stamp(6)
for i in range(3):
    e(f'ds_read_b64 {v2(vU+2*i)}, v{vT1} offset:{L_U+8*i}')
e('s_waitcnt lgkmcnt(0)')
for i in range(6): e(f'v_lshlrev_b32 v{vU+8+i}, 16, v{vU+i}')
for i in range(6): axpy(vA, vWO + 4 * i, vU + i, vU + 8 + i)
red32(vA)
e(f'v_min_u32 v{vA+8}, -2, v{vA}')
e(f'v_min_u32 v{vA+9}, -2, v{vA+1}')
e('s_mov_b64 exec, s[30:31]')
e(f'buffer_store_dwordx4 {v4(vA+8)}, v{vT2}, {srd(sWS)}, s{sT0} offen sc1')
stamp_out()
lab('L_final')
e('s_cmp_ge_u32 s2, 40')
e('s_cbranch_scc1 L_end2')
vY = 128
e(f'v_lshlrev_b32 v{vT0}, 4, v{vLANE}')
e(f's_lshl_b32 s{sT0}, s2, 12')
e(f's_add_u32 s{sT0}, s{sT0}, {WS_Y}')
e(f'v_and_b32 v{vT2}, 7, v{vLANE}')
e(f'v_lshlrev_b32 v{vT2}, 2, v{vT2}')
e(f'v_lshrrev_b32 v{vT3}, 5, v{vLANE}')
e(f'v_lshlrev_b32 v{vT3}, 1, v{vT3}')
e(f'v_add_u32 v{vT2}, v{vT2}, v{vT3}')
e(f's_lshl_b32 s{sT1}, s2, 5')
e(f'buffer_load_ushort v{vT4}, v{vT2}, {srd(sX)}, s{sT1} offen')
e(f'v_and_b32 v{vT3}, 24, v{vLANE}')
e(f'v_cmp_eq_u32 s[30:31], 0, v{vT3}')
e('s_barrier')
stamp(6)
e(f's_mov_b32 s{sCNT}, 0')
lab('L_py')
for i in range(4):
    e(f'buffer_load_dwordx4 {v4(vY+4*i)}, v{vT0}, {srd(sWS)}, s{sT0} offen offset:{1024*i} sc1')
e('s_waitcnt vmcnt(0)')
umax_chain(vT1, list(range(vY, vY + 16)))
poll_tail('L_py', vT1)
for c in range(4):
    e(f'v_add_f32 v{vY+c}, v{vY+c}, v{vY+4+c}')
    e(f'v_add_f32 v{vY+8+c}, v{vY+8+c}, v{vY+12+c}')
for c in range(4): e(f'v_add_f32 v{vY+c}, v{vY+c}, v{vY+8+c}')
nop(1)
e(f'v_permlane32_swap_b32 v{vY}, v{vY+1}')
e(f'v_permlane32_swap_b32 v{vY+2}, v{vY+3}')
nop(1)
e(f'v_add_f32 v{vY}, v{vY}, v{vY+1}')
e(f'v_add_f32 v{vY+2}, v{vY+2}, v{vY+3}')
nop(1)
e(f'v_add_f32 v{vY}, v{vY}, v{vY} row_ror:8 {DPP}')
e(f'v_add_f32 v{vY+2}, v{vY+2}, v{vY+2} row_ror:8 {DPP}')
nop(1)
e(f'v_mov_b32 v{vY+1}, v{vY}')
e(f'v_mov_b32 v{vY+3}, v{vY+2}')
nop(1)
e(f'v_permlane16_swap_b32 v{vY+1}, v{vY}')
e(f'v_permlane16_swap_b32 v{vY+3}, v{vY+2}')
nop(1)
e(f'v_add_f32 v{vY}, v{vY}, v{vY+1}')
e(f'v_add_f32 v{vY+2}, v{vY+2}, v{vY+3}')
bf16_round(vY, vY)
bf16_round(vY + 2, vY + 2)
e(f'v_lshlrev_b32 v{vT4}, 16, v{vT4}')
e(f'v_add_f32 v{vY}, v{vT4}, v{vY}')
bf16_round(vY, vY)
e(f'v_add_f32 v{vY}, v{vY}, v{vY+2}')
e(f'v_cvt_pk_bf16_f32 v{vY}, v{vY}, v{vY}')
e('s_mov_b64 exec, s[30:31]')
e(f'buffer_store_short v{vY}, v{vT2}, {srd(sOUT)}, s{sT1} offen')
lab('L_end2')
if STAMPS:
    e('s_mov_b64 exec, -1')
    lab('L_stamp_out')
    e(f's_memrealtime s[{sST+14}:{sST+15}]')
    e('s_waitcnt lgkmcnt(0)')
    for i in range(8): e(f'v_mov_b32 v{200+i}, s{sST+2*i}')
    e(f's_lshl_b32 s{sT0}, s2, 3')
    e(f's_add_u32 s{sT0}, s{sT0}, s{sWAVE}')
    e(f's_lshl_b32 s{sT0}, s{sT0}, 5')
    e(f's_add_u32 s{sT0}, s{sT0}, {WS_STAMP}')
    e(f'v_mov_b32 v{vT0}, 0')
    e('s_mov_b64 exec, 1')
    if DBG:
        e(f'v_not_b32 v200, v200')
        e(f's_cmp_ge_u32 s{sWAVE}, 4')
        e(f's_cselect_b32 s{sT1}, 32, 0')
        for i in (0,1,2,3,4,5,7):
            e(f'buffer_atomic_umax v{200+i}, v{vT0}, {srd(sDBG)}, s{sT1} offen offset:{4*i} sc1')
    e(f'buffer_store_dwordx4 {v4(200)}, v{vT0}, {srd(sWS)}, s{sT0} offen')
    e(f'buffer_store_dwordx4 {v4(204)}, v{vT0}, {srd(sWS)}, s{sT0} offen offset:16')
lab('L_end')
e('s_endpgm')
L.append('.section .rodata,"a"')
L.append('.p2align 6')
L.append(f'.amdhsa_kernel {NAME}')
L.append('  .amdhsa_next_free_vgpr 256')
L.append('  .amdhsa_next_free_sgpr 102')
L.append('  .amdhsa_accum_offset 256')
L.append('  .amdhsa_group_segment_fixed_size 0')
L.append('  .amdhsa_kernarg_size 96')
L.append('  .amdhsa_user_sgpr_count 2')
L.append('  .amdhsa_user_sgpr_kernarg_segment_ptr 1')
L.append('  .amdhsa_system_sgpr_workgroup_id_x 1')
L.append('.end_amdhsa_kernel')
open(sys.argv[1], 'w').write('\n'.join(L) + '\n')
```

```python
import sys
DBG = '--dbg' in sys.argv
STAMPS = '--stamps' in sys.argv or DBG
NODEFER = '--nodefer' in sys.argv
NAME = 'parallel_sum__sliding_block_cached__glu_gated_swiglu__decode_kernel'

L = []
def e(s): L.append('    ' + s)
def lab(s): L.append(s + ':')
def cmt(s): L.append('    ; ' + s)

HEAD_STRIDE = 32768 * 384
WIN = 28672 * 384
WS_SLOT = 2048
SL_O, SL_G, SL_U, SL_ML, SL_Q = 0, 768, 960, 1152, 1280
WS_Y = 256 * WS_SLOT
WS_Y_BYTES = 40 * 32 * 128
WS_USED = WS_Y + WS_Y_BYTES
WS_STAMP = 1 << 20
OOB = 0x40000000
SPIN = 0x40000

sX, sK, sV, sWQ, sWO, sW1, sW3, sW2, sOUT, sDBG, sWS = [40 + 4 * i for i in range(11)]
def srd(b): return f's[{b}:{b+3}]'
sHEAD, sSPLIT, sWAVE = 3, 4, 5
sT0, sT1, sT2, sT3 = 6, 7, 8, 9
sKB = 10
sWQB = 11
sSLOT = 12
sGRP = 13
sWOB = 14
sW2B = 15
sCNT = 16
sFB = 17
sT4 = 18
sT5 = 19
sC = 20
sST = 84

L_RED = 0
L_FRED = 3072
L_QBF = 4608
L_P = 5120
L_WMAX = 7168
L_WSUM = 7184
L_CNT = 7200
C1, C2, C3, C5, C4 = L_CNT, L_CNT + 4, L_CNT + 8, L_CNT + 12, L_CNT + 16
L_COEF = 7232
L_U = 7296 + 128 - 128
L_U = 7424
LDS_BYTES = 8448

vTID = 0
vOFF = 1
vT0, vT1, vT2, vT3 = 2, 3, 4, 5
vLANE = 6
vRA = 7
vM = 8
vT4, vT5, vT6, vT7 = 9, 10, 11, 12
vX = 13
vD = 64

class VM:
    def __init__(self): self.q = []
    def issue(self, tag): self.q.append(tag)
    def wait(self, tag):
        if tag not in self.q: return
        idx = max(i for i, t in enumerate(self.q) if t == tag)
        n = len(self.q) - 1 - idx
        assert n <= 63, n
        e(f's_waitcnt vmcnt({n})')
        self.q = self.q[idx + 1:]
    def drain(self):
        e('s_waitcnt vmcnt(0)'); self.q = []

def stamp(i):
    if STAMPS: e(f's_memrealtime s[{sST+2*i}:{sST+2*i+1}]')

def stamp_out():
    if STAMPS:
        e('s_mov_b64 exec, -1')
        e('s_branch L_stamp_out')
    else:
        e('s_endpgm')

def nop(n): e(f's_nop {n}')
def v4(b): return f'v[{b}:{b+3}]'
def v2(b): return f'v[{b}:{b+1}]'
DPP = 'row_mask:0xf bank_mask:0xf'

def bf16_round(dst, src):
    e(f'v_cvt_pk_bf16_f32 v{dst}, v{src}, v{src}')
    e(f'v_and_b32 v{dst}, 0xffff0000, v{dst}')

def allreduce_rows(op, v, tmp):
    nop(1)
    e(f'v_mov_b32 v{tmp}, v{v}')
    nop(1)
    e(f'v_permlane16_swap_b32 v{tmp}, v{v}')
    nop(1)
    e(f'{op} v{v}, v{tmp}, v{v}')
    nop(1)
    e(f'v_mov_b32 v{tmp}, v{v}')
    nop(1)
    e(f'v_permlane32_swap_b32 v{tmp}, v{v}')
    nop(1)
    e(f'{op} v{v}, v{tmp}, v{v}')

def allreduce8(op, v):
    nop(1)
    e(f'{op} v{v}, v{v}, v{v} quad_perm:[1,0,3,2] {DPP}')
    nop(1)
    e(f'{op} v{v}, v{v}, v{v} quad_perm:[2,3,0,1] {DPP}')
    nop(1)
    e(f'{op} v{v}, v{v}, v{v} row_half_mirror {DPP}')

def allreduce64(op, v, tmp):
    allreduce8(op, v)
    nop(1)
    e(f'{op} v{v}, v{v}, v{v} row_mirror {DPP}')
    allreduce_rows(op, v, tmp)

def reduce_r8(acc, nj):
    nop(2)
    for j in range(nj):
        for ee in range(4): e(f'v_permlane32_swap_b32 v{acc+8*j+ee}, v{acc+8*j+ee+4}')
    nop(1)
    for j in range(nj):
        for ee in range(4): e(f'v_add_f32 v{acc+8*j+ee}, v{acc+8*j+ee}, v{acc+8*j+ee+4}')
    nop(1)
    for j in range(nj):
        for ee in range(2): e(f'v_permlane16_swap_b32 v{acc+8*j+ee}, v{acc+8*j+ee+2}')
    nop(1)
    for j in range(nj):
        for ee in range(2): e(f'v_add_f32 v{acc+8*j+ee}, v{acc+8*j+ee}, v{acc+8*j+ee+2}')
    nop(1)
    for j in range(nj):
        for ee in range(2): e(f'v_add_f32 v{acc+8*j+ee}, v{acc+8*j+ee}, v{acc+8*j+ee} row_ror:8 {DPP}')

def axpy(acc, data, lo, hi):
    for d in range(4):
        e(f'v_dot2c_f32_bf16 v{acc+2*d}, v{data+d}, v{lo}')
        e(f'v_dot2c_f32_bf16 v{acc+2*d+1}, v{data+d}, v{hi}')

uid = [0]
def lds_spin(addr, target, sleep=True):
    uid[0] += 1
    n = uid[0]
    e(f'v_mov_b32 v{vT0}, 0')
    e(f's_mov_b32 s{sCNT}, 0')
    lab(f'L_sp{n}')
    e(f'ds_read_b32 v{vT1}, v{vT0} offset:{addr}')
    e('s_waitcnt lgkmcnt(0)')
    e(f'v_readfirstlane_b32 s{sT5}, v{vT1}')
    e(f's_add_u32 s{sCNT}, s{sCNT}, 1')
    e(f's_cmp_ge_u32 s{sT5}, {target}')
    e(f's_cbranch_scc1 L_spd{n}')
    e(f's_cmp_gt_u32 s{sCNT}, {SPIN*16}')
    e(f's_cbranch_scc1 L_spd{n}')
    if sleep: e('s_sleep 1')
    e(f's_branch L_sp{n}')
    lab(f'L_spd{n}')

def lds_inc(addr):
    e('s_waitcnt lgkmcnt(0)')
    e(f'v_mov_b32 v{vT0}, 0')
    e(f'v_mov_b32 v{vT1}, 1')
    e('s_mov_b64 exec, 1')
    e(f'ds_add_u32 v{vT0}, v{vT1} offset:{addr}')
    e('s_mov_b64 exec, -1')

def poll_tail(name, chk):
    e(f'v_cmp_eq_u32 vcc, -1, v{chk}')
    e(f's_add_u32 s{sCNT}, s{sCNT}, 1')
    e(f's_cmp_gt_u32 s{sCNT}, {SPIN}')
    e(f's_cbranch_scc1 {name}_done')
    e(f's_cbranch_vccnz {name}')
    lab(f'{name}_done')

def umax_chain(dst, regs):
    e(f'v_max_u32 v{dst}, v{regs[0]}, v{regs[1]}')
    i = 2
    while i + 1 < len(regs):
        e(f'v_max3_u32 v{dst}, v{dst}, v{regs[i]}, v{regs[i+1]}'); i += 2
    if i < len(regs): e(f'v_max_u32 v{dst}, v{dst}, v{regs[i]}')

def wo_setup():
    e(f'v_lshrrev_b32 v{vT0}, 1, v{vLANE}')
    e(f'v_and_b32 v{vT1}, 1, v{vLANE}')
    e(f'v_lshlrev_b32 v{vT1}, 4, v{vT1}')
    e(f'v_mul_u32_u24 v{vT4}, {6*1280}, v{vT0}')
    e(f'v_add_u32 v{vT4}, v{vT4}, v{vT1}')
    e(f'v_mul_u32_u24 v{vT5}, 1280, v{vT0}')
    e(f'v_add_u32 v{vT5}, v{vT5}, v{vT1}')
    e(f'v_mov_b32 v{vT2}, {OOB}')
    e(f'v_cmp_gt_u32 vcc, 32, v{vLANE}')
    nop(1)
    e(f'v_cndmask_b32 v{vT6}, v{vT2}, v{vT5}, vcc')
    e(f's_mul_i32 s{sT0}, s{sSPLIT}, 160')
    e(f's_lshl_b32 s{sT1}, s{sWAVE}, 5')
    e(f's_add_u32 s{sT0}, s{sT0}, s{sT1}')
    e(f's_mul_i32 s{sWOB}, s{sHEAD}, {192*1280}')
    e(f's_add_u32 s{sWOB}, s{sWOB}, s{sT0}')
    e(f's_mul_i32 s{sW2B}, s{sHEAD}, {48*1280}')
    e(f's_add_u32 s{sW2B}, s{sW2B}, s{sT0}')
    e(f's_add_u32 s{sT1}, s{sW2B}, {32*1280}')
    e(f's_add_u32 s{sT0}, s{sWOB}, {3*1280}')

def wo_issue(vm, base):
    e(f'buffer_load_dwordx4 {v4(base+24)}, v{vT5}, {srd(sW2)}, s{sW2B} offen nt'); vm.issue('wo')
    e(f'buffer_load_dwordx4 {v4(base+28)}, v{vT6}, {srd(sW2)}, s{sT1} offen nt'); vm.issue('wo')
    for i in range(6):
        so = sWOB if i < 3 else sT0
        e(f'buffer_load_dwordx4 {v4(base+4*i)}, v{vT4}, {srd(sWO)}, s{so} offen offset:{1280*(i%3)} nt'); vm.issue('wo')

hdr = open('parallel_sum__sliding_block_cached__glu_gated_swiglu__decode.s.ref').read().split('\n')
for line in hdr:
    if line.startswith('; @launch'):
        L.append(f'; @launch grid=(256,1,1) block=(512,1,1) lds={LDS_BYTES}')
    elif line.startswith(';'):
        L.append(line)
    else:
        break
L.append('.amdgcn_target "amdgcn-amd-amdhsa--gfx950"')
L.append('.text')
L.append(f'.globl {NAME}')
L.append('.p2align 8')
L.append(f'.type {NAME},@function')
lab(NAME)
stamp(0)
THR = [int(a.split('=')[1]) for a in sys.argv if a.startswith('--thr=')]
if THR: e('s_memrealtime s[98:99]')
e('s_cmp_ge_u32 s2, 256')
e('s_cbranch_scc1 L_end')
for (sr, off) in [(sX, 0), (sWQ, 24), (sK, 8), (sV, 16), (sW1, 48), (sW3, 56), (sWS, 88), (sDBG, 80), (sWO, 32), (sW2, 64), (sOUT, 72)]:
    e(f's_load_dwordx2 s[{sr}:{sr+1}], s[0:1], {off}')
e(f'v_lshrrev_b32 v{vT0}, 6, v0')
e(f'v_and_b32 v{vLANE}, 63, v0')
e(f'v_readfirstlane_b32 s{sWAVE}, v{vT0}')
for (sr, nb) in [(sX, 1280), (sWQ, 7864320), (sK, 402653184), (sWS, (WS_STAMP + 65536*4) if STAMPS else WS_USED), (sV, 402653184), (sW1, 1966080),
                 (sW3, 1966080), (sDBG, 256), (sWO, 7864320), (sW2, 1966080), (sOUT, 1280)]:
    e(f's_mov_b32 s{sr+2}, {nb}')
    e(f's_mov_b32 s{sr+3}, 0x00020000')
e(f's_and_b32 s{sHEAD}, s2, 7')
e(f's_lshr_b32 s{sSPLIT}, s2, 3')
e(f's_and_b32 s{sT0}, s{sSPLIT}, 3')
e(f's_lshl_b32 s{sHEAD}, s{sHEAD}, 2')
e(f's_add_u32 s{sHEAD}, s{sHEAD}, s{sT0}')
e(f's_lshr_b32 s{sSPLIT}, s{sSPLIT}, 2')
e(f'v_lshrrev_b32 v{vT0}, 3, v{vLANE}')
e(f'v_and_b32 v{vT1}, 7, v{vLANE}')
e(f'v_lshlrev_b32 v{vT2}, 4, v{vT1}')
e(f'v_mul_u32_u24 v{vOFF}, 384, v{vT0}')
e(f'v_add_u32 v{vOFF}, v{vOFF}, v{vT2}')
e(f's_mul_i32 s{sKB}, s{sHEAD}, {HEAD_STRIDE}')
e(f's_mul_i32 s{sT0}, s{sSPLIT}, {512*384}')
e(f's_add_u32 s{sKB}, s{sKB}, s{sT0}')
e(f's_and_b32 s{sT1}, s{sWAVE}, 3')
e(f's_mul_i32 s{sT0}, s{sT1}, {128*384}')
e(f's_add_u32 s{sKB}, s{sKB}, s{sT0}')
e(f's_add_u32 s{sKB}, s{sKB}, {WIN}')
e(f's_lshl_b32 s{sT0}, s{sHEAD}, 3')
e(f's_mul_i32 s{sGRP}, s{sT0}, {WS_SLOT}')
e(f's_mul_i32 s{sT0}, s{sSPLIT}, {WS_SLOT}')
e(f's_add_u32 s{sSLOT}, s{sGRP}, s{sT0}')
if '--dummy' in sys.argv:
    pol = ' nt' if '--dummydef' not in sys.argv else ''
    e('s_waitcnt lgkmcnt(0)')
    e(f's_sub_u32 s{sT4}, s{sKB}, {WIN}')
    e(f's_cmp_ge_u32 s{sWAVE}, 4')
    e(f's_cselect_b32 s32, s{sV}, s{sK}')
    e(f's_cselect_b32 s33, s{sV+1}, s{sK+1}')
    e(f's_mov_b32 s34, 402653184')
    e(f's_mov_b32 s35, 0x00020000')
    for G in range(16):
        for j in range(3):
            e(f'buffer_load_dwordx4 {v4(vD+12*G+4*j)}, v{vOFF}, s[32:35], s{sT4} offen offset:{128*j}{pol}')
        e(f's_add_u32 s{sT4}, s{sT4}, 3072')
    e('s_waitcnt vmcnt(0)')
    e('s_barrier')
e(f's_cmp_ge_u32 s{sWAVE}, 4')
e('s_cbranch_scc1 L_vwave')

vm = VM()
e('s_setprio 2')
vWQ = vD + 12 * 11
vAC = vD + 12 * 7
vFA = vAC + 24
vXS = 16
e(f's_mul_i32 s{sT0}, s{sSPLIT}, 80')
e(f's_mul_i32 s{sT1}, s{sWAVE}, 20')
e(f's_add_u32 s{sT0}, s{sT0}, s{sT1}')
e(f's_lshl_b32 s{sT3}, s{sT0}, 1')
e(f's_mul_i32 s{sWQB}, s{sT0}, 12288')
e(f's_mul_i32 s{sT1}, s{sHEAD}, 384')
e(f's_add_u32 s{sWQB}, s{sWQB}, s{sT1}')
e(f's_mul_i32 s{sFB}, s{sT0}, 3072')
e(f's_mul_i32 s{sT1}, s{sHEAD}, 96')
e(f's_add_u32 s{sFB}, s{sFB}, s{sT1}')
e(f'v_mul_u32_u24 v{vT3}, 20, v{vLANE}')
e(f'v_lshlrev_b32 v{vT4}, 1, v{vT0}')
e(f'v_mul_u32_u24 v{vT5}, 12288, v{vT0}')
e(f'v_add_u32 v{vT5}, v{vT5}, v{vT2}')
e(f'v_mul_u32_u24 v{vT6}, 3072, v{vT0}')
e(f'v_add_u32 v{vT6}, v{vT6}, v{vT2}')
e(f'v_mov_b32 v{vT7}, {OOB}')
e(f'v_cmp_gt_u32 vcc, 6, v{vT1}')
nop(1)
e(f'v_cndmask_b32 v{vT6}, v{vT7}, v{vT6}, vcc')
e(f'v_cmp_gt_u32 vcc, 32, v{vLANE}')
nop(1)
e(f'v_cndmask_b32 v{vM}, v{vT7}, v{vT5}, vcc')
e(f'v_cndmask_b32 v{vRA}, v{vT7}, v{vT6}, vcc')
e('s_waitcnt lgkmcnt(0)')
stamp(1)
e(f'buffer_load_dwordx4 {v4(vXS)}, v{vT3}, {srd(sX)}, 0 offen'); vm.issue('x')
e(f'buffer_load_dword v{vXS+4}, v{vT3}, {srd(sX)}, 0 offen offset:16'); vm.issue('x')
for k in range(3):
    e(f'buffer_load_ushort v{vX+k}, v{vT4}, {srd(sX)}, s{sT3} offen offset:{16*k}'); vm.issue('x')
for k in range(3):
    vo = vT5 if k < 2 else vM
    vf = vT6 if k < 2 else vRA
    for j in range(3):
        e(f'buffer_load_dwordx4 {v4(vWQ+20*k+4*j)}, v{vo}, {srd(sWQ)}, s{sWQB} offen offset:{128*j} nt'); vm.issue('wq')
    e(f'buffer_load_dwordx4 {v4(vWQ+20*k+12)}, v{vf}, {srd(sW1)}, s{sFB} offen nt'); vm.issue('wq')
    e(f'buffer_load_dwordx4 {v4(vWQ+20*k+16)}, v{vf}, {srd(sW3)}, s{sFB} offen nt'); vm.issue('wq')
    if k < 2:
        e(f's_add_u32 s{sWQB}, s{sWQB}, {8*12288}')
        e(f's_add_u32 s{sFB}, s{sFB}, {8*3072}')
def kload(G):
    for j in range(3):
        e(f'buffer_load_dwordx4 {v4(vD+12*G+4*j)}, v{vOFF}, {srd(sK)}, s{sKB} offen offset:{128*j} nt'); vm.issue(f'k{G}')
    e(f's_add_u32 s{sKB}, s{sKB}, 3072')
kload(0)
vCL = 24
for i in range(4): e(f'v_mov_b32 v{vCL+i}, -1')
e(f'v_lshlrev_b32 v{vT3}, 4, v{vLANE}')
e(f'v_lshlrev_b32 v{vT4}, 12, v{vT0}')
e(f'v_add_u32 v{vT4}, v{vT4}, v{vT2}')
e(f'v_cmp_gt_u32 vcc, 40, v{vLANE}')
nop(1)
e(f'v_cndmask_b32 v{vT4}, v{vT7}, v{vT4}, vcc')
e(f's_mul_i32 s{sT0}, s{sSPLIT}, {5*4096}')
e(f's_lshl_b32 s{sT1}, s{sHEAD}, 7')
e(f's_add_u32 s{sT0}, s{sT0}, s{sT1}')
e(f's_add_u32 s{sT0}, s{sT0}, {WS_Y}')
e(f's_cmp_eq_u32 s{sWAVE}, 3')
e(f's_cselect_b32 s{sT0}, s{sT0}, {OOB}')
e(f's_cselect_b32 s{sT1}, s{sSLOT}, {OOB}')
e(f's_cselect_b32 s{sT2}, 0, {OOB}')
e(f'buffer_store_dwordx4 {v4(vCL)}, v{vT3}, {srd(sWS)}, s{sT1} offen sc1'); vm.issue('clr')
e(f'buffer_store_dwordx4 {v4(vCL)}, v{vT3}, {srd(sWS)}, s{sT1} offen offset:1024 sc1'); vm.issue('clr')
e(f'buffer_store_dwordx4 {v4(vCL)}, v{vT4}, {srd(sWS)}, s{sT0} offen sc1'); vm.issue('clr')
kload(1)
e(f'v_mov_b32 v{vT3}, 0')
e(f'v_lshlrev_b32 v{vT4}, 2, v{vT1}')
e(f'ds_write_b32 v{vT4}, v{vT3} offset:{L_CNT}')
e('s_waitcnt lgkmcnt(0)')
e('s_barrier')
for G in range(2, 7): kload(G)
vm.wait('x')
e(f'v_lshlrev_b32 v{vT0}, 16, v{vXS}')
e(f'v_and_b32 v{vT1}, 0xffff0000, v{vXS}')
e(f'v_add_f32 v{vT3}, v{vT0}, v{vT1}')
for d in range(1, 5):
    e(f'v_lshlrev_b32 v{vT0}, 16, v{vXS+d}')
    e(f'v_and_b32 v{vT1}, 0xffff0000, v{vXS+d}')
    e(f'v_add_f32 v{vT3}, v{vT3}, v{vT0}')
    e(f'v_add_f32 v{vT3}, v{vT3}, v{vT1}')
allreduce64('v_add_f32', vT3, vT4)
e(f'v_mul_f32 v{vT3}, 0x3acccccd, v{vT3}')
e(f'v_mov_b32 v{vT5}, 0')
for d in range(5):
    e(f'v_lshlrev_b32 v{vT0}, 16, v{vXS+d}')
    e(f'v_and_b32 v{vT1}, 0xffff0000, v{vXS+d}')
    e(f'v_sub_f32 v{vT0}, v{vT0}, v{vT3}')
    e(f'v_sub_f32 v{vT1}, v{vT1}, v{vT3}')
    e(f'v_fmac_f32 v{vT5}, v{vT0}, v{vT0}')
    e(f'v_fmac_f32 v{vT5}, v{vT1}, v{vT1}')
allreduce64('v_add_f32', vT5, vT4)
e(f'v_mul_f32 v{vT5}, 0x3acccccd, v{vT5}')
bf16_round(vT3, vT3)
bf16_round(vT5, vT5)
e(f'v_add_f32 v{vT5}, 0x3727c5ac, v{vT5}')
bf16_round(vT5, vT5)
e(f'v_sqrt_f32 v{vT5}, v{vT5}')
nop(0)
bf16_round(vT5, vT5)
e(f'v_rcp_f32 v{vT6}, v{vT5}')
nop(0)
for k in range(3):
    e(f'v_lshlrev_b32 v{vT0}, 16, v{vX+k}')
    e(f'v_sub_f32 v{vT0}, v{vT0}, v{vT3}')
    bf16_round(vT0, vT0)
    e(f'v_mul_f32 v{vT4}, v{vT0}, v{vT6}')
    e(f'v_fma_f32 v{vT0}, -v{vT4}, v{vT5}, v{vT0}')
    e(f'v_fmac_f32 v{vT4}, v{vT0}, v{vT6}')
    e(f'v_cvt_pk_bf16_f32 v{vX+k}, v{vT4}, 0')
for i in range(40): e(f'v_mov_b32 v{vAC+i}, 0')
e(f'v_and_b32 v{vRA}, 7, v{vLANE}')
e(f'v_lshlrev_b32 v{vRA}, 5, v{vRA}')
e(f'v_lshrrev_b32 v{vT6}, 5, v{vLANE}')
e(f'v_lshlrev_b32 v{vT6}, 4, v{vT6}')
e(f'v_add_u32 v{vRA}, v{vRA}, v{vT6}')
e(f'v_bfe_u32 v{vT6}, v{vLANE}, 4, 1')
e(f'v_lshlrev_b32 v{vT6}, 3, v{vT6}')
e(f'v_add_u32 v{vRA}, v{vRA}, v{vT6}')
vm.wait('wq')
for k in range(3):
    e(f'v_lshlrev_b32 v{vT1}, 16, v{vX+k}')
    for j in range(3): axpy(vAC + 8 * j, vWQ + 20 * k + 4 * j, vX + k, vT1)
    axpy(vFA, vWQ + 20 * k + 12, vX + k, vT1)
    axpy(vFA + 8, vWQ + 20 * k + 16, vX + k, vT1)
reduce_r8(vAC, 5)
e(f's_mul_i32 s{sT0}, s{sWAVE}, 768')
e(f'v_add_u32 v{vT2}, s{sT0}, v{vRA}')
for j in range(3):
    e(f'ds_write_b64 v{vT2}, {v2(vAC+8*j)} offset:{L_RED+256*j}')
e(f's_mul_i32 s{sT0}, s{sWAVE}, 384')
e(f'v_add_u32 v{vT2}, s{sT0}, v{vRA}')
e(f'v_and_b32 v{vT1}, 7, v{vLANE}')
e(f'v_cmp_gt_u32 vcc, 6, v{vT1}')
e('s_and_saveexec_b64 s[28:29], vcc')
e(f'ds_write_b64 v{vT2}, {v2(vFA)} offset:{L_FRED}')
e(f'ds_write_b64 v{vT2}, {v2(vFA+8)} offset:{L_FRED+192}')
e('s_mov_b64 exec, s[28:29]')
lds_inc(C1)
vm.wait('clr')
if DBG:
    e(f's_lshr_b32 s{sT5}, s2, 5')
    e(f's_lshl_b32 s{sT5}, s{sT5}, 2')
    e(f's_add_u32 s{sT5}, s{sT5}, 224')
    e(f'v_mov_b32 v{vT0}, s{sT5}')
else:
    e(f'v_mov_b32 v{vT0}, s2')
e(f'v_mov_b32 v{vT1}, {OOB}')
e(f'v_cmp_eq_u32 vcc, 0, v{vLANE}')
nop(1)
e(f'v_cndmask_b32 v{vT0}, v{vT1}, v{vT0}, vcc')
if DBG:
    e(f's_and_b32 s{sT5}, s2, 31')
    e(f's_lshl_b32 s{sT5}, 1, s{sT5}')
    e(f'v_mov_b32 v{vT1}, s{sT5}')
    e(f'buffer_atomic_or v{vT1}, v{vT0}, {srd(sDBG)}, s{sT2} offen sc1'); vm.issue('flag')
else:
    e(f'v_mov_b32 v{vT1}, 1')
    e(f'buffer_store_byte v{vT1}, v{vT0}, {srd(sDBG)}, s{sT2} offen sc1'); vm.issue('flag')
stamp(2)
lds_inc(C1)
e(f's_cmp_ge_u32 s{sWAVE}, 2')
e('s_cbranch_scc1 L_pub_skip')
lds_spin(C1, 8, sleep=False)
vTM = 28
e(f'v_lshlrev_b32 v{vT2}, 4, v{vLANE}')
e(f's_cmp_eq_u32 s{sWAVE}, 0')
e(f's_cselect_b32 s{sT0}, 48, 24')
e(f's_cselect_b32 s{sT1}, {L_RED}, {L_FRED}')
e(f's_cselect_b32 s{sT3}, 384, 0')
e(f's_cselect_b32 s{sT4}, {SL_Q-SL_G}, 0')
e(f's_add_u32 s{sT3}, s{sT3}, 384')
e(f's_add_u32 s{sT4}, s{sT4}, {SL_G}')
e(f's_add_u32 s{sT4}, s{sT4}, s{sSLOT}')
e(f'v_add_u32 v{vT3}, s{sT1}, v{vT2}')
e(f'v_cmp_gt_u32 vcc, s{sT0}, v{vLANE}')
e('s_and_saveexec_b64 s[28:29], vcc')
for w in range(4):
    e(f'ds_read_b128 {v4(vTM+4*w)}, v{vT3}')
    if w < 3: e(f'v_add_u32 v{vT3}, s{sT3}, v{vT3}')
e('s_waitcnt lgkmcnt(0)')
for c in range(4):
    e(f'v_add_f32 v{vTM+c}, v{vTM+c}, v{vTM+4+c}')
    e(f'v_add_f32 v{vTM+8+c}, v{vTM+8+c}, v{vTM+12+c}')
for c in range(4): e(f'v_add_f32 v{vTM+c}, v{vTM+c}, v{vTM+8+c}')
for c in range(4): e(f'v_min_u32 v{vTM+c}, -2, v{vTM+c}')
e(f'buffer_store_dwordx4 {v4(vTM)}, v{vT2}, {srd(sWS)}, s{sT4} offen sc1')
e('s_mov_b64 exec, s[28:29]')
e('s_branch L_pub_done')
lab('L_pub_skip')
e(f'v_mov_b32 v{vT0}, {OOB}')
e(f'buffer_store_dword v{vT0}, v{vT0}, {srd(sWS)}, 0 offen')
lab('L_pub_done')
vm.issue('pub')
for G in range(7, 10): kload(G)
e(f's_cmp_eq_u32 s{sWAVE}, 0')
e('s_cbranch_scc1 L_k0')
import copy
vm_other = copy.deepcopy(vm)
vm_save = vm
vm = vm_other
for G in range(10, 16): kload(G)
e('s_branch L_kq')
lab('L_k0')
vm = vm_save
vFL = 28
e(f'v_lshlrev_b32 v{vT2}, 2, v{vLANE}')
if DBG:
    e(f'v_and_b32 v{vT2}, 28, v{vT2}')
    e(f'v_add_u32 v{vT2}, 224, v{vT2}')
e(f'buffer_load_dword v{vFL}, v{vT2}, {srd(sDBG)}, 0 offen sc1'); vm.issue('fl')
for G in range(10, 13): kload(G)
vm.wait('fl')
e(f's_mov_b32 s{sCNT}, 0')
lab('L_chk')
e(f'v_cmp_ne_u32 vcc, {-1 if DBG else 0x01010101}, v{vFL}')
e(f's_add_u32 s{sCNT}, s{sCNT}, 1')
e(f's_cmp_gt_u32 s{sCNT}, {SPIN}')
e('s_cbranch_scc1 L_chk_done')
e('s_cbranch_vccz L_chk_done')
e(f'buffer_load_dword v{vFL}, v{vT2}, {srd(sDBG)}, 0 offen sc1')
e('s_waitcnt vmcnt(0)')
e('s_branch L_chk')
lab('L_chk_done')
vQP = 28
e(f'v_lshlrev_b32 v{vT2}, 4, v{vLANE}')
e(f'v_mov_b32 v{vT1}, {OOB}')
e(f'v_cmp_gt_u32 vcc, 48, v{vLANE}')
nop(1)
e(f'v_cndmask_b32 v{vT2}, v{vT1}, v{vT2}, vcc')
for s in range(8): e(f's_add_u32 s{sC+s}, s{sGRP}, {s*WS_SLOT}')
for s in range(8):
    e(f'buffer_load_dwordx4 {v4(vQP+4*s)}, v{vT2}, {srd(sWS)}, s{sC+s} offen offset:{SL_Q} sc1'); vm.issue('qp')
for G in range(13, 16): kload(G)
vm.wait('qp')
e(f's_mov_b32 s{sCNT}, 0')
lab('L_qchk')
umax_chain(vT1, list(range(vQP, vQP + 32)))
e(f'v_cmp_eq_u32 vcc, -1, v{vT1}')
e(f's_add_u32 s{sCNT}, s{sCNT}, 1')
e(f's_cmp_gt_u32 s{sCNT}, {SPIN}')
e('s_cbranch_scc1 L_qchk_done')
e('s_cbranch_vccz L_qchk_done')
for s in range(8):
    e(f'buffer_load_dwordx4 {v4(vQP+4*s)}, v{vT2}, {srd(sWS)}, s{sC+s} offen offset:{SL_Q} sc1')
e('s_waitcnt vmcnt(0)')
e('s_branch L_qchk')
lab('L_qchk_done')
for step in (4, 2, 1):
    for w in range(step):
        for c in range(4):
            e(f'v_add_f32 v{vQP+4*w+c}, v{vQP+4*w+c}, v{vQP+4*(w+step)+c}')
e(f'v_cvt_pk_bf16_f32 v{vQP}, v{vQP}, v{vQP+1}')
e(f'v_cvt_pk_bf16_f32 v{vQP+1}, v{vQP+2}, v{vQP+3}')
e(f'v_lshlrev_b32 v{vT2}, 3, v{vLANE}')
e(f'v_cmp_gt_u32 vcc, 48, v{vLANE}')
e('s_and_saveexec_b64 s[28:29], vcc')
e(f'ds_write_b64 v{vT2}, {v2(vQP)} offset:{L_QBF}')
e('s_mov_b64 exec, s[28:29]')
lds_inc(C2)
lab('L_kq')
vm = vm_other
lds_spin(C2, 1)
stamp(3)
vQ = 16
vS = 28
e(f'v_and_b32 v{vT0}, 7, v{vLANE}')
e(f'v_lshlrev_b32 v{vT0}, 4, v{vT0}')
for j in range(3):
    e(f'ds_read_b128 {v4(vQ+4*j)}, v{vT0} offset:{L_QBF+128*j}')
e('s_waitcnt lgkmcnt(0)')
for G in range(16):
    vm.wait(f'k{G}')
    e(f'v_mov_b32 v{vS+G}, 0')
    e(f'v_mov_b32 v{vT0}, 0')
    e(f'v_mov_b32 v{vT1}, 0')
    accs = [vS + G, vT0, vT1]
    for d in range(4):
        for j in range(3):
            e(f'v_dot2c_f32_bf16 v{accs[j]}, v{vD+12*G+4*j+d}, v{vQ+4*j+d}')
    nop(2)
    e(f'v_add_f32 v{vT0}, v{vT0}, v{vT1}')
    e(f'v_add_f32 v{vS+G}, v{vS+G}, v{vT0}')
for G in range(16):
    e(f'v_add_f32 v{vS+G}, v{vS+G}, v{vS+G} quad_perm:[1,0,3,2] {DPP}')
for G in range(16):
    e(f'v_add_f32 v{vS+G}, v{vS+G}, v{vS+G} quad_perm:[2,3,0,1] {DPP}')
for G in range(16):
    e(f'v_add_f32 v{vS+G}, v{vS+G}, v{vS+G} row_half_mirror {DPP}')
for G in range(16):
    bf16_round(vS + G, vS + G)
    e(f'v_mul_f32 v{vS+G}, 0x3d93cd3a, v{vS+G}')
    bf16_round(vS + G, vS + G)
stamp(4)
e(f'v_max3_f32 v{vT2}, v{vS}, v{vS+1}, v{vS+2}')
for G in range(3, 15, 2): e(f'v_max3_f32 v{vT2}, v{vT2}, v{vS+G}, v{vS+G+1}')
e(f'v_max_f32 v{vT2}, v{vT2}, v{vS+15}')
nop(1)
e(f'v_max_f32 v{vT2}, v{vT2}, v{vT2} row_ror:8 {DPP}')
allreduce_rows('v_max_f32', vT2, vT1)
e(f's_lshl_b32 s{sT0}, s{sWAVE}, 2')
e(f'v_mov_b32 v{vT3}, s{sT0}')
e(f'ds_write_b32 v{vT3}, v{vT2} offset:{L_WMAX}')
lds_inc(C3)
lds_spin(C3, 4, sleep=False)
e(f'ds_read_b128 {v4(44)}, v{vT0} offset:{L_WMAX}')
e('s_waitcnt lgkmcnt(0)')
e(f'v_max3_f32 v{vM}, v44, v45, v46')
e(f'v_max_f32 v{vM}, v{vM}, v47')
e(f'v_mov_b32 v{vT2}, 0')
for G in range(16):
    e(f'v_sub_f32 v{vS+G}, v{vS+G}, v{vM}')
    e(f'v_mul_f32 v{vS+G}, 0x3fb8aa3b, v{vS+G}')
    e(f'v_exp_f32 v{vS+G}, v{vS+G}')
    nop(0)
    e(f'v_add_f32 v{vT2}, v{vT2}, v{vS+G}')
    e(f'v_cvt_pk_bf16_f32 v{vS+G}, v{vS+G}, 0')
e(f'v_lshrrev_b32 v{vT4}, 3, v{vLANE}')
e(f'v_lshlrev_b32 v{vT4}, 6, v{vT4}')
e(f's_lshl_b32 s{sT1}, s{sWAVE}, 9')
e(f'v_add_u32 v{vT4}, s{sT1}, v{vT4}')
e(f'v_and_b32 v{vT1}, 7, v{vLANE}')
e(f'v_cmp_eq_u32 vcc, 0, v{vT1}')
e('s_and_saveexec_b64 s[28:29], vcc')
for i in range(4): e(f'ds_write_b128 v{vT4}, {v4(vS+4*i)} offset:{L_P+16*i}')
e('s_mov_b64 exec, s[28:29]')
e('s_waitcnt lgkmcnt(0)')
e(f'v_mov_b32 v{vT1}, 1')
e(f'ds_write_b32 v{vT3}, v{vT1} offset:{C4}')
nop(1)
e(f'v_add_f32 v{vT2}, v{vT2}, v{vT2} row_ror:8 {DPP}')
allreduce_rows('v_add_f32', vT2, vT1)
e(f'ds_write_b32 v{vT3}, v{vT2} offset:{L_WSUM}')
lds_inc(C5)
e(f's_cmp_eq_u32 s{sWAVE}, 0')
e('s_cbranch_scc1 L_coef')
e(f's_cmp_eq_u32 s{sWAVE}, 2')
e('s_cbranch_scc1 L_ffn')
e(f's_cmp_eq_u32 s{sWAVE}, 3')
e('s_cbranch_scc1 L_kwo')
lds_spin(C5, 4, sleep=False)
e(f'ds_read_b128 {v4(44)}, v{vT0} offset:{L_WSUM}')
e('s_waitcnt lgkmcnt(0)')
e('v_add_f32 v44, v44, v45')
e('v_add_f32 v46, v46, v47')
e('v_add_f32 v45, v44, v46')
e(f'v_min_u32 v44, -2, v{vM}')
e('v_min_u32 v45, -2, v45')
e('s_mov_b64 exec, 1')
e(f'buffer_store_dwordx2 v[44:45], v{vT0}, {srd(sWS)}, s{sSLOT} offen offset:{SL_ML} sc1')
e('s_mov_b64 exec, -1')
e('s_branch L_kwo')
lab('L_coef')
vML = 44
e(f'v_and_b32 v{vT2}, 7, v{vLANE}')
e(f'v_mul_u32_u24 v{vT2}, {WS_SLOT}, v{vT2}')
e(f's_mov_b32 s{sCNT}, 0')
lab('L_pml')
e(f'buffer_load_dwordx2 {v2(vML)}, v{vT2}, {srd(sWS)}, s{sGRP} offen offset:{SL_ML} sc1')
e('s_waitcnt vmcnt(0)')
e(f'v_max_u32 v{vT1}, v{vML}, v{vML+1}')
poll_tail('L_pml', vT1)
e(f'v_mov_b32 v{vT1}, v{vML}')
allreduce8('v_max_f32', vT1)
e(f'v_sub_f32 v{vT1}, v{vML}, v{vT1}')
e(f'v_mul_f32 v{vT1}, 0x3fb8aa3b, v{vT1}')
e(f'v_exp_f32 v{vT1}, v{vT1}')
nop(0)
e(f'v_mul_f32 v{vT2}, v{vT1}, v{vML+1}')
allreduce8('v_add_f32', vT2)
e(f'v_rcp_f32 v{vT2}, v{vT2}')
nop(0)
e(f'v_mul_f32 v{vT1}, v{vT1}, v{vT2}')
e(f'v_and_b32 v{vT2}, 7, v{vLANE}')
e(f'v_lshlrev_b32 v{vT2}, 2, v{vT2}')
e(f'ds_write_b32 v{vT2}, v{vT1} offset:{L_COEF}')
e('s_branch L_kwo')
lab('L_ffn')
vG = 44
e(f'v_lshlrev_b32 v{vT2}, 2, v{vLANE}')
e(f'v_mov_b32 v{vT1}, {OOB}')
e(f'v_cmp_gt_u32 vcc, 48, v{vLANE}')
nop(1)
e(f'v_cndmask_b32 v{vT2}, v{vT1}, v{vT2}, vcc')
e(f's_mov_b32 s{sCNT}, 0')
for s in range(8): e(f's_add_u32 s{sC+s}, s{sGRP}, {s*WS_SLOT}')
lab('L_pff')
for s in range(8):
    e(f'buffer_load_dword v{vG+s}, v{vT2}, {srd(sWS)}, s{sC+s} offen offset:{SL_G} sc1')
    e(f'buffer_load_dword v{vG+8+s}, v{vT2}, {srd(sWS)}, s{sC+s} offen offset:{SL_U} sc1')
e('s_waitcnt vmcnt(0)')
umax_chain(vT1, list(range(vG, vG + 16)))
poll_tail('L_pff', vT1)
for s in range(1, 8):
    e(f'v_add_f32 v{vG}, v{vG}, v{vG+s}')
    e(f'v_add_f32 v{vG+8}, v{vG+8}, v{vG+8+s}')
bf16_round(vG, vG)
bf16_round(vG + 8, vG + 8)
e(f'v_mul_f32 v{vT1}, 0xbfb8aa3b, v{vG}')
e(f'v_exp_f32 v{vT1}, v{vT1}')
nop(0)
e(f'v_add_f32 v{vT1}, 1.0, v{vT1}')
e(f'v_rcp_f32 v{vT1}, v{vT1}')
nop(0)
e(f'v_mul_f32 v{vT1}, v{vG}, v{vT1}')
bf16_round(vT1, vT1)
e(f'v_mul_f32 v{vT1}, v{vT1}, v{vG+8}')
e(f'v_cvt_pk_bf16_f32 v{vT1}, v{vT1}, 0')
e(f'v_lshlrev_b32 v{vT2}, 2, v{vLANE}')
e(f'ds_write_b32 v{vT2}, v{vT1} offset:{L_U+768}')
lab('L_kwo')
wo_setup()
if not NODEFER: e('s_setprio 0')
vWO = vD
wo_issue(vm, vWO)
e('s_setprio 3')
e('s_waitcnt lgkmcnt(0)')
e('s_barrier')
stamp(5)
e('s_branch L_stagec')

lab('L_vwave')
vm = VM()
e('s_setprio 1')
vACC = 16
vP = 40
e('s_waitcnt lgkmcnt(0)')
e('s_barrier')
stamp(1)
for G in range(16):
    for j in range(3):
        e(f'buffer_load_dwordx4 {v4(vD+12*G+4*j)}, v{vOFF}, {srd(sV)}, s{sKB} offen offset:{128*j} nt'); vm.issue(f'v{G}')
    e(f's_add_u32 s{sKB}, s{sKB}, 3072')
stamp(2)
for i in range(24): e(f'v_mov_b32 v{vACC+i}, 0')
e(f'v_and_b32 v{vRA}, 7, v{vLANE}')
e(f'v_lshlrev_b32 v{vRA}, 5, v{vRA}')
e(f'v_lshrrev_b32 v{vT6}, 5, v{vLANE}')
e(f'v_lshlrev_b32 v{vT6}, 4, v{vT6}')
e(f'v_add_u32 v{vRA}, v{vRA}, v{vT6}')
e(f'v_bfe_u32 v{vT6}, v{vLANE}, 4, 1')
e(f'v_lshlrev_b32 v{vT6}, 3, v{vT6}')
e(f'v_add_u32 v{vRA}, v{vRA}, v{vT6}')
e(f's_sub_u32 s{sT4}, s{sWAVE}, 4')
e(f's_mul_i32 s{sT0}, s{sT4}, 768')
e(f'v_add_u32 v{vRA}, s{sT0}, v{vRA}')
wo_setup()
e(f's_cmp_eq_u32 s{sWAVE}, 4')
e(f's_cselect_b32 s{sWOB}, s{sWOB}, {OOB}')
e(f's_cselect_b32 s{sW2B}, s{sW2B}, {OOB}')
e(f's_cselect_b32 s{sT0}, s{sT0}, {OOB}')
e(f's_cselect_b32 s{sT1}, s{sT1}, {OOB}')
e(f's_lshl_b32 s{sT3}, s{sT4}, 2')
e(f'v_mov_b32 v{vT0}, s{sT3}')
e(f's_mov_b32 s{sCNT}, 0')
lab('L_pw')
e(f'ds_read_b32 v{vT1}, v{vT0} offset:{C4}')
e('s_waitcnt lgkmcnt(0)')
e(f'v_readfirstlane_b32 s{sT5}, v{vT1}')
e(f's_add_u32 s{sCNT}, s{sCNT}, 1')
e(f's_cmp_ge_u32 s{sT5}, 1')
e('s_cbranch_scc1 L_pwd')
e(f's_cmp_gt_u32 s{sCNT}, {SPIN*16}')
e('s_cbranch_scc1 L_pwd')
e('s_sleep 1')
e('s_branch L_pw')
lab('L_pwd')
stamp(3)
e(f'v_lshrrev_b32 v{vT2}, 3, v{vLANE}')
e(f'v_lshlrev_b32 v{vT2}, 6, v{vT2}')
e(f's_lshl_b32 s{sT3}, s{sT4}, 9')
e(f'v_add_u32 v{vT2}, s{sT3}, v{vT2}')
for i in range(4): e(f'ds_read_b128 {v4(vP+4*i)}, v{vT2} offset:{L_P+16*i}')
e('s_waitcnt lgkmcnt(0)')
e('s_setprio 3')
for G in range(16):
    vm.wait(f'v{G}')
    e(f'v_lshlrev_b32 v{vT0+(G&1)}, 16, v{vP+G}')
    for j in range(3):
        axpy(vACC + 8 * j, vD + 12 * G + 4 * j, vP + G, vT0 + (G & 1))
    if G == 2:
        wo_issue(vm, vD)
stamp(4)
reduce_r8(vACC, 3)
for j in range(3):
    e(f'ds_write_b64 v{vRA}, {v2(vACC+8*j)} offset:{L_RED+256*j}')
e('s_waitcnt lgkmcnt(0)')
e('s_barrier')
stamp(5)
e(f's_cmp_eq_u32 s{sWAVE}, 4')
e('s_cbranch_scc1 L_stagec')
e(f's_cmp_eq_u32 s{sWAVE}, 6')
e('s_cbranch_scc1 L_merge')
e(f's_cmp_eq_u32 s{sWAVE}, 7')
e('s_cbranch_scc1 L_final')
vTM = 128
e(f'v_lshlrev_b32 v{vT0}, 4, v{vLANE}')
e(f'v_cmp_gt_u32 vcc, 48, v{vLANE}')
e('s_and_saveexec_b64 s[28:29], vcc')
for w in range(4):
    e(f'ds_read_b128 {v4(vTM+4*w)}, v{vT0} offset:{L_RED+768*w}')
e('s_waitcnt lgkmcnt(0)')
for c in range(4):
    e(f'v_add_f32 v{vTM+c}, v{vTM+c}, v{vTM+4+c}')
    e(f'v_add_f32 v{vTM+8+c}, v{vTM+8+c}, v{vTM+12+c}')
for c in range(4): e(f'v_add_f32 v{vTM+c}, v{vTM+c}, v{vTM+8+c}')
for c in range(4): e(f'v_min_u32 v{vTM+c}, -2, v{vTM+c}')
e(f'buffer_store_dwordx4 {v4(vTM)}, v{vT0}, {srd(sWS)}, s{sSLOT} offen offset:{SL_O} sc1')
stamp(6)
stamp_out()
lab('L_merge')
vO = 128
vCF = 164
e(f'v_mov_b32 v{vT1}, 0')
e(f'ds_read_b128 {v4(vCF)}, v{vT1} offset:{L_COEF}')
e(f'ds_read_b128 {v4(vCF+4)}, v{vT1} offset:{L_COEF+16}')
e(f'v_lshlrev_b32 v{vT3}, 4, v{vLANE}')
e(f'v_mov_b32 v{vT1}, {OOB}')
e(f'v_cmp_gt_u32 vcc, 48, v{vLANE}')
nop(1)
e(f'v_cndmask_b32 v{vT0}, v{vT1}, v{vT3}, vcc')
e(f's_mov_b32 s{sCNT}, 0')
for s in range(8): e(f's_add_u32 s{sC+s}, s{sGRP}, {s*WS_SLOT}')
lab('L_po')
for s in range(8):
    e(f'buffer_load_dwordx4 {v4(vO+4*s)}, v{vT0}, {srd(sWS)}, s{sC+s} offen offset:{SL_O} sc1')
e('s_waitcnt vmcnt(0)')
umax_chain(vT1, list(range(vO, vO + 32)))
poll_tail('L_po', vT1)
e('s_waitcnt lgkmcnt(0)')
for c in range(4): e(f'v_mul_f32 v{vO+c}, v{vCF}, v{vO+c}')
for s in range(1, 8):
    for c in range(4): e(f'v_fmac_f32 v{vO+c}, v{vCF+s}, v{vO+4*s+c}')
for c in range(4): e(f'v_cvt_pk_bf16_f32 v{vO+c}, v{vO+c}, 0')
e(f'v_cmp_gt_u32 vcc, 48, v{vLANE}')
e('s_and_saveexec_b64 s[28:29], vcc')
e(f'ds_write_b128 v{vT3}, {v4(vO)} offset:{L_U}')
e('s_waitcnt lgkmcnt(0)')
e('s_barrier')
stamp(6)
stamp_out()
lab('L_stagec')
vA = 16
vU = 32
for i in range(16): e(f'v_mov_b32 v{vA+i}, 0')
e(f'v_lshrrev_b32 v{vT0}, 1, v{vLANE}')
e(f'v_mul_u32_u24 v{vT1}, 24, v{vT0}')
e(f'v_lshlrev_b32 v{vT0}, 2, v{vT0}')
e(f'ds_read_b32 v{vU+6}, v{vT0} offset:{L_U+768}')
e(f'ds_read_b32 v{vU+7}, v{vT0} offset:{L_U+768+128}')
e(f'v_and_b32 v{vT2}, 1, v{vLANE}')
e(f'v_lshlrev_b32 v{vT2}, 6, v{vT2}')
e(f'v_lshrrev_b32 v{vT3}, 5, v{vLANE}')
e(f'v_lshlrev_b32 v{vT3}, 5, v{vT3}')
e(f'v_add_u32 v{vT2}, v{vT2}, v{vT3}')
e(f'v_bfe_u32 v{vT3}, v{vLANE}, 4, 1')
e(f'v_lshlrev_b32 v{vT3}, 4, v{vT3}')
e(f'v_add_u32 v{vT2}, v{vT2}, v{vT3}')
e(f's_mul_i32 s{sT0}, s{sSPLIT}, 5')
e(f's_add_u32 s{sT0}, s{sT0}, s{sWAVE}')
e(f's_lshl_b32 s{sT0}, s{sT0}, 12')
e(f's_lshl_b32 s{sT1}, s{sHEAD}, 7')
e(f's_add_u32 s{sT0}, s{sT0}, s{sT1}')
e(f's_add_u32 s{sT0}, s{sT0}, {WS_Y}')
e(f'v_and_b32 v{vT3}, 14, v{vLANE}')
e(f'v_cmp_eq_u32 s[30:31], 0, v{vT3}')
e('s_waitcnt vmcnt(6) lgkmcnt(0)')
for i in range(6, 8): e(f'v_lshlrev_b32 v{vU+8+i}, 16, v{vU+i}')
for i in range(6, 8): axpy(vA + 8, vWO + 4 * i, vU + i, vU + 8 + i)
def red32(a):
    nop(2)
    for ee in range(4): e(f'v_permlane32_swap_b32 v{a+ee}, v{a+ee+4}')
    nop(1)
    for ee in range(4): e(f'v_add_f32 v{a+ee}, v{a+ee}, v{a+ee+4}')
    nop(1)
    for ee in range(2): e(f'v_permlane16_swap_b32 v{a+ee}, v{a+ee+2}')
    nop(1)
    for ee in range(2): e(f'v_add_f32 v{a+ee}, v{a+ee}, v{a+ee+2}')
    for dpp in ('row_ror:8', 'row_ror:4', 'quad_perm:[2,3,0,1]'):
        nop(1)
        for ee in range(2): e(f'v_add_f32 v{a+ee}, v{a+ee}, v{a+ee} {dpp} {DPP}')
red32(vA + 8)
e(f'v_min_u32 v{vA+10}, -2, v{vA+8}')
e(f'v_min_u32 v{vA+11}, -2, v{vA+9}')
e('s_waitcnt vmcnt(0)')
e('s_barrier')
stamp(6)
for i in range(3):
    e(f'ds_read_b64 {v2(vU+2*i)}, v{vT1} offset:{L_U+8*i}')
e('s_waitcnt lgkmcnt(0)')
for i in range(6): e(f'v_lshlrev_b32 v{vU+8+i}, 16, v{vU+i}')
for i in range(6): axpy(vA, vWO + 4 * i, vU + i, vU + 8 + i)
red32(vA)
e(f'v_min_u32 v{vA+8}, -2, v{vA}')
e(f'v_min_u32 v{vA+9}, -2, v{vA+1}')
e('s_mov_b64 exec, s[30:31]')
e(f'buffer_store_dwordx4 {v4(vA+8)}, v{vT2}, {srd(sWS)}, s{sT0} offen sc1')
stamp_out()
lab('L_final')
e('s_cmp_ge_u32 s2, 40')
e('s_cbranch_scc1 L_end2')
vY = 128
e(f'v_lshlrev_b32 v{vT0}, 4, v{vLANE}')
e(f's_lshl_b32 s{sT0}, s2, 12')
e(f's_add_u32 s{sT0}, s{sT0}, {WS_Y}')
e(f'v_and_b32 v{vT2}, 7, v{vLANE}')
e(f'v_lshlrev_b32 v{vT2}, 2, v{vT2}')
e(f'v_lshrrev_b32 v{vT3}, 5, v{vLANE}')
e(f'v_lshlrev_b32 v{vT3}, 1, v{vT3}')
e(f'v_add_u32 v{vT2}, v{vT2}, v{vT3}')
e(f's_lshl_b32 s{sT1}, s2, 5')
e(f'buffer_load_ushort v{vT4}, v{vT2}, {srd(sX)}, s{sT1} offen')
e(f'v_and_b32 v{vT3}, 24, v{vLANE}')
e(f'v_cmp_eq_u32 s[30:31], 0, v{vT3}')
e('s_barrier')
stamp(6)
e(f's_mov_b32 s{sCNT}, 0')
lab('L_py')
for i in range(4):
    e(f'buffer_load_dwordx4 {v4(vY+4*i)}, v{vT0}, {srd(sWS)}, s{sT0} offen offset:{1024*i} sc1')
e('s_waitcnt vmcnt(0)')
umax_chain(vT1, list(range(vY, vY + 16)))
poll_tail('L_py', vT1)
for c in range(4):
    e(f'v_add_f32 v{vY+c}, v{vY+c}, v{vY+4+c}')
    e(f'v_add_f32 v{vY+8+c}, v{vY+8+c}, v{vY+12+c}')
for c in range(4): e(f'v_add_f32 v{vY+c}, v{vY+c}, v{vY+8+c}')
nop(1)
e(f'v_permlane32_swap_b32 v{vY}, v{vY+1}')
e(f'v_permlane32_swap_b32 v{vY+2}, v{vY+3}')
nop(1)
e(f'v_add_f32 v{vY}, v{vY}, v{vY+1}')
e(f'v_add_f32 v{vY+2}, v{vY+2}, v{vY+3}')
nop(1)
e(f'v_add_f32 v{vY}, v{vY}, v{vY} row_ror:8 {DPP}')
e(f'v_add_f32 v{vY+2}, v{vY+2}, v{vY+2} row_ror:8 {DPP}')
nop(1)
e(f'v_mov_b32 v{vY+1}, v{vY}')
e(f'v_mov_b32 v{vY+3}, v{vY+2}')
nop(1)
e(f'v_permlane16_swap_b32 v{vY+1}, v{vY}')
e(f'v_permlane16_swap_b32 v{vY+3}, v{vY+2}')
nop(1)
e(f'v_add_f32 v{vY}, v{vY}, v{vY+1}')
e(f'v_add_f32 v{vY+2}, v{vY+2}, v{vY+3}')
bf16_round(vY, vY)
bf16_round(vY + 2, vY + 2)
e(f'v_lshlrev_b32 v{vT4}, 16, v{vT4}')
e(f'v_add_f32 v{vY}, v{vT4}, v{vY}')
bf16_round(vY, vY)
e(f'v_add_f32 v{vY}, v{vY}, v{vY+2}')
e(f'v_cvt_pk_bf16_f32 v{vY}, v{vY}, v{vY}')
if THR:
    e('s_memrealtime s[96:97]')
    e('s_waitcnt lgkmcnt(0)')
    e('s_sub_u32 s96, s96, s98')
    e(f's_cmp_gt_u32 s96, {THR[0]}')
    e('s_cselect_b32 s96, 0x7fc07fc0, 0')
    e(f'v_or_b32 v{vY}, s96, v{vY}')
e('s_mov_b64 exec, s[30:31]')
e(f'buffer_store_short v{vY}, v{vT2}, {srd(sOUT)}, s{sT1} offen')
lab('L_end2')
if STAMPS:
    e('s_mov_b64 exec, -1')
    lab('L_stamp_out')
    e(f's_memrealtime s[{sST+14}:{sST+15}]')
    e('s_waitcnt lgkmcnt(0)')
    for i in range(8): e(f'v_mov_b32 v{200+i}, s{sST+2*i}')
    e(f's_lshl_b32 s{sT0}, s2, 3')
    e(f's_add_u32 s{sT0}, s{sT0}, s{sWAVE}')
    e(f's_lshl_b32 s{sT0}, s{sT0}, 5')
    e(f's_add_u32 s{sT0}, s{sT0}, {WS_STAMP}')
    e(f'v_mov_b32 v{vT0}, 0')
    e('s_mov_b64 exec, 1')
    if DBG:
        e(f'v_not_b32 v200, v200')
        e(f's_cmp_ge_u32 s{sWAVE}, 4')
        e(f's_cselect_b32 s{sT1}, 32, 0')
        for i in (0,1,2,3,4,5,7):
            e(f'buffer_atomic_umax v{200+i}, v{vT0}, {srd(sDBG)}, s{sT1} offen offset:{4*i} sc1')
    e(f'buffer_store_dwordx4 {v4(200)}, v{vT0}, {srd(sWS)}, s{sT0} offen')
    e(f'buffer_store_dwordx4 {v4(204)}, v{vT0}, {srd(sWS)}, s{sT0} offen offset:16')
lab('L_end')
e('s_endpgm')
L.append('.section .rodata,"a"')
L.append('.p2align 6')
L.append(f'.amdhsa_kernel {NAME}')
L.append('  .amdhsa_next_free_vgpr 256')
L.append('  .amdhsa_next_free_sgpr 102')
L.append('  .amdhsa_accum_offset 256')
L.append('  .amdhsa_group_segment_fixed_size 0')
L.append('  .amdhsa_kernarg_size 96')
L.append('  .amdhsa_user_sgpr_count 2')
L.append('  .amdhsa_user_sgpr_kernarg_segment_ptr 1')
L.append('  .amdhsa_system_sgpr_workgroup_id_x 1')
L.append('.end_amdhsa_kernel')
open(sys.argv[1], 'w').write('\n'.join(L) + '\n')
```

```python
import sys, copy
STAMPS = '--stamps' in sys.argv
NODEFER = '--nodefer' in sys.argv
FFDEF = '--ffdef' in sys.argv
THR = [int(a.split('=')[1]) for a in sys.argv if a.startswith('--thr=')]
NAME = 'parallel_sum__sliding_block_cached__glu_gated_swiglu__decode_kernel'

L = []
def e(s): L.append('    ' + s)
def lab(s): L.append(s + ':')
def cmt(s): L.append('    ; ' + s)

HEAD_STRIDE = 32768 * 384
WIN = 28672 * 384
WS_SLOT = 2048
SL_O, SL_G, SL_U, SL_ML, SL_Q = 0, 768, 960, 1152, 1280
WS_Y = 256 * WS_SLOT
WS_Y_BYTES = 160 * 4096
WS_USED = WS_Y + WS_Y_BYTES
WS_STAMP = 2 << 20
OOB = 0x40000000
SPIN = 0x40000
NRED = 160

sX, sK, sV, sWQ, sWO, sW1, sW3, sW2, sOUT, sDBG, sWS = [40 + 4 * i for i in range(11)]
def srd(b): return f's[{b}:{b+3}]'
sHEAD, sSPLIT, sWAVE = 3, 4, 5
sT0, sT1, sT2, sT3 = 6, 7, 8, 9
sKB = 10
sWQB = 11
sSLOT = 12
sGRP = 13
sWOB = 14
sW2B = 15
sCNT = 16
sFB = 17
sT4 = 18
sT5 = 19
sC = 20
sRQ, sCH = 32, 33
sYB = 34
sST = 84

L_RED = 0
L_FRED = 3072
L_QBF = 4608
L_P = 5120
L_WMAX = 7168
L_WSUM = 7184
L_CNT = 7200
C1, C2, C3, C5, C6, C7, C8 = [L_CNT + 4 * i for i in range(7)]
C4 = L_CNT + 32
L_COEF = 7264
L_U = 7296
LDS_BYTES = 7680

vTID = 0
vOFF = 1
vT0, vT1, vT2, vT3 = 2, 3, 4, 5
vLANE = 6
vRA = 7
vM = 8
vT4, vT5, vT6, vT7 = 9, 10, 11, 12
vX = 13
vD = 64

class VM:
    def __init__(self): self.q = []
    def issue(self, tag): self.q.append(tag)
    def wait(self, tag):
        if tag not in self.q: return
        idx = max(i for i, t in enumerate(self.q) if t == tag)
        n = len(self.q) - 1 - idx
        assert n <= 63, n
        e(f's_waitcnt vmcnt({n})')
        self.q = self.q[idx + 1:]

def stamp(i):
    if STAMPS: e(f's_memrealtime s[{sST+2*i}:{sST+2*i+1}]')
def stamp_out():
    if STAMPS:
        e('s_mov_b64 exec, -1')
        e('s_branch L_stamp_out')
    else:
        e('s_endpgm')
def nop(n): e(f's_nop {n}')
def v4(b): return f'v[{b}:{b+3}]'
def v2(b): return f'v[{b}:{b+1}]'
DPP = 'row_mask:0xf bank_mask:0xf'

def bf16_round(dst, src):
    e(f'v_cvt_pk_bf16_f32 v{dst}, v{src}, v{src}')
    e(f'v_and_b32 v{dst}, 0xffff0000, v{dst}')

def allreduce_rows(op, v, tmp):
    nop(1)
    e(f'v_mov_b32 v{tmp}, v{v}')
    nop(1)
    e(f'v_permlane16_swap_b32 v{tmp}, v{v}')
    nop(1)
    e(f'{op} v{v}, v{tmp}, v{v}')
    nop(1)
    e(f'v_mov_b32 v{tmp}, v{v}')
    nop(1)
    e(f'v_permlane32_swap_b32 v{tmp}, v{v}')
    nop(1)
    e(f'{op} v{v}, v{tmp}, v{v}')

def allreduce8(op, v):
    nop(1)
    e(f'{op} v{v}, v{v}, v{v} quad_perm:[1,0,3,2] {DPP}')
    nop(1)
    e(f'{op} v{v}, v{v}, v{v} quad_perm:[2,3,0,1] {DPP}')
    nop(1)
    e(f'{op} v{v}, v{v}, v{v} row_half_mirror {DPP}')

def allreduce64(op, v, tmp):
    allreduce8(op, v)
    nop(1)
    e(f'{op} v{v}, v{v}, v{v} row_mirror {DPP}')
    allreduce_rows(op, v, tmp)

def reduce_r8(acc, nj):
    nop(2)
    for j in range(nj):
        for ee in range(4): e(f'v_permlane32_swap_b32 v{acc+8*j+ee}, v{acc+8*j+ee+4}')
    nop(1)
    for j in range(nj):
        for ee in range(4): e(f'v_add_f32 v{acc+8*j+ee}, v{acc+8*j+ee}, v{acc+8*j+ee+4}')
    nop(1)
    for j in range(nj):
        for ee in range(2): e(f'v_permlane16_swap_b32 v{acc+8*j+ee}, v{acc+8*j+ee+2}')
    nop(1)
    for j in range(nj):
        for ee in range(2): e(f'v_add_f32 v{acc+8*j+ee}, v{acc+8*j+ee}, v{acc+8*j+ee+2}')
    nop(1)
    for j in range(nj):
        for ee in range(2): e(f'v_add_f32 v{acc+8*j+ee}, v{acc+8*j+ee}, v{acc+8*j+ee} row_ror:8 {DPP}')

def axpy(acc, data, lo, hi):
    for d in range(4):
        e(f'v_dot2c_f32_bf16 v{acc+2*d}, v{data+d}, v{lo}')
        e(f'v_dot2c_f32_bf16 v{acc+2*d+1}, v{data+d}, v{hi}')

uid = [0]
def lds_spin(addr, target, sleep=True, vaddr=None):
    uid[0] += 1
    n = uid[0]
    if vaddr is None:
        e(f'v_mov_b32 v{vT0}, 0'); vaddr = vT0
    e(f's_mov_b32 s{sCNT}, 0')
    lab(f'L_sp{n}')
    e(f'ds_read_b32 v{vT1}, v{vaddr} offset:{addr}')
    e('s_waitcnt lgkmcnt(0)')
    e(f'v_readfirstlane_b32 s{sT5}, v{vT1}')
    e(f's_add_u32 s{sCNT}, s{sCNT}, 1')
    e(f's_cmp_ge_u32 s{sT5}, {target}')
    e(f's_cbranch_scc1 L_spd{n}')
    e(f's_cmp_gt_u32 s{sCNT}, {SPIN*16}')
    e(f's_cbranch_scc1 L_spd{n}')
    if sleep: e('s_sleep 1')
    e(f's_branch L_sp{n}')
    lab(f'L_spd{n}')

def lds_inc(addr):
    e('s_waitcnt lgkmcnt(0)')
    e(f'v_mov_b32 v{vT0}, 0')
    e(f'v_mov_b32 v{vT1}, 1')
    e('s_mov_b64 exec, 1')
    e(f'ds_add_u32 v{vT0}, v{vT1} offset:{addr}')
    e('s_mov_b64 exec, -1')

def poll_tail(name, chk):
    e(f'v_cmp_eq_u32 vcc, -1, v{chk}')
    e(f's_add_u32 s{sCNT}, s{sCNT}, 1')
    e(f's_cmp_gt_u32 s{sCNT}, {SPIN}')
    e(f's_cbranch_scc1 {name}_done')
    e(f's_cbranch_vccnz {name}')
    lab(f'{name}_done')

def umax_chain(dst, regs):
    e(f'v_max_u32 v{dst}, v{regs[0]}, v{regs[1]}')
    i = 2
    while i + 1 < len(regs):
        e(f'v_max3_u32 v{dst}, v{dst}, v{regs[i]}, v{regs[i+1]}'); i += 2
    if i < len(regs): e(f'v_max_u32 v{dst}, v{dst}, v{regs[i]}')

def red_addr():
    e(f'v_and_b32 v{vRA}, 7, v{vLANE}')
    e(f'v_lshlrev_b32 v{vRA}, 5, v{vRA}')
    e(f'v_lshrrev_b32 v{vT6}, 5, v{vLANE}')
    e(f'v_lshlrev_b32 v{vT6}, 4, v{vT6}')
    e(f'v_add_u32 v{vRA}, v{vRA}, v{vT6}')
    e(f'v_bfe_u32 v{vT6}, v{vLANE}, 4, 1')
    e(f'v_lshlrev_b32 v{vT6}, 3, v{vT6}')
    e(f'v_add_u32 v{vRA}, v{vRA}, v{vT6}')

def wo_setup():
    e(f'v_lshrrev_b32 v{vT0}, 3, v{vLANE}')
    e(f'v_and_b32 v{vT1}, 7, v{vLANE}')
    e(f'v_lshlrev_b32 v{vT1}, 4, v{vT1}')
    e(f'v_mul_u32_u24 v{vT4}, 1280, v{vT0}')
    e(f'v_add_u32 v{vT4}, v{vT4}, v{vT1}')
    e(f'v_mov_b32 v{vT2}, {OOB}')
    e(f'v_cmp_gt_u32 vcc, 32, v{vLANE}')
    nop(1)
    e(f'v_cndmask_b32 v{vT5}, v{vT2}, v{vT4}, vcc')
    e(f's_mul_i32 s{sT0}, s{sCH}, 640')
    e(f's_lshl_b32 s{sT1}, s{sWAVE}, 7')
    e(f's_add_u32 s{sT0}, s{sT0}, s{sT1}')
    e(f's_lshl_b32 s{sT1}, s{sHEAD}, 2')
    e(f's_add_u32 s{sT1}, s{sT1}, s{sRQ}')
    e(f's_mul_i32 s{sWOB}, s{sT1}, {48*1280}')
    e(f's_add_u32 s{sWOB}, s{sWOB}, s{sT0}')
    e(f's_mul_i32 s{sW2B}, s{sT1}, {12*1280}')
    e(f's_add_u32 s{sW2B}, s{sW2B}, s{sT0}')

def wo_issue(vm, base):
    e(f'buffer_load_dwordx4 {v4(base+24)}, v{vT4}, {srd(sW2)}, s{sW2B} offen nt'); vm.issue('wo')
    e(f's_add_u32 s{sW2B}, s{sW2B}, {8*1280}')
    e(f'buffer_load_dwordx4 {v4(base+28)}, v{vT5}, {srd(sW2)}, s{sW2B} offen nt'); vm.issue('wo')
    for i in range(6):
        e(f'buffer_load_dwordx4 {v4(base+4*i)}, v{vT4}, {srd(sWO)}, s{sWOB} offen nt'); vm.issue('wo')
        if i < 5: e(f's_add_u32 s{sWOB}, s{sWOB}, {8*1280}')

def y_addr(dst, tmp):
    e(f'v_and_b32 v{dst}, 7, v{vLANE}')
    e(f'v_lshlrev_b32 v{dst}, 13, v{dst}')
    e(f'v_lshrrev_b32 v{tmp}, 5, v{vLANE}')
    e(f'v_lshlrev_b32 v{tmp}, 12, v{tmp}')
    e(f'v_add_u32 v{dst}, v{dst}, v{tmp}')
    e(f'v_and_b32 v{tmp}, 16, v{vLANE}')
    e(f'v_add_u32 v{dst}, v{dst}, v{tmp}')

hdr = open('parallel_sum__sliding_block_cached__glu_gated_swiglu__decode.s.ref').read().split('\n')
for line in hdr:
    if line.startswith('; @launch'):
        L.append(f'; @launch grid=(256,1,1) block=(512,1,1) lds={LDS_BYTES}')
    elif line.startswith(';'):
        L.append(line)
    else:
        break
L.append('.amdgcn_target "amdgcn-amd-amdhsa--gfx950"')
L.append('.text')
L.append(f'.globl {NAME}')
L.append('.p2align 8')
L.append(f'.type {NAME},@function')
lab(NAME)
stamp(0)
if THR: e('s_memrealtime s[98:99]')
e('s_cmp_ge_u32 s2, 256')
e('s_cbranch_scc1 L_end')
for (sr, off) in [(sX, 0), (sWQ, 24), (sV, 16), (sW1, 48), (sW3, 56), (sK, 8), (sWS, 88), (sDBG, 80), (sWO, 32), (sW2, 64), (sOUT, 72)]:
    e(f's_load_dwordx2 s[{sr}:{sr+1}], s[0:1], {off}')
e(f'v_lshrrev_b32 v{vT0}, 6, v0')
e(f'v_and_b32 v{vLANE}, 63, v0')
e(f'v_readfirstlane_b32 s{sWAVE}, v{vT0}')
e(f'v_mov_b32 v{vT3}, 0')
e(f'v_and_b32 v{vT4}, 15, v0')
e(f'v_lshlrev_b32 v{vT4}, 2, v{vT4}')
e(f'ds_write_b32 v{vT4}, v{vT3} offset:{L_CNT}')
for (sr, nb) in [(sX, 1280), (sWQ, 7864320), (sK, 402653184), (sWS, (WS_STAMP + 65536*4) if STAMPS else WS_USED), (sV, 402653184), (sW1, 1966080),
                 (sW3, 1966080), (sDBG, 256), (sWO, 7864320), (sW2, 1966080), (sOUT, 1280)]:
    e(f's_mov_b32 s{sr+2}, {nb}')
    e(f's_mov_b32 s{sr+3}, 0x00020000')
e(f's_and_b32 s{sHEAD}, s2, 7')
e(f's_lshr_b32 s{sSPLIT}, s2, 3')
e(f's_and_b32 s{sT0}, s{sSPLIT}, 3')
e(f's_lshl_b32 s{sHEAD}, s{sHEAD}, 2')
e(f's_add_u32 s{sHEAD}, s{sHEAD}, s{sT0}')
e(f's_lshr_b32 s{sSPLIT}, s{sSPLIT}, 2')
e(f'v_lshrrev_b32 v{vT0}, 3, v{vLANE}')
e(f'v_and_b32 v{vT1}, 7, v{vLANE}')
e(f'v_lshlrev_b32 v{vT2}, 4, v{vT1}')
e(f'v_mul_u32_u24 v{vOFF}, 384, v{vT0}')
e(f'v_add_u32 v{vOFF}, v{vOFF}, v{vT2}')
e(f's_mul_i32 s{sKB}, s{sHEAD}, {HEAD_STRIDE}')
e(f's_mul_i32 s{sT0}, s{sSPLIT}, {512*384}')
e(f's_add_u32 s{sKB}, s{sKB}, s{sT0}')
e(f's_and_b32 s{sT1}, s{sWAVE}, 3')
e(f's_mul_i32 s{sT0}, s{sT1}, {128*384}')
e(f's_add_u32 s{sKB}, s{sKB}, s{sT0}')
e(f's_add_u32 s{sKB}, s{sKB}, {WIN}')
e(f's_cmp_ge_u32 s{sWAVE}, 4')
e('s_cbranch_scc1 L_vwave')

def common_scalars():
    e(f's_lshl_b32 s{sT0}, s{sHEAD}, 3')
    e(f's_mul_i32 s{sGRP}, s{sT0}, {WS_SLOT}')
    e(f's_mul_i32 s{sT0}, s{sSPLIT}, {WS_SLOT}')
    e(f's_add_u32 s{sSLOT}, s{sGRP}, s{sT0}')
    e(f's_lshr_b32 s{sRQ}, s{sSPLIT}, 1')
    e(f's_and_b32 s{sCH}, s{sSPLIT}, 1')
    e(f's_mul_i32 s{sYB}, s{sCH}, {80*4096}')
    e(f's_lshl_b32 s{sT0}, s{sHEAD}, 7')
    e(f's_add_u32 s{sYB}, s{sYB}, s{sT0}')
    e(f's_lshl_b32 s{sT0}, s{sRQ}, 5')
    e(f's_add_u32 s{sYB}, s{sYB}, s{sT0}')
    e(f's_add_u32 s{sYB}, s{sYB}, {WS_Y}')

vm = VM()
e('s_setprio 2')
vWQ = vD + 12 * 11
vAC = vD + 12 * 7
vFA = vAC + 24
vXS = 16
e(f's_mul_i32 s{sT0}, s{sSPLIT}, 80')
e(f's_mul_i32 s{sT1}, s{sWAVE}, 20')
e(f's_add_u32 s{sT0}, s{sT0}, s{sT1}')
e(f's_lshl_b32 s{sT3}, s{sT0}, 1')
e(f's_mul_i32 s{sWQB}, s{sT0}, 12288')
e(f's_mul_i32 s{sT1}, s{sHEAD}, 384')
e(f's_add_u32 s{sWQB}, s{sWQB}, s{sT1}')
e(f's_mul_i32 s{sFB}, s{sT0}, 3072')
e(f's_mul_i32 s{sT1}, s{sHEAD}, 96')
e(f's_add_u32 s{sFB}, s{sFB}, s{sT1}')
e(f'v_mul_u32_u24 v{vT3}, 20, v{vLANE}')
e(f'v_lshlrev_b32 v{vT4}, 1, v{vT0}')
e(f'v_mul_u32_u24 v{vT5}, 12288, v{vT0}')
e(f'v_add_u32 v{vT5}, v{vT5}, v{vT2}')
e(f'v_mul_u32_u24 v{vT6}, 3072, v{vT0}')
e(f'v_add_u32 v{vT6}, v{vT6}, v{vT2}')
e(f'v_mov_b32 v{vT7}, {OOB}')
e(f'v_cmp_gt_u32 vcc, 6, v{vT1}')
nop(1)
e(f'v_cndmask_b32 v{vT6}, v{vT7}, v{vT6}, vcc')
e(f'v_cmp_gt_u32 vcc, 32, v{vLANE}')
nop(1)
e(f'v_cndmask_b32 v{vM}, v{vT7}, v{vT5}, vcc')
e(f'v_cndmask_b32 v{vRA}, v{vT7}, v{vT6}, vcc')
e('s_waitcnt lgkmcnt(0)')
e('s_barrier')
stamp(1)
e(f'buffer_load_dwordx4 {v4(vXS)}, v{vT3}, {srd(sX)}, 0 offen'); vm.issue('x')
e(f'buffer_load_dword v{vXS+4}, v{vT3}, {srd(sX)}, 0 offen offset:16'); vm.issue('x')
for k in range(3):
    e(f'buffer_load_ushort v{vX+k}, v{vT4}, {srd(sX)}, s{sT3} offen offset:{16*k}'); vm.issue('x')
ffp = '' if FFDEF else ' nt'
for k in range(3):
    vo = vT5 if k < 2 else vM
    vf = vT6 if k < 2 else vRA
    for j in range(3):
        e(f'buffer_load_dwordx4 {v4(vWQ+20*k+4*j)}, v{vo}, {srd(sWQ)}, s{sWQB} offen offset:{128*j} nt'); vm.issue('wq')
    e(f'buffer_load_dwordx4 {v4(vWQ+20*k+12)}, v{vf}, {srd(sW1)}, s{sFB} offen{ffp}'); vm.issue('wq')
    e(f'buffer_load_dwordx4 {v4(vWQ+20*k+16)}, v{vf}, {srd(sW3)}, s{sFB} offen{ffp}'); vm.issue('wq')
    if k < 2:
        e(f's_add_u32 s{sWQB}, s{sWQB}, {8*12288}')
        e(f's_add_u32 s{sFB}, s{sFB}, {8*3072}')
def kload(G):
    for j in range(3):
        e(f'buffer_load_dwordx4 {v4(vD+12*G+4*j)}, v{vOFF}, {srd(sK)}, s{sKB} offen offset:{128*j} nt'); vm.issue(f'k{G}')
    e(f's_add_u32 s{sKB}, s{sKB}, 3072')
common_scalars()
vCL = 24
for i in range(4): e(f'v_mov_b32 v{vCL+i}, -1')
e(f'v_lshlrev_b32 v{vT3}, 4, v{vLANE}')
e(f'v_lshrrev_b32 v{vT4}, 1, v{vLANE}')
e(f'v_lshlrev_b32 v{vT4}, 12, v{vT4}')
e(f'v_and_b32 v{vT5}, 1, v{vLANE}')
e(f'v_lshlrev_b32 v{vT5}, 4, v{vT5}')
e(f'v_add_u32 v{vT4}, v{vT4}, v{vT5}')
e(f'v_cmp_gt_u32 vcc, 32, v{vLANE}')
nop(1)
e(f'v_cndmask_b32 v{vT5}, v{vT7}, v{vT4}, vcc')
e(f's_cmp_eq_u32 s{sWAVE}, 3')
e(f's_cselect_b32 s{sT0}, s{sYB}, {OOB}')
e(f's_cselect_b32 s{sT1}, s{sSLOT}, {OOB}')
e(f's_cselect_b32 s{sT2}, 0, {OOB}')
e(f'buffer_store_dwordx4 {v4(vCL)}, v{vT3}, {srd(sWS)}, s{sT1} offen sc1'); vm.issue('clr')
e(f'buffer_store_dwordx4 {v4(vCL)}, v{vT3}, {srd(sWS)}, s{sT1} offen offset:1024 sc1'); vm.issue('clr')
e(f'buffer_store_dwordx4 {v4(vCL)}, v{vT4}, {srd(sWS)}, s{sT0} offen sc1'); vm.issue('clr')
e(f's_add_u32 s{sT0}, s{sT0}, {32*4096}')
e(f'buffer_store_dwordx4 {v4(vCL)}, v{vT4}, {srd(sWS)}, s{sT0} offen sc1'); vm.issue('clr')
e(f's_add_u32 s{sT0}, s{sT0}, {32*4096}')
e(f'buffer_store_dwordx4 {v4(vCL)}, v{vT5}, {srd(sWS)}, s{sT0} offen sc1'); vm.issue('clr')
vm.wait('x')
e(f'v_lshlrev_b32 v{vT0}, 16, v{vXS}')
e(f'v_and_b32 v{vT1}, 0xffff0000, v{vXS}')
e(f'v_add_f32 v{vT3}, v{vT0}, v{vT1}')
for d in range(1, 5):
    e(f'v_lshlrev_b32 v{vT0}, 16, v{vXS+d}')
    e(f'v_and_b32 v{vT1}, 0xffff0000, v{vXS+d}')
    e(f'v_add_f32 v{vT3}, v{vT3}, v{vT0}')
    e(f'v_add_f32 v{vT3}, v{vT3}, v{vT1}')
allreduce64('v_add_f32', vT3, vT4)
e(f'v_mul_f32 v{vT3}, 0x3acccccd, v{vT3}')
e(f'v_mov_b32 v{vT5}, 0')
for d in range(5):
    e(f'v_lshlrev_b32 v{vT0}, 16, v{vXS+d}')
    e(f'v_and_b32 v{vT1}, 0xffff0000, v{vXS+d}')
    e(f'v_sub_f32 v{vT0}, v{vT0}, v{vT3}')
    e(f'v_sub_f32 v{vT1}, v{vT1}, v{vT3}')
    e(f'v_fmac_f32 v{vT5}, v{vT0}, v{vT0}')
    e(f'v_fmac_f32 v{vT5}, v{vT1}, v{vT1}')
allreduce64('v_add_f32', vT5, vT4)
e(f'v_mul_f32 v{vT5}, 0x3acccccd, v{vT5}')
bf16_round(vT3, vT3)
bf16_round(vT5, vT5)
e(f'v_add_f32 v{vT5}, 0x3727c5ac, v{vT5}')
bf16_round(vT5, vT5)
e(f'v_sqrt_f32 v{vT5}, v{vT5}')
nop(0)
bf16_round(vT5, vT5)
e(f'v_rcp_f32 v{vT6}, v{vT5}')
nop(0)
for k in range(3):
    e(f'v_lshlrev_b32 v{vT0}, 16, v{vX+k}')
    e(f'v_sub_f32 v{vT0}, v{vT0}, v{vT3}')
    bf16_round(vT0, vT0)
    e(f'v_mul_f32 v{vT4}, v{vT0}, v{vT6}')
    e(f'v_fma_f32 v{vT0}, -v{vT4}, v{vT5}, v{vT0}')
    e(f'v_fmac_f32 v{vT4}, v{vT0}, v{vT6}')
    e(f'v_cvt_pk_bf16_f32 v{vX+k}, v{vT4}, 0')
for i in range(40): e(f'v_mov_b32 v{vAC+i}, 0')
red_addr()
vm.wait('wq')
for k in range(3):
    e(f'v_lshlrev_b32 v{vT1}, 16, v{vX+k}')
    for j in range(3): axpy(vAC + 8 * j, vWQ + 20 * k + 4 * j, vX + k, vT1)
    axpy(vFA, vWQ + 20 * k + 12, vX + k, vT1)
    axpy(vFA + 8, vWQ + 20 * k + 16, vX + k, vT1)
reduce_r8(vAC, 5)
e(f's_mul_i32 s{sT0}, s{sWAVE}, 768')
e(f'v_add_u32 v{vT2}, s{sT0}, v{vRA}')
for j in range(3):
    e(f'ds_write_b64 v{vT2}, {v2(vAC+8*j)} offset:{L_RED+256*j}')
e(f's_mul_i32 s{sT0}, s{sWAVE}, 384')
e(f'v_add_u32 v{vT2}, s{sT0}, v{vRA}')
e(f'v_and_b32 v{vT1}, 7, v{vLANE}')
e(f'v_cmp_gt_u32 vcc, 6, v{vT1}')
e('s_and_saveexec_b64 s[28:29], vcc')
e(f'ds_write_b64 v{vT2}, {v2(vFA)} offset:{L_FRED}')
e(f'ds_write_b64 v{vT2}, {v2(vFA+8)} offset:{L_FRED+192}')
e('s_mov_b64 exec, s[28:29]')
vm.wait('clr')
lds_inc(C1)
e(f'v_mov_b32 v{vT0}, s2')
e(f'v_mov_b32 v{vT1}, {OOB}')
e(f'v_cmp_eq_u32 vcc, 0, v{vLANE}')
nop(1)
e(f'v_cndmask_b32 v{vT0}, v{vT1}, v{vT0}, vcc')
e(f'v_mov_b32 v{vT1}, 1')
e(f'buffer_store_byte v{vT1}, v{vT0}, {srd(sDBG)}, s{sT2} offen sc1'); vm.issue('flag')
stamp(2)
e(f's_cmp_ge_u32 s{sWAVE}, 2')
e('s_cbranch_scc1 L_pub_skip')
lds_spin(C1, 4, sleep=False)
vTM = 28
e(f'v_lshlrev_b32 v{vT2}, 4, v{vLANE}')
e(f's_cmp_eq_u32 s{sWAVE}, 0')
e(f's_cselect_b32 s{sT0}, 48, 24')
e(f's_cselect_b32 s{sT1}, {L_RED}, {L_FRED}')
e(f's_cselect_b32 s{sT3}, 384, 0')
e(f's_cselect_b32 s{sT4}, {SL_Q-SL_G}, 0')
e(f's_add_u32 s{sT3}, s{sT3}, 384')
e(f's_add_u32 s{sT4}, s{sT4}, {SL_G}')
e(f's_add_u32 s{sT4}, s{sT4}, s{sSLOT}')
e(f'v_add_u32 v{vT3}, s{sT1}, v{vT2}')
e(f'v_cmp_gt_u32 vcc, s{sT0}, v{vLANE}')
e('s_and_saveexec_b64 s[28:29], vcc')
for w in range(4):
    e(f'ds_read_b128 {v4(vTM+4*w)}, v{vT3}')
    if w < 3: e(f'v_add_u32 v{vT3}, s{sT3}, v{vT3}')
e('s_waitcnt lgkmcnt(0)')
for c in range(4):
    e(f'v_add_f32 v{vTM+c}, v{vTM+c}, v{vTM+4+c}')
    e(f'v_add_f32 v{vTM+8+c}, v{vTM+8+c}, v{vTM+12+c}')
for c in range(4): e(f'v_add_f32 v{vTM+c}, v{vTM+c}, v{vTM+8+c}')
for c in range(4): e(f'v_min_u32 v{vTM+c}, -2, v{vTM+c}')
e(f'buffer_store_dwordx4 {v4(vTM)}, v{vT2}, {srd(sWS)}, s{sT4} offen sc1')
e('s_mov_b64 exec, s[28:29]')
e('s_branch L_pub_done')
lab('L_pub_skip')
e(f'v_mov_b32 v{vT0}, {OOB}')
e(f'buffer_store_dword v{vT0}, v{vT0}, {srd(sWS)}, 0 offen')
lab('L_pub_done')
vm.issue('pub')
KA, KB_, KC = 4, 8, 12
for G in range(0, KA): kload(G)
e(f's_cmp_eq_u32 s{sWAVE}, 0')
e('s_cbranch_scc1 L_k0')
vm_other = copy.deepcopy(vm)
vm_save = vm
vm = vm_other
for G in range(KA, 16): kload(G)
e('s_branch L_kq')
lab('L_k0')
vm = vm_save
vFL = 32
e(f'v_lshlrev_b32 v{vT2}, 2, v{vLANE}')
e(f'buffer_load_dword v{vFL}, v{vT2}, {srd(sDBG)}, 0 offen sc1'); vm.issue('fl')
for G in range(KA, KB_): kload(G)
vm.wait('fl')
e(f's_mov_b32 s{sCNT}, 0')
lab('L_chk')
e(f'v_cmp_ne_u32 vcc, 0x01010101, v{vFL}')
e(f's_add_u32 s{sCNT}, s{sCNT}, 1')
e(f's_cmp_gt_u32 s{sCNT}, {SPIN}')
e('s_cbranch_scc1 L_chk_done')
e('s_cbranch_vccz L_chk_done')
e(f'buffer_load_dword v{vFL}, v{vT2}, {srd(sDBG)}, 0 offen sc1')
e('s_waitcnt vmcnt(0)')
e('s_branch L_chk')
lab('L_chk_done')
vQP = 28
e(f'v_lshlrev_b32 v{vT2}, 4, v{vLANE}')
e(f'v_mov_b32 v{vT1}, {OOB}')
e(f'v_cmp_gt_u32 vcc, 48, v{vLANE}')
nop(1)
e(f'v_cndmask_b32 v{vT2}, v{vT1}, v{vT2}, vcc')
for s in range(8): e(f's_add_u32 s{sC+s}, s{sGRP}, {s*WS_SLOT}')
for s in range(8):
    e(f'buffer_load_dwordx4 {v4(vQP+4*s)}, v{vT2}, {srd(sWS)}, s{sC+s} offen offset:{SL_Q} sc1'); vm.issue('qp')
for G in range(KB_, KC): kload(G)
vm.wait('qp')
e(f's_mov_b32 s{sCNT}, 0')
lab('L_qchk')
umax_chain(vT1, list(range(vQP, vQP + 32)))
e(f'v_cmp_eq_u32 vcc, -1, v{vT1}')
e(f's_add_u32 s{sCNT}, s{sCNT}, 1')
e(f's_cmp_gt_u32 s{sCNT}, {SPIN}')
e('s_cbranch_scc1 L_qchk_done')
e('s_cbranch_vccz L_qchk_done')
for s in range(8):
    e(f'buffer_load_dwordx4 {v4(vQP+4*s)}, v{vT2}, {srd(sWS)}, s{sC+s} offen offset:{SL_Q} sc1')
e('s_waitcnt vmcnt(0)')
e('s_branch L_qchk')
lab('L_qchk_done')
for step in (4, 2, 1):
    for w in range(step):
        for c in range(4):
            e(f'v_add_f32 v{vQP+4*w+c}, v{vQP+4*w+c}, v{vQP+4*(w+step)+c}')
e(f'v_cvt_pk_bf16_f32 v{vQP}, v{vQP}, v{vQP+1}')
e(f'v_cvt_pk_bf16_f32 v{vQP+1}, v{vQP+2}, v{vQP+3}')
e(f'v_lshlrev_b32 v{vT2}, 3, v{vLANE}')
e(f'v_cmp_gt_u32 vcc, 48, v{vLANE}')
e('s_and_saveexec_b64 s[28:29], vcc')
e(f'ds_write_b64 v{vT2}, {v2(vQP)} offset:{L_QBF}')
e('s_mov_b64 exec, s[28:29]')
lds_inc(C2)
for G in range(KC, 16): kload(G)
lab('L_kq')
vm = vm_other
lds_spin(C2, 1)
stamp(3)
vQ = 16
vS = 28
e(f'v_and_b32 v{vT0}, 7, v{vLANE}')
e(f'v_lshlrev_b32 v{vT0}, 4, v{vT0}')
for j in range(3):
    e(f'ds_read_b128 {v4(vQ+4*j)}, v{vT0} offset:{L_QBF+128*j}')
e('s_waitcnt lgkmcnt(0)')
for G in range(16):
    vm.wait(f'k{G}')
    e(f'v_mov_b32 v{vS+G}, 0')
    e(f'v_mov_b32 v{vT0}, 0')
    e(f'v_mov_b32 v{vT1}, 0')
    accs = [vS + G, vT0, vT1]
    for d in range(4):
        for j in range(3):
            e(f'v_dot2c_f32_bf16 v{accs[j]}, v{vD+12*G+4*j+d}, v{vQ+4*j+d}')
    nop(2)
    e(f'v_add_f32 v{vT0}, v{vT0}, v{vT1}')
    e(f'v_add_f32 v{vS+G}, v{vS+G}, v{vT0}')
for G in range(16):
    e(f'v_add_f32 v{vS+G}, v{vS+G}, v{vS+G} quad_perm:[1,0,3,2] {DPP}')
for G in range(16):
    e(f'v_add_f32 v{vS+G}, v{vS+G}, v{vS+G} quad_perm:[2,3,0,1] {DPP}')
for G in range(16):
    e(f'v_add_f32 v{vS+G}, v{vS+G}, v{vS+G} row_half_mirror {DPP}')
for G in range(16):
    bf16_round(vS + G, vS + G)
    e(f'v_mul_f32 v{vS+G}, 0x3d93cd3a, v{vS+G}')
    bf16_round(vS + G, vS + G)
stamp(4)
e(f'v_max3_f32 v{vT2}, v{vS}, v{vS+1}, v{vS+2}')
for G in range(3, 15, 2): e(f'v_max3_f32 v{vT2}, v{vT2}, v{vS+G}, v{vS+G+1}')
e(f'v_max_f32 v{vT2}, v{vT2}, v{vS+15}')
nop(1)
e(f'v_max_f32 v{vT2}, v{vT2}, v{vT2} row_ror:8 {DPP}')
allreduce_rows('v_max_f32', vT2, vT1)
e(f's_lshl_b32 s{sT0}, s{sWAVE}, 2')
e(f'v_mov_b32 v{vT3}, s{sT0}')
e(f'ds_write_b32 v{vT3}, v{vT2} offset:{L_WMAX}')
lds_inc(C3)
lds_spin(C3, 4, sleep=False)
e(f'ds_read_b128 {v4(44)}, v{vT0} offset:{L_WMAX}')
e('s_waitcnt lgkmcnt(0)')
e(f'v_max3_f32 v{vM}, v44, v45, v46')
e(f'v_max_f32 v{vM}, v{vM}, v47')
e(f'v_mov_b32 v{vT2}, 0')
for G in range(16):
    e(f'v_sub_f32 v{vS+G}, v{vS+G}, v{vM}')
    e(f'v_mul_f32 v{vS+G}, 0x3fb8aa3b, v{vS+G}')
    e(f'v_exp_f32 v{vS+G}, v{vS+G}')
    nop(0)
    e(f'v_add_f32 v{vT2}, v{vT2}, v{vS+G}')
    e(f'v_cvt_pk_bf16_f32 v{vS+G}, v{vS+G}, 0')
e(f'v_lshrrev_b32 v{vT4}, 3, v{vLANE}')
e(f'v_lshlrev_b32 v{vT4}, 6, v{vT4}')
e(f's_lshl_b32 s{sT1}, s{sWAVE}, 9')
e(f'v_add_u32 v{vT4}, s{sT1}, v{vT4}')
e(f'v_and_b32 v{vT1}, 7, v{vLANE}')
e(f'v_cmp_eq_u32 vcc, 0, v{vT1}')
e('s_and_saveexec_b64 s[28:29], vcc')
for i in range(4): e(f'ds_write_b128 v{vT4}, {v4(vS+4*i)} offset:{L_P+16*i}')
e('s_mov_b64 exec, s[28:29]')
e('s_waitcnt lgkmcnt(0)')
e(f'v_mov_b32 v{vT1}, 1')
e(f'ds_write_b32 v{vT3}, v{vT1} offset:{C4}')
nop(1)
e(f'v_add_f32 v{vT2}, v{vT2}, v{vT2} row_ror:8 {DPP}')
allreduce_rows('v_add_f32', vT2, vT1)
e(f'ds_write_b32 v{vT3}, v{vT2} offset:{L_WSUM}')
lds_inc(C5)
e(f's_cmp_eq_u32 s{sWAVE}, 0')
e('s_cbranch_scc1 L_coef')
e(f's_cmp_eq_u32 s{sWAVE}, 2')
e('s_cbranch_scc1 L_ffn')
e(f's_cmp_eq_u32 s{sWAVE}, 3')
e('s_cbranch_scc1 L_kwo')
lds_spin(C5, 4, sleep=False)
e(f'ds_read_b128 {v4(44)}, v{vT0} offset:{L_WSUM}')
e('s_waitcnt lgkmcnt(0)')
e('v_add_f32 v44, v44, v45')
e('v_add_f32 v46, v46, v47')
e('v_add_f32 v45, v44, v46')
e(f'v_min_u32 v44, -2, v{vM}')
e('v_min_u32 v45, -2, v45')
e('s_mov_b64 exec, 1')
e(f'buffer_store_dwordx2 v[44:45], v{vT0}, {srd(sWS)}, s{sSLOT} offen offset:{SL_ML} sc1')
e('s_mov_b64 exec, -1')
e('s_branch L_kwo')
lab('L_coef')
vML = 44
e(f'v_and_b32 v{vT2}, 7, v{vLANE}')
e(f'v_mul_u32_u24 v{vT2}, {WS_SLOT}, v{vT2}')
e(f's_mov_b32 s{sCNT}, 0')
lab('L_pml')
e(f'buffer_load_dwordx2 {v2(vML)}, v{vT2}, {srd(sWS)}, s{sGRP} offen offset:{SL_ML} sc1')
e('s_waitcnt vmcnt(0)')
e(f'v_max_u32 v{vT1}, v{vML}, v{vML+1}')
poll_tail('L_pml', vT1)
e(f'v_mov_b32 v{vT1}, v{vML}')
allreduce8('v_max_f32', vT1)
e(f'v_sub_f32 v{vT1}, v{vML}, v{vT1}')
e(f'v_mul_f32 v{vT1}, 0x3fb8aa3b, v{vT1}')
e(f'v_exp_f32 v{vT1}, v{vT1}')
nop(0)
e(f'v_mul_f32 v{vT2}, v{vT1}, v{vML+1}')
allreduce8('v_add_f32', vT2)
e(f'v_rcp_f32 v{vT2}, v{vT2}')
nop(0)
e(f'v_mul_f32 v{vT3}, v{vT1}, v{vT2}')
e(f'v_and_b32 v{vT2}, 7, v{vLANE}')
e(f'v_lshlrev_b32 v{vT2}, 2, v{vT2}')
e(f'ds_write_b32 v{vT2}, v{vT3} offset:{L_COEF}')
lds_inc(C7)
e('s_branch L_kwo')
lab('L_ffn')
vG = 44
e(f'v_lshlrev_b32 v{vT2}, 2, v{vLANE}')
e(f'v_mov_b32 v{vT1}, {OOB}')
e(f'v_cmp_gt_u32 vcc, 12, v{vLANE}')
nop(1)
e(f'v_cndmask_b32 v{vT2}, v{vT1}, v{vT2}, vcc')
e(f's_mov_b32 s{sCNT}, 0')
e(f's_mul_i32 s{sT0}, s{sRQ}, 48')
e(f's_add_u32 s{sT0}, s{sT0}, s{sGRP}')
for s in range(8): e(f's_add_u32 s{sC+s}, s{sT0}, {s*WS_SLOT}')
lab('L_pff')
for s in range(8):
    e(f'buffer_load_dword v{vG+s}, v{vT2}, {srd(sWS)}, s{sC+s} offen offset:{SL_G} sc1')
    e(f'buffer_load_dword v{vG+8+s}, v{vT2}, {srd(sWS)}, s{sC+s} offen offset:{SL_U} sc1')
e('s_waitcnt vmcnt(0)')
umax_chain(vT1, list(range(vG, vG + 16)))
poll_tail('L_pff', vT1)
for s in range(1, 8):
    e(f'v_add_f32 v{vG}, v{vG}, v{vG+s}')
    e(f'v_add_f32 v{vG+8}, v{vG+8}, v{vG+8+s}')
bf16_round(vG, vG)
bf16_round(vG + 8, vG + 8)
e(f'v_mul_f32 v{vT1}, 0xbfb8aa3b, v{vG}')
e(f'v_exp_f32 v{vT1}, v{vT1}')
nop(0)
e(f'v_add_f32 v{vT1}, 1.0, v{vT1}')
e(f'v_rcp_f32 v{vT1}, v{vT1}')
nop(0)
e(f'v_mul_f32 v{vT1}, v{vG}, v{vT1}')
bf16_round(vT1, vT1)
e(f'v_mul_f32 v{vT1}, v{vT1}, v{vG+8}')
e(f'v_cvt_pk_bf16_f32 v{vT3}, v{vT1}, 0')
e(f'v_and_b32 v{vT2}, 7, v{vLANE}')
e(f'v_lshlrev_b32 v{vT2}, 5, v{vT2}')
e(f'v_lshrrev_b32 v{vT4}, 3, v{vLANE}')
e(f'v_lshlrev_b32 v{vT4}, 2, v{vT4}')
e(f'v_add_u32 v{vT2}, v{vT2}, v{vT4}')
e('s_mov_b64 exec, 0xffff')
e(f'ds_write_b32 v{vT2}, v{vT3} offset:{L_U+24}')
e('s_mov_b64 exec, -1')
lds_inc(C6)
lab('L_kwo')
wo_setup()
if not NODEFER: e('s_setprio 0')
vWO = vD
wo_issue(vm, vWO)
e('s_setprio 3')
stamp(5)
e('s_branch L_stagec')

lab('L_vwave')
vm = VM()
e('s_setprio 1')
vACC = 16
vP = 40
e('s_waitcnt lgkmcnt(0)')
e('s_barrier')
stamp(1)
for G in range(16):
    for j in range(3):
        e(f'buffer_load_dwordx4 {v4(vD+12*G+4*j)}, v{vOFF}, {srd(sV)}, s{sKB} offen offset:{128*j} nt'); vm.issue(f'v{G}')
    e(f's_add_u32 s{sKB}, s{sKB}, 3072')
stamp(2)
common_scalars()
for i in range(24): e(f'v_mov_b32 v{vACC+i}, 0')
red_addr()
e(f's_sub_u32 s{sT4}, s{sWAVE}, 4')
e(f's_mul_i32 s{sT0}, s{sT4}, 768')
e(f'v_add_u32 v{vRA}, s{sT0}, v{vRA}')
wo_setup()
e(f's_cmp_eq_u32 s{sWAVE}, 4')
e(f's_cselect_b32 s{sWOB}, s{sWOB}, {OOB}')
e(f's_cselect_b32 s{sW2B}, s{sW2B}, {OOB}')
e(f's_lshl_b32 s{sT3}, s{sT4}, 2')
e(f'v_mov_b32 v{vT0}, s{sT3}')
lds_spin(C4, 1, vaddr=vT0)
stamp(3)
e(f'v_lshrrev_b32 v{vT2}, 3, v{vLANE}')
e(f'v_lshlrev_b32 v{vT2}, 6, v{vT2}')
e(f's_lshl_b32 s{sT3}, s{sT4}, 9')
e(f'v_add_u32 v{vT2}, s{sT3}, v{vT2}')
for i in range(4): e(f'ds_read_b128 {v4(vP+4*i)}, v{vT2} offset:{L_P+16*i}')
e('s_waitcnt lgkmcnt(0)')
e('s_setprio 3')
for G in range(16):
    vm.wait(f'v{G}')
    e(f'v_lshlrev_b32 v{vT0+(G&1)}, 16, v{vP+G}')
    for j in range(3):
        axpy(vACC + 8 * j, vD + 12 * G + 4 * j, vP + G, vT0 + (G & 1))
    if G == 2:
        wo_issue(vm, vD)
stamp(4)
reduce_r8(vACC, 3)
for j in range(3):
    e(f'ds_write_b64 v{vRA}, {v2(vACC+8*j)} offset:{L_RED+256*j}')
lds_inc(C8)
stamp(5)
e(f's_cmp_eq_u32 s{sWAVE}, 4')
e('s_cbranch_scc1 L_stagec')
e(f's_cmp_eq_u32 s{sWAVE}, 6')
e('s_cbranch_scc1 L_merge')
e(f's_cmp_eq_u32 s{sWAVE}, 7')
e('s_cbranch_scc1 L_final')
vTM = 128
e(f'v_lshlrev_b32 v{vT2}, 4, v{vLANE}')
lds_spin(C8, 4, sleep=False)
e(f'v_cmp_gt_u32 vcc, 48, v{vLANE}')
e('s_and_saveexec_b64 s[28:29], vcc')
for w in range(4):
    e(f'ds_read_b128 {v4(vTM+4*w)}, v{vT2} offset:{L_RED+768*w}')
e('s_waitcnt lgkmcnt(0)')
for c in range(4):
    e(f'v_add_f32 v{vTM+c}, v{vTM+c}, v{vTM+4+c}')
    e(f'v_add_f32 v{vTM+8+c}, v{vTM+8+c}, v{vTM+12+c}')
for c in range(4): e(f'v_add_f32 v{vTM+c}, v{vTM+c}, v{vTM+8+c}')
for c in range(4): e(f'v_min_u32 v{vTM+c}, -2, v{vTM+c}')
e(f'buffer_store_dwordx4 {v4(vTM)}, v{vT2}, {srd(sWS)}, s{sSLOT} offen offset:{SL_O} sc1')
stamp(6)
stamp_out()
lab('L_merge')
vO = 128
vCF = 164
lds_spin(C7, 1)
e(f'ds_read_b128 {v4(vCF)}, v{vT0} offset:{L_COEF}')
e(f'ds_read_b128 {v4(vCF+4)}, v{vT0} offset:{L_COEF+16}')
e(f'v_lshlrev_b32 v{vT3}, 2, v{vLANE}')
e(f'v_mov_b32 v{vT1}, {OOB}')
e(f'v_cmp_gt_u32 vcc, 48, v{vLANE}')
nop(1)
e(f'v_cndmask_b32 v{vT0}, v{vT1}, v{vT3}, vcc')
e(f'v_and_b32 v{vT3}, 7, v{vLANE}')
e(f'v_lshlrev_b32 v{vT3}, 5, v{vT3}')
e(f'v_lshrrev_b32 v{vT4}, 3, v{vLANE}')
e(f'v_lshlrev_b32 v{vT4}, 2, v{vT4}')
e(f'v_add_u32 v{vT3}, v{vT3}, v{vT4}')
e(f'v_cmp_gt_u32 s[30:31], 48, v{vLANE}')
e(f's_mov_b32 s{sCNT}, 0')
e(f's_mul_i32 s{sT0}, s{sRQ}, 192')
e(f's_add_u32 s{sT0}, s{sT0}, s{sGRP}')
for s in range(8): e(f's_add_u32 s{sC+s}, s{sT0}, {s*WS_SLOT}')
lab('L_po')
for s in range(8):
    e(f'buffer_load_dword v{vO+s}, v{vT0}, {srd(sWS)}, s{sC+s} offen offset:{SL_O} sc1')
e('s_waitcnt vmcnt(0)')
umax_chain(vT1, list(range(vO, vO + 8)))
poll_tail('L_po', vT1)
e('s_waitcnt lgkmcnt(0)')
e(f'v_mul_f32 v{vO}, v{vCF}, v{vO}')
e(f'v_mul_f32 v{vO+1}, v{vCF+1}, v{vO+1}')
for s in range(2, 8): e(f'v_fmac_f32 v{vO+(s&1)}, v{vCF+s}, v{vO+s}')
e(f'v_add_f32 v{vO}, v{vO}, v{vO+1}')
e(f'v_cvt_pk_bf16_f32 v{vO}, v{vO}, 0')
e('s_mov_b64 exec, s[30:31]')
e(f'ds_write_b32 v{vT3}, v{vO} offset:{L_U}')
e('s_waitcnt lgkmcnt(0)')
e('s_barrier')
stamp(6)
stamp_out()
lab('L_stagec')
vA = 16
vU = 32
for i in range(16): e(f'v_mov_b32 v{vA+i}, 0')
lds_spin(C6, 1)
e(f'v_lshrrev_b32 v{vT4}, 3, v{vLANE}')
e(f'v_lshlrev_b32 v{vT4}, 5, v{vT4}')
e(f'ds_read_b64 {v2(vU+6)}, v{vT4} offset:{L_U+24}')
y_addr(vT2, vT3)
e(f's_lshl_b32 s{sT0}, s{sWAVE}, 16')
e(f's_add_u32 s{sT0}, s{sT0}, s{sYB}')
e(f'v_and_b32 v{vT3}, 8, v{vLANE}')
e(f'v_cmp_eq_u32 s[30:31], 0, v{vT3}')
e('s_waitcnt vmcnt(6) lgkmcnt(0)')
for i in range(6, 8): e(f'v_lshlrev_b32 v{vU+8+i}, 16, v{vU+i}')
for i in range(6, 8): axpy(vA + 8, vWO + 4 * i, vU + i, vU + 8 + i)
reduce_r8(vA + 8, 1)
e(f'v_min_u32 v{vA+10}, -2, v{vA+8}')
e(f'v_min_u32 v{vA+11}, -2, v{vA+9}')
e('s_waitcnt vmcnt(0)')
e('s_barrier')
stamp(6)
e(f'ds_read_b128 {v4(vU)}, v{vT4} offset:{L_U}')
e(f'ds_read_b64 {v2(vU+4)}, v{vT4} offset:{L_U+16}')
e('s_waitcnt lgkmcnt(0)')
for i in range(6): e(f'v_lshlrev_b32 v{vU+8+i}, 16, v{vU+i}')
for i in range(6): axpy(vA, vWO + 4 * i, vU + i, vU + 8 + i)
reduce_r8(vA, 1)
e(f'v_min_u32 v{vA+8}, -2, v{vA}')
e(f'v_min_u32 v{vA+9}, -2, v{vA+1}')
e('s_mov_b64 exec, s[30:31]')
e(f'buffer_store_dwordx4 {v4(vA+8)}, v{vT2}, {srd(sWS)}, s{sT0} offen sc1')
stamp_out()
lab('L_final')
e(f's_cmp_ge_u32 s2, {NRED}')
e('s_cbranch_scc1 L_end2')
vY = 128
e(f'v_lshlrev_b32 v{vT0}, 4, v{vLANE}')
e(f's_lshl_b32 s{sT0}, s2, 12')
e(f's_add_u32 s{sT0}, s{sT0}, {WS_Y}')
e(f'v_and_b32 v{vT2}, 1, v{vLANE}')
e(f'v_lshlrev_b32 v{vT2}, 2, v{vT2}')
e(f'v_lshrrev_b32 v{vT3}, 5, v{vLANE}')
e(f'v_lshlrev_b32 v{vT3}, 1, v{vT3}')
e(f'v_add_u32 v{vT2}, v{vT2}, v{vT3}')
e(f's_lshl_b32 s{sT1}, s2, 3')
e(f'buffer_load_ushort v{vT4}, v{vT2}, {srd(sX)}, s{sT1} offen')
e(f'v_and_b32 v{vT3}, 30, v{vLANE}')
e(f'v_cmp_eq_u32 s[30:31], 0, v{vT3}')
e('s_barrier')
stamp(6)
e(f's_mov_b32 s{sCNT}, 0')
lab('L_py')
for i in range(4):
    e(f'buffer_load_dwordx4 {v4(vY+4*i)}, v{vT0}, {srd(sWS)}, s{sT0} offen offset:{1024*i} sc1')
e('s_waitcnt vmcnt(0)')
umax_chain(vT1, list(range(vY, vY + 16)))
poll_tail('L_py', vT1)
for c in range(4):
    e(f'v_add_f32 v{vY+c}, v{vY+c}, v{vY+4+c}')
    e(f'v_add_f32 v{vY+8+c}, v{vY+8+c}, v{vY+12+c}')
for c in range(4): e(f'v_add_f32 v{vY+c}, v{vY+c}, v{vY+8+c}')
nop(1)
e(f'v_permlane32_swap_b32 v{vY}, v{vY+1}')
e(f'v_permlane32_swap_b32 v{vY+2}, v{vY+3}')
nop(1)
e(f'v_add_f32 v{vY}, v{vY}, v{vY+1}')
e(f'v_add_f32 v{vY+2}, v{vY+2}, v{vY+3}')
for dpp in ('row_ror:8', 'row_ror:4', 'quad_perm:[2,3,0,1]'):
    nop(1)
    e(f'v_add_f32 v{vY}, v{vY}, v{vY} {dpp} {DPP}')
    e(f'v_add_f32 v{vY+2}, v{vY+2}, v{vY+2} {dpp} {DPP}')
nop(1)
e(f'v_mov_b32 v{vY+1}, v{vY}')
e(f'v_mov_b32 v{vY+3}, v{vY+2}')
nop(1)
e(f'v_permlane16_swap_b32 v{vY+1}, v{vY}')
e(f'v_permlane16_swap_b32 v{vY+3}, v{vY+2}')
nop(1)
e(f'v_add_f32 v{vY}, v{vY}, v{vY+1}')
e(f'v_add_f32 v{vY+2}, v{vY+2}, v{vY+3}')
bf16_round(vY, vY)
bf16_round(vY + 2, vY + 2)
e(f'v_lshlrev_b32 v{vT4}, 16, v{vT4}')
e(f'v_add_f32 v{vY}, v{vT4}, v{vY}')
bf16_round(vY, vY)
e(f'v_add_f32 v{vY}, v{vY}, v{vY+2}')
e(f'v_cvt_pk_bf16_f32 v{vY}, v{vY}, v{vY}')
if THR:
    e('s_memrealtime s[96:97]')
    e('s_waitcnt lgkmcnt(0)')
    e('s_sub_u32 s96, s96, s98')
    e(f's_cmp_gt_u32 s96, {THR[0]}')
    e('s_cselect_b32 s96, 0x7fc07fc0, 0')
    e(f'v_or_b32 v{vY}, s96, v{vY}')
e('s_mov_b64 exec, s[30:31]')
e(f'buffer_store_short v{vY}, v{vT2}, {srd(sOUT)}, s{sT1} offen')
lab('L_end2')
if STAMPS:
    e('s_mov_b64 exec, -1')
    lab('L_stamp_out')
    e(f's_memrealtime s[{sST+14}:{sST+15}]')
    e('s_waitcnt lgkmcnt(0)')
    for i in range(8): e(f'v_mov_b32 v{200+i}, s{sST+2*i}')
    e(f's_lshl_b32 s{sT0}, s2, 3')
    e(f's_add_u32 s{sT0}, s{sT0}, s{sWAVE}')
    e(f's_lshl_b32 s{sT0}, s{sT0}, 5')
    e(f's_add_u32 s{sT0}, s{sT0}, {WS_STAMP}')
    e(f'v_mov_b32 v{vT0}, 0')
    e('s_mov_b64 exec, 1')
    e(f'buffer_store_dwordx4 {v4(200)}, v{vT0}, {srd(sWS)}, s{sT0} offen')
    e(f'buffer_store_dwordx4 {v4(204)}, v{vT0}, {srd(sWS)}, s{sT0} offen offset:16')
lab('L_end')
e('s_endpgm')
L.append('.section .rodata,"a"')
L.append('.p2align 6')
L.append(f'.amdhsa_kernel {NAME}')
L.append('  .amdhsa_next_free_vgpr 256')
L.append('  .amdhsa_next_free_sgpr 102')
L.append('  .amdhsa_accum_offset 256')
L.append('  .amdhsa_group_segment_fixed_size 0')
L.append('  .amdhsa_kernarg_size 96')
L.append('  .amdhsa_user_sgpr_count 2')
L.append('  .amdhsa_user_sgpr_kernarg_segment_ptr 1')
L.append('  .amdhsa_system_sgpr_workgroup_id_x 1')
L.append('.end_amdhsa_kernel')
open(sys.argv[1], 'w').write('\n'.join(L) + '\n')
```

```python
import sys, copy
STAMPS = '--stamps' in sys.argv
NODEFER = '--nodefer' in sys.argv
FFDEF = '--ffdef' in sys.argv
THR = [int(a.split('=')[1]) for a in sys.argv if a.startswith('--thr=')]
NAME = 'parallel_sum__sliding_block_cached__glu_gated_swiglu__decode_kernel'

L = []
def e(s): L.append('    ' + s)
def lab(s): L.append(s + ':')
def cmt(s): L.append('    ; ' + s)

HEAD_STRIDE = 32768 * 384
WIN = 28672 * 384
WS_SLOT = 2048
SL_O, SL_G, SL_U, SL_ML, SL_Q = 0, 768, 960, 1152, 1280
WS_Y = 256 * WS_SLOT
WS_Y_BYTES = 160 * 4096
WS_USED = WS_Y + WS_Y_BYTES
WS_STAMP = 2 << 20
OOB = 0x40000000
SPIN = 0x40000
NRED = 80

sX, sK, sV, sWQ, sWO, sW1, sW3, sW2, sOUT, sDBG, sWS = [40 + 4 * i for i in range(11)]
def srd(b): return f's[{b}:{b+3}]'
sHEAD, sSPLIT, sWAVE = 3, 4, 5
sT0, sT1, sT2, sT3 = 6, 7, 8, 9
sKB = 10
sWQB = 11
sSLOT = 12
sGRP = 13
sWOB = 14
sW2B = 15
sCNT = 16
sFB = 17
sT4 = 18
sT5 = 19
sC = 20
sRQ, sCH = 32, 33
sYB = 34
sKE = 39
sST = 84

L_RED = 0
L_FRED = 3072
L_QBF = 4608
L_P = 5120
L_WMAX = 7168
L_WSUM = 7184
L_CNT = 7200
C1, C2, C3, C5, C6, C7, C8 = [L_CNT + 4 * i for i in range(7)]
C4 = L_CNT + 32
L_COEF = 7264
L_U = 7296
LDS_BYTES = 7680

vTID = 0
vOFF = 1
vT0, vT1, vT2, vT3 = 2, 3, 4, 5
vLANE = 6
vRA = 7
vM = 8
vT4, vT5, vT6, vT7 = 9, 10, 11, 12
vX = 13
vD = 64

class VM:
    def __init__(self): self.q = []
    def issue(self, tag): self.q.append(tag)
    def wait(self, tag):
        if tag not in self.q: return
        idx = max(i for i, t in enumerate(self.q) if t == tag)
        n = len(self.q) - 1 - idx
        assert n <= 63, n
        e(f's_waitcnt vmcnt({n})')
        self.q = self.q[idx + 1:]

def stamp(i):
    if STAMPS: e(f's_memrealtime s[{sST+2*i}:{sST+2*i+1}]')
def stamp_out():
    if STAMPS:
        e('s_mov_b64 exec, -1')
        e('s_branch L_stamp_out')
    else:
        e('s_endpgm')
def nop(n): e(f's_nop {n}')
def v4(b): return f'v[{b}:{b+3}]'
def v2(b): return f'v[{b}:{b+1}]'
DPP = 'row_mask:0xf bank_mask:0xf'

def bf16_round(dst, src):
    e(f'v_cvt_pk_bf16_f32 v{dst}, v{src}, v{src}')
    e(f'v_and_b32 v{dst}, 0xffff0000, v{dst}')

def allreduce_rows(op, v, tmp):
    nop(1)
    e(f'v_mov_b32 v{tmp}, v{v}')
    nop(1)
    e(f'v_permlane16_swap_b32 v{tmp}, v{v}')
    nop(1)
    e(f'{op} v{v}, v{tmp}, v{v}')
    nop(1)
    e(f'v_mov_b32 v{tmp}, v{v}')
    nop(1)
    e(f'v_permlane32_swap_b32 v{tmp}, v{v}')
    nop(1)
    e(f'{op} v{v}, v{tmp}, v{v}')

def allreduce8(op, v):
    nop(1)
    e(f'{op} v{v}, v{v}, v{v} quad_perm:[1,0,3,2] {DPP}')
    nop(1)
    e(f'{op} v{v}, v{v}, v{v} quad_perm:[2,3,0,1] {DPP}')
    nop(1)
    e(f'{op} v{v}, v{v}, v{v} row_half_mirror {DPP}')

def allreduce64(op, v, tmp):
    allreduce8(op, v)
    nop(1)
    e(f'{op} v{v}, v{v}, v{v} row_mirror {DPP}')
    allreduce_rows(op, v, tmp)

def reduce_r8(acc, nj):
    nop(2)
    for j in range(nj):
        for ee in range(4): e(f'v_permlane32_swap_b32 v{acc+8*j+ee}, v{acc+8*j+ee+4}')
    nop(1)
    for j in range(nj):
        for ee in range(4): e(f'v_add_f32 v{acc+8*j+ee}, v{acc+8*j+ee}, v{acc+8*j+ee+4}')
    nop(1)
    for j in range(nj):
        for ee in range(2): e(f'v_permlane16_swap_b32 v{acc+8*j+ee}, v{acc+8*j+ee+2}')
    nop(1)
    for j in range(nj):
        for ee in range(2): e(f'v_add_f32 v{acc+8*j+ee}, v{acc+8*j+ee}, v{acc+8*j+ee+2}')
    nop(1)
    for j in range(nj):
        for ee in range(2): e(f'v_add_f32 v{acc+8*j+ee}, v{acc+8*j+ee}, v{acc+8*j+ee} row_ror:8 {DPP}')

def axpy(acc, data, lo, hi):
    for d in range(4):
        e(f'v_dot2c_f32_bf16 v{acc+2*d}, v{data+d}, v{lo}')
        e(f'v_dot2c_f32_bf16 v{acc+2*d+1}, v{data+d}, v{hi}')

uid = [0]
def lds_spin(addr, target, sleep=True, vaddr=None):
    uid[0] += 1
    n = uid[0]
    if vaddr is None:
        e(f'v_mov_b32 v{vT0}, 0'); vaddr = vT0
    e(f's_mov_b32 s{sCNT}, 0')
    lab(f'L_sp{n}')
    e(f'ds_read_b32 v{vT1}, v{vaddr} offset:{addr}')
    e('s_waitcnt lgkmcnt(0)')
    e(f'v_readfirstlane_b32 s{sT5}, v{vT1}')
    e(f's_add_u32 s{sCNT}, s{sCNT}, 1')
    e(f's_cmp_ge_u32 s{sT5}, {target}')
    e(f's_cbranch_scc1 L_spd{n}')
    e(f's_cmp_gt_u32 s{sCNT}, {SPIN*16}')
    e(f's_cbranch_scc1 L_spd{n}')
    if sleep: e('s_sleep 1')
    e(f's_branch L_sp{n}')
    lab(f'L_spd{n}')

def lds_inc(addr):
    e('s_waitcnt lgkmcnt(0)')
    e(f'v_mov_b32 v{vT0}, 0')
    e(f'v_mov_b32 v{vT1}, 1')
    e('s_mov_b64 exec, 1')
    e(f'ds_add_u32 v{vT0}, v{vT1} offset:{addr}')
    e('s_mov_b64 exec, -1')

def poll_tail(name, chk):
    e(f'v_cmp_eq_u32 vcc, -1, v{chk}')
    e(f's_add_u32 s{sCNT}, s{sCNT}, 1')
    e(f's_cmp_gt_u32 s{sCNT}, {SPIN}')
    e(f's_cbranch_scc1 {name}_done')
    e(f's_cbranch_vccnz {name}')
    lab(f'{name}_done')

def umax_chain(dst, regs):
    e(f'v_max_u32 v{dst}, v{regs[0]}, v{regs[1]}')
    i = 2
    while i + 1 < len(regs):
        e(f'v_max3_u32 v{dst}, v{dst}, v{regs[i]}, v{regs[i+1]}'); i += 2
    if i < len(regs): e(f'v_max_u32 v{dst}, v{dst}, v{regs[i]}')

def red_addr():
    e(f'v_and_b32 v{vRA}, 7, v{vLANE}')
    e(f'v_lshlrev_b32 v{vRA}, 5, v{vRA}')
    e(f'v_lshrrev_b32 v{vT6}, 5, v{vLANE}')
    e(f'v_lshlrev_b32 v{vT6}, 4, v{vT6}')
    e(f'v_add_u32 v{vRA}, v{vRA}, v{vT6}')
    e(f'v_bfe_u32 v{vT6}, v{vLANE}, 4, 1')
    e(f'v_lshlrev_b32 v{vT6}, 3, v{vT6}')
    e(f'v_add_u32 v{vRA}, v{vRA}, v{vT6}')

def wo_setup():
    e(f'v_lshrrev_b32 v{vT0}, 3, v{vLANE}')
    e(f'v_and_b32 v{vT1}, 7, v{vLANE}')
    e(f'v_lshlrev_b32 v{vT1}, 4, v{vT1}')
    e(f'v_mul_u32_u24 v{vT4}, 1280, v{vT0}')
    e(f'v_add_u32 v{vT4}, v{vT4}, v{vT1}')
    e(f'v_mov_b32 v{vT2}, {OOB}')
    e(f'v_cmp_gt_u32 vcc, 32, v{vLANE}')
    nop(1)
    e(f'v_cndmask_b32 v{vT5}, v{vT2}, v{vT4}, vcc')
    e(f's_mul_i32 s{sT0}, s{sCH}, 640')
    e(f's_lshl_b32 s{sT1}, s{sWAVE}, 7')
    e(f's_add_u32 s{sT0}, s{sT0}, s{sT1}')
    e(f's_lshl_b32 s{sT1}, s{sHEAD}, 2')
    e(f's_add_u32 s{sT1}, s{sT1}, s{sRQ}')
    e(f's_mul_i32 s{sWOB}, s{sT1}, {48*1280}')
    e(f's_add_u32 s{sWOB}, s{sWOB}, s{sT0}')
    e(f's_mul_i32 s{sW2B}, s{sT1}, {12*1280}')
    e(f's_add_u32 s{sW2B}, s{sW2B}, s{sT0}')

def wo_issue(vm, base):
    e(f'buffer_load_dwordx4 {v4(base+24)}, v{vT4}, {srd(sW2)}, s{sW2B} offen nt'); vm.issue('wo')
    e(f's_add_u32 s{sW2B}, s{sW2B}, {8*1280}')
    e(f'buffer_load_dwordx4 {v4(base+28)}, v{vT5}, {srd(sW2)}, s{sW2B} offen nt'); vm.issue('wo')
    for i in range(6):
        e(f'buffer_load_dwordx4 {v4(base+4*i)}, v{vT4}, {srd(sWO)}, s{sWOB} offen nt'); vm.issue('wo')
        if i < 5: e(f's_add_u32 s{sWOB}, s{sWOB}, {8*1280}')

def y_addr(dst, tmp):
    e(f'v_bfe_u32 v{dst}, v{vLANE}, 1, 2')
    e(f'v_lshlrev_b32 v{dst}, 14, v{dst}')
    e(f'v_and_b32 v{tmp}, 1, v{vLANE}')
    e(f'v_lshlrev_b32 v{tmp}, 6, v{tmp}')
    e(f'v_add_u32 v{dst}, v{dst}, v{tmp}')
    e(f'v_and_b32 v{tmp}, 32, v{vLANE}')
    e(f'v_add_u32 v{dst}, v{dst}, v{tmp}')
    e(f'v_and_b32 v{tmp}, 16, v{vLANE}')
    e(f'v_add_u32 v{dst}, v{dst}, v{tmp}')

hdr = open('parallel_sum__sliding_block_cached__glu_gated_swiglu__decode.s.ref').read().split('\n')
for line in hdr:
    if line.startswith('; @launch'):
        L.append(f'; @launch grid=(256,1,1) block=(512,1,1) lds={LDS_BYTES}')
    elif line.startswith(';'):
        L.append(line)
    else:
        break
L.append('.amdgcn_target "amdgcn-amd-amdhsa--gfx950"')
L.append('.text')
L.append(f'.globl {NAME}')
L.append('.p2align 8')
L.append(f'.type {NAME},@function')
lab(NAME)
stamp(0)
if THR: e('s_memrealtime s[98:99]')
e('s_cmp_ge_u32 s2, 256')
e('s_cbranch_scc1 L_end')
for (sr, off) in [(sX, 0), (sWQ, 24), (sV, 16), (sW1, 48), (sW3, 56), (sK, 8), (sWS, 88), (sDBG, 80), (sWO, 32), (sW2, 64), (sOUT, 72)]:
    e(f's_load_dwordx2 s[{sr}:{sr+1}], s[0:1], {off}')
e(f'v_lshrrev_b32 v{vT0}, 6, v0')
e(f'v_and_b32 v{vLANE}, 63, v0')
e(f'v_readfirstlane_b32 s{sWAVE}, v{vT0}')
e(f'v_mov_b32 v{vT3}, 0')
e(f'v_and_b32 v{vT4}, 15, v0')
e(f'v_lshlrev_b32 v{vT4}, 2, v{vT4}')
e(f'ds_write_b32 v{vT4}, v{vT3} offset:{L_CNT}')
for (sr, nb) in [(sX, 1280), (sWQ, 7864320), (sK, 402653184), (sWS, (WS_STAMP + 65536*4) if STAMPS else WS_USED), (sV, 402653184), (sW1, 1966080),
                 (sW3, 1966080), (sDBG, 256), (sWO, 7864320), (sW2, 1966080), (sOUT, 1280)]:
    e(f's_mov_b32 s{sr+2}, {nb}')
    e(f's_mov_b32 s{sr+3}, 0x00020000')
e(f's_and_b32 s{sHEAD}, s2, 7')
e(f's_lshr_b32 s{sSPLIT}, s2, 3')
e(f's_and_b32 s{sT0}, s{sSPLIT}, 3')
e(f's_lshl_b32 s{sHEAD}, s{sHEAD}, 2')
e(f's_add_u32 s{sHEAD}, s{sHEAD}, s{sT0}')
e(f's_lshr_b32 s{sSPLIT}, s{sSPLIT}, 2')
e(f'v_lshrrev_b32 v{vT0}, 3, v{vLANE}')
e(f'v_and_b32 v{vT1}, 7, v{vLANE}')
e(f'v_lshlrev_b32 v{vT2}, 4, v{vT1}')
e(f'v_mul_u32_u24 v{vOFF}, 384, v{vT0}')
e(f'v_add_u32 v{vOFF}, v{vOFF}, v{vT2}')
e(f's_mul_i32 s{sKB}, s{sHEAD}, {HEAD_STRIDE}')
e(f's_mul_i32 s{sT0}, s{sSPLIT}, {512*384}')
e(f's_add_u32 s{sKB}, s{sKB}, s{sT0}')
e(f's_and_b32 s{sT1}, s{sWAVE}, 3')
e(f's_mul_i32 s{sT0}, s{sT1}, {128*384}')
e(f's_add_u32 s{sKB}, s{sKB}, s{sT0}')
e(f's_add_u32 s{sKB}, s{sKB}, {WIN}')
e(f's_lshr_b32 s{sT0}, s2, 4')
e(f's_xor_b32 s{sT0}, s{sT0}, s2')
e(f's_lshl_b32 s{sT1}, s{sT1}, 2')
e(f's_xor_b32 s{sT0}, s{sT0}, s{sT1}')
e(f's_and_b32 s{sT0}, s{sT0}, 15')
e(f's_add_u32 s{sKE}, s{sKB}, {16*3072}')
e(f's_mul_i32 s{sT0}, s{sT0}, 3072')
e(f's_add_u32 s{sKB}, s{sKB}, s{sT0}')
e(f's_cmp_ge_u32 s{sWAVE}, 4')
e('s_cbranch_scc1 L_vwave')

def common_scalars():
    e(f's_lshl_b32 s{sT0}, s{sHEAD}, 3')
    e(f's_mul_i32 s{sGRP}, s{sT0}, {WS_SLOT}')
    e(f's_mul_i32 s{sT0}, s{sSPLIT}, {WS_SLOT}')
    e(f's_add_u32 s{sSLOT}, s{sGRP}, s{sT0}')
    e(f's_lshr_b32 s{sRQ}, s{sSPLIT}, 1')
    e(f's_and_b32 s{sCH}, s{sSPLIT}, 1')
    e(f's_mul_i32 s{sYB}, s{sCH}, {20*16384}')
    e(f's_lshl_b32 s{sT0}, s{sHEAD}, 9')
    e(f's_add_u32 s{sYB}, s{sYB}, s{sT0}')
    e(f's_lshl_b32 s{sT0}, s{sRQ}, 7')
    e(f's_add_u32 s{sYB}, s{sYB}, s{sT0}')
    e(f's_add_u32 s{sYB}, s{sYB}, {WS_Y}')

vm = VM()
e('s_setprio 2')
vWQ = vD + 12 * 11
vAC = vD + 12 * 7
vFA = vAC + 24
vXS = 16
e(f's_mul_i32 s{sT0}, s{sSPLIT}, 80')
e(f's_mul_i32 s{sT1}, s{sWAVE}, 20')
e(f's_add_u32 s{sT0}, s{sT0}, s{sT1}')
e(f's_lshl_b32 s{sT3}, s{sT0}, 1')
e(f's_mul_i32 s{sWQB}, s{sT0}, 12288')
e(f's_mul_i32 s{sT1}, s{sHEAD}, 384')
e(f's_add_u32 s{sWQB}, s{sWQB}, s{sT1}')
e(f's_mul_i32 s{sFB}, s{sT0}, 3072')
e(f's_mul_i32 s{sT1}, s{sHEAD}, 96')
e(f's_add_u32 s{sFB}, s{sFB}, s{sT1}')
e(f'v_mul_u32_u24 v{vT3}, 20, v{vLANE}')
e(f'v_lshlrev_b32 v{vT4}, 1, v{vT0}')
e(f'v_mul_u32_u24 v{vT5}, 12288, v{vT0}')
e(f'v_add_u32 v{vT5}, v{vT5}, v{vT2}')
e(f'v_mul_u32_u24 v{vT6}, 3072, v{vT0}')
e(f'v_add_u32 v{vT6}, v{vT6}, v{vT2}')
e(f'v_mov_b32 v{vT7}, {OOB}')
e(f'v_cmp_gt_u32 vcc, 6, v{vT1}')
nop(1)
e(f'v_cndmask_b32 v{vT6}, v{vT7}, v{vT6}, vcc')
e(f'v_cmp_gt_u32 vcc, 32, v{vLANE}')
nop(1)
e(f'v_cndmask_b32 v{vM}, v{vT7}, v{vT5}, vcc')
e(f'v_cndmask_b32 v{vRA}, v{vT7}, v{vT6}, vcc')
e('s_waitcnt lgkmcnt(0)')
stamp(1)
e(f'buffer_load_dwordx4 {v4(vXS)}, v{vT3}, {srd(sX)}, 0 offen'); vm.issue('x')
e(f'buffer_load_dword v{vXS+4}, v{vT3}, {srd(sX)}, 0 offen offset:16'); vm.issue('x')
for k in range(3):
    e(f'buffer_load_ushort v{vX+k}, v{vT4}, {srd(sX)}, s{sT3} offen offset:{16*k}'); vm.issue('x')
ffp = '' if FFDEF else ' nt'
for k in range(3):
    vo = vT5 if k < 2 else vM
    vf = vT6 if k < 2 else vRA
    for j in range(3):
        e(f'buffer_load_dwordx4 {v4(vWQ+20*k+4*j)}, v{vo}, {srd(sWQ)}, s{sWQB} offen offset:{128*j} nt'); vm.issue('wq')
    e(f'buffer_load_dwordx4 {v4(vWQ+20*k+12)}, v{vf}, {srd(sW1)}, s{sFB} offen{ffp}'); vm.issue('wq')
    e(f'buffer_load_dwordx4 {v4(vWQ+20*k+16)}, v{vf}, {srd(sW3)}, s{sFB} offen{ffp}'); vm.issue('wq')
    if k < 2:
        e(f's_add_u32 s{sWQB}, s{sWQB}, {8*12288}')
        e(f's_add_u32 s{sFB}, s{sFB}, {8*3072}')
def kload(G):
    for j in range(3):
        e(f'buffer_load_dwordx4 {v4(vD+12*G+4*j)}, v{vOFF}, {srd(sK)}, s{sKB} offen offset:{128*j} nt'); vm.issue(f'k{G}')
    e(f's_add_u32 s{sKB}, s{sKB}, 3072'); e(f's_sub_u32 s{sT5}, s{sKB}, {16*3072}'); e(f's_cmp_ge_u32 s{sKB}, s{sKE}'); e(f's_cselect_b32 s{sKB}, s{sT5}, s{sKB}')
common_scalars()
e('s_barrier')
vm.wait('x')
e(f'v_lshlrev_b32 v{vT0}, 16, v{vXS}')
e(f'v_and_b32 v{vT1}, 0xffff0000, v{vXS}')
e(f'v_add_f32 v{vT3}, v{vT0}, v{vT1}')
for d in range(1, 5):
    e(f'v_lshlrev_b32 v{vT0}, 16, v{vXS+d}')
    e(f'v_and_b32 v{vT1}, 0xffff0000, v{vXS+d}')
    e(f'v_add_f32 v{vT3}, v{vT3}, v{vT0}')
    e(f'v_add_f32 v{vT3}, v{vT3}, v{vT1}')
allreduce64('v_add_f32', vT3, vT4)
e(f'v_mul_f32 v{vT3}, 0x3acccccd, v{vT3}')
e(f'v_mov_b32 v{vT5}, 0')
for d in range(5):
    e(f'v_lshlrev_b32 v{vT0}, 16, v{vXS+d}')
    e(f'v_and_b32 v{vT1}, 0xffff0000, v{vXS+d}')
    e(f'v_sub_f32 v{vT0}, v{vT0}, v{vT3}')
    e(f'v_sub_f32 v{vT1}, v{vT1}, v{vT3}')
    e(f'v_fmac_f32 v{vT5}, v{vT0}, v{vT0}')
    e(f'v_fmac_f32 v{vT5}, v{vT1}, v{vT1}')
allreduce64('v_add_f32', vT5, vT4)
e(f'v_mul_f32 v{vT5}, 0x3acccccd, v{vT5}')
bf16_round(vT3, vT3)
bf16_round(vT5, vT5)
e(f'v_add_f32 v{vT5}, 0x3727c5ac, v{vT5}')
bf16_round(vT5, vT5)
e(f'v_sqrt_f32 v{vT5}, v{vT5}')
nop(0)
bf16_round(vT5, vT5)
e(f'v_rcp_f32 v{vT6}, v{vT5}')
nop(0)
for k in range(3):
    e(f'v_lshlrev_b32 v{vT0}, 16, v{vX+k}')
    e(f'v_sub_f32 v{vT0}, v{vT0}, v{vT3}')
    bf16_round(vT0, vT0)
    e(f'v_mul_f32 v{vT4}, v{vT0}, v{vT6}')
    e(f'v_fma_f32 v{vT0}, -v{vT4}, v{vT5}, v{vT0}')
    e(f'v_fmac_f32 v{vT4}, v{vT0}, v{vT6}')
    e(f'v_cvt_pk_bf16_f32 v{vX+k}, v{vT4}, 0')
for i in range(40): e(f'v_mov_b32 v{vAC+i}, 0')
red_addr()
vm.wait('wq')
for k in range(3):
    e(f'v_lshlrev_b32 v{vT1}, 16, v{vX+k}')
    for j in range(3): axpy(vAC + 8 * j, vWQ + 20 * k + 4 * j, vX + k, vT1)
    axpy(vFA, vWQ + 20 * k + 12, vX + k, vT1)
    axpy(vFA + 8, vWQ + 20 * k + 16, vX + k, vT1)
reduce_r8(vAC, 5)
e(f's_mul_i32 s{sT0}, s{sWAVE}, 768')
e(f'v_add_u32 v{vT2}, s{sT0}, v{vRA}')
for j in range(3):
    e(f'ds_write_b64 v{vT2}, {v2(vAC+8*j)} offset:{L_RED+256*j}')
e(f's_mul_i32 s{sT0}, s{sWAVE}, 384')
e(f'v_add_u32 v{vT2}, s{sT0}, v{vRA}')
e(f'v_and_b32 v{vT1}, 7, v{vLANE}')
e(f'v_cmp_gt_u32 vcc, 6, v{vT1}')
e('s_and_saveexec_b64 s[28:29], vcc')
e(f'ds_write_b64 v{vT2}, {v2(vFA)} offset:{L_FRED}')
e(f'ds_write_b64 v{vT2}, {v2(vFA+8)} offset:{L_FRED+192}')
e('s_mov_b64 exec, s[28:29]')
lds_inc(C1)
stamp(2)
e(f's_cmp_ge_u32 s{sWAVE}, 2')
e('s_cbranch_scc1 L_pub_skip')
lds_spin(C1, 5, sleep=False)
vTM = 28
e(f'v_lshlrev_b32 v{vT2}, 4, v{vLANE}')
e(f's_cmp_eq_u32 s{sWAVE}, 0')
e(f's_cselect_b32 s{sT0}, 48, 24')
e(f's_cselect_b32 s{sT1}, {L_RED}, {L_FRED}')
e(f's_cselect_b32 s{sT3}, 384, 0')
e(f's_cselect_b32 s{sT4}, {SL_Q-SL_G}, 0')
e(f's_add_u32 s{sT3}, s{sT3}, 384')
e(f's_add_u32 s{sT4}, s{sT4}, {SL_G}')
e(f's_add_u32 s{sT4}, s{sT4}, s{sSLOT}')
e(f'v_add_u32 v{vT3}, s{sT1}, v{vT2}')
e(f'v_cmp_gt_u32 vcc, s{sT0}, v{vLANE}')
e('s_and_saveexec_b64 s[28:29], vcc')
for w in range(4):
    e(f'ds_read_b128 {v4(vTM+4*w)}, v{vT3}')
    if w < 3: e(f'v_add_u32 v{vT3}, s{sT3}, v{vT3}')
e('s_waitcnt lgkmcnt(0)')
for c in range(4):
    e(f'v_add_f32 v{vTM+c}, v{vTM+c}, v{vTM+4+c}')
    e(f'v_add_f32 v{vTM+8+c}, v{vTM+8+c}, v{vTM+12+c}')
for c in range(4): e(f'v_add_f32 v{vTM+c}, v{vTM+c}, v{vTM+8+c}')
for c in range(4): e(f'v_min_u32 v{vTM+c}, -2, v{vTM+c}')
e(f'buffer_store_dwordx4 {v4(vTM)}, v{vT2}, {srd(sWS)}, s{sT4} offen sc1')
e('s_mov_b64 exec, s[28:29]')
e('s_branch L_pub_done')
lab('L_pub_skip')
e(f'v_mov_b32 v{vT0}, {OOB}')
e(f'buffer_store_dword v{vT0}, v{vT0}, {srd(sWS)}, 0 offen')
lab('L_pub_done')
vm.issue('pub')
for G in range(0, 2): kload(G)
e(f's_cmp_eq_u32 s{sWAVE}, 0')
e('s_cbranch_scc1 L_k0')
vm_other = copy.deepcopy(vm)
vm_save = vm
vm = vm_other
for G in range(2, 16): kload(G)
e('s_branch L_kq')
lab('L_k0')
vm = vm_save
vQP = 28
sSTATE = 35
e(f'v_lshlrev_b32 v{vT2}, 4, v{vLANE}')
e(f'v_mov_b32 v{vT1}, {OOB}')
e(f'v_cmp_gt_u32 vcc, 48, v{vLANE}')
nop(1)
e(f'v_cndmask_b32 v{vT2}, v{vT1}, v{vT2}, vcc')
e(f'v_mov_b32 v{vT3}, 0')
for s_ in range(8): e(f's_add_u32 s{sC+s_}, s{sGRP}, {s_*WS_SLOT}')
e(f's_lshl_b32 s{sT4}, s{sHEAD}, 3')
e(f's_mov_b32 s{sSTATE}, 0')
def poll_issue(n):
    e(f's_cmp_eq_u32 s{sSTATE}, 1')
    e(f's_cbranch_scc1 L_pi{n}_q')
    e(f's_cmp_eq_u32 s{sSTATE}, 2')
    e(f's_cbranch_scc1 L_pi{n}_d')
    e(f'buffer_load_dwordx2 {v2(vQP)}, v{vT3}, {srd(sDBG)}, s{sT4} offen sc1')
    e(f's_branch L_pi{n}_d')
    lab(f'L_pi{n}_q')
    for s_ in range(8):
        e(f'buffer_load_dwordx4 {v4(vQP+4*s_)}, v{vT2}, {srd(sWS)}, s{sC+s_} offen offset:{SL_Q} sc1')
    lab(f'L_pi{n}_d')
def poll_eval(n):
    e(f's_cmp_eq_u32 s{sSTATE}, 1')
    e(f's_cbranch_scc1 L_pe{n}_q')
    e(f's_cmp_eq_u32 s{sSTATE}, 2')
    e(f's_cbranch_scc1 L_pe{n}_d')
    e(f'v_and_b32 v{vT1}, v{vQP}, v{vQP+1}')
    e(f'v_cmp_ne_u32 vcc, 0x01010101, v{vT1}')
    e(f's_cbranch_vccnz L_pe{n}_d')
    e(f's_mov_b32 s{sSTATE}, 1')
    e(f's_branch L_pe{n}_d')
    lab(f'L_pe{n}_q')
    umax_chain(vT1, list(range(vQP, vQP + 32)))
    e(f'v_cmp_eq_u32 vcc, -1, v{vT1}')
    e(f's_cbranch_vccnz L_pe{n}_d')
    e(f's_call_b64 s[36:37], L_qfin')
    lab(f'L_pe{n}_d')
for cp in range(4):
    poll_issue(cp)
    for G in range(2 + 3 * cp, 5 + 3 * cp): kload(G)
    e('s_waitcnt vmcnt(9)')
    poll_eval(cp)
for G in range(14, 16): kload(G)
e(f's_mov_b32 s{sCNT}, 0')
lab('L_pfb')
e(f's_cmp_eq_u32 s{sSTATE}, 2')
e('s_cbranch_scc1 L_kq')
e(f's_add_u32 s{sCNT}, s{sCNT}, 1')
e(f's_cmp_gt_u32 s{sCNT}, {SPIN}')
e('s_cbranch_scc1 L_pgiveup')
poll_issue(9)
e('s_waitcnt vmcnt(0)')
e(f's_mov_b32 s38, s{sCNT}')
poll_eval(9)
e(f's_mov_b32 s{sCNT}, s38')
e('s_branch L_pfb')
lab('L_pgiveup')
lds_inc(C2)
e('s_branch L_kq')
lab('L_qfin')
for step in (4, 2, 1):
    for w in range(step):
        for c in range(4):
            e(f'v_add_f32 v{vQP+4*w+c}, v{vQP+4*w+c}, v{vQP+4*(w+step)+c}')
e(f'v_cvt_pk_bf16_f32 v{vQP}, v{vQP}, v{vQP+1}')
e(f'v_cvt_pk_bf16_f32 v{vQP+1}, v{vQP+2}, v{vQP+3}')
e(f'v_lshlrev_b32 v{vT4}, 3, v{vLANE}')
e(f'v_cmp_gt_u32 vcc, 48, v{vLANE}')
e('s_and_saveexec_b64 s[28:29], vcc')
e(f'ds_write_b64 v{vT4}, {v2(vQP)} offset:{L_QBF}')
e('s_mov_b64 exec, s[28:29]')
lds_inc(C2)
e(f's_mov_b32 s{sSTATE}, 2')
e('s_setpc_b64 s[36:37]')
lab('L_kq')
vm = vm_other
lds_spin(C2, 1)
stamp(3)
vQ = 16
vS = 28
e(f'v_and_b32 v{vT0}, 7, v{vLANE}')
e(f'v_lshlrev_b32 v{vT0}, 4, v{vT0}')
for j in range(3):
    e(f'ds_read_b128 {v4(vQ+4*j)}, v{vT0} offset:{L_QBF+128*j}')
e('s_waitcnt lgkmcnt(0)')
for G in range(16):
    vm.wait(f'k{G}')
    e(f'v_mov_b32 v{vS+G}, 0')
    e(f'v_mov_b32 v{vT0}, 0')
    e(f'v_mov_b32 v{vT1}, 0')
    accs = [vS + G, vT0, vT1]
    for d in range(4):
        for j in range(3):
            e(f'v_dot2c_f32_bf16 v{accs[j]}, v{vD+12*G+4*j+d}, v{vQ+4*j+d}')
    nop(2)
    e(f'v_add_f32 v{vT0}, v{vT0}, v{vT1}')
    e(f'v_add_f32 v{vS+G}, v{vS+G}, v{vT0}')
for G in range(16):
    e(f'v_add_f32 v{vS+G}, v{vS+G}, v{vS+G} quad_perm:[1,0,3,2] {DPP}')
for G in range(16):
    e(f'v_add_f32 v{vS+G}, v{vS+G}, v{vS+G} quad_perm:[2,3,0,1] {DPP}')
for G in range(16):
    e(f'v_add_f32 v{vS+G}, v{vS+G}, v{vS+G} row_half_mirror {DPP}')
for G in range(16):
    bf16_round(vS + G, vS + G)
    e(f'v_mul_f32 v{vS+G}, 0x3d93cd3a, v{vS+G}')
    bf16_round(vS + G, vS + G)
stamp(4)
e(f'v_max3_f32 v{vT2}, v{vS}, v{vS+1}, v{vS+2}')
for G in range(3, 15, 2): e(f'v_max3_f32 v{vT2}, v{vT2}, v{vS+G}, v{vS+G+1}')
e(f'v_max_f32 v{vT2}, v{vT2}, v{vS+15}')
nop(1)
e(f'v_max_f32 v{vT2}, v{vT2}, v{vT2} row_ror:8 {DPP}')
allreduce_rows('v_max_f32', vT2, vT1)
e(f's_lshl_b32 s{sT0}, s{sWAVE}, 2')
e(f'v_mov_b32 v{vT3}, s{sT0}')
e(f'ds_write_b32 v{vT3}, v{vT2} offset:{L_WMAX}')
lds_inc(C3)
lds_spin(C3, 4, sleep=False)
e(f'ds_read_b128 {v4(44)}, v{vT0} offset:{L_WMAX}')
e('s_waitcnt lgkmcnt(0)')
e(f'v_max3_f32 v{vM}, v44, v45, v46')
e(f'v_max_f32 v{vM}, v{vM}, v47')
e(f'v_mov_b32 v{vT2}, 0')
for G in range(16):
    e(f'v_sub_f32 v{vS+G}, v{vS+G}, v{vM}')
    e(f'v_mul_f32 v{vS+G}, 0x3fb8aa3b, v{vS+G}')
    e(f'v_exp_f32 v{vS+G}, v{vS+G}')
    nop(0)
    e(f'v_add_f32 v{vT2}, v{vT2}, v{vS+G}')
    e(f'v_cvt_pk_bf16_f32 v{vS+G}, v{vS+G}, 0')
e(f'v_lshrrev_b32 v{vT4}, 3, v{vLANE}')
e(f'v_lshlrev_b32 v{vT4}, 6, v{vT4}')
e(f's_lshl_b32 s{sT1}, s{sWAVE}, 9')
e(f'v_add_u32 v{vT4}, s{sT1}, v{vT4}')
e(f'v_and_b32 v{vT1}, 7, v{vLANE}')
e(f'v_cmp_eq_u32 vcc, 0, v{vT1}')
e('s_and_saveexec_b64 s[28:29], vcc')
for i in range(4): e(f'ds_write_b128 v{vT4}, {v4(vS+4*i)} offset:{L_P+16*i}')
e('s_mov_b64 exec, s[28:29]')
e('s_waitcnt lgkmcnt(0)')
e(f'v_mov_b32 v{vT1}, 1')
e(f'ds_write_b32 v{vT3}, v{vT1} offset:{C4}')
nop(1)
e(f'v_add_f32 v{vT2}, v{vT2}, v{vT2} row_ror:8 {DPP}')
allreduce_rows('v_add_f32', vT2, vT1)
e(f'ds_write_b32 v{vT3}, v{vT2} offset:{L_WSUM}')
lds_inc(C5)
e(f's_cmp_eq_u32 s{sWAVE}, 0')
e('s_cbranch_scc1 L_coef')
e(f's_cmp_eq_u32 s{sWAVE}, 2')
e('s_cbranch_scc1 L_ffn')
e(f's_cmp_eq_u32 s{sWAVE}, 3')
e('s_cbranch_scc1 L_kwo')
lds_spin(C5, 4, sleep=False)
e(f'ds_read_b128 {v4(44)}, v{vT0} offset:{L_WSUM}')
e('s_waitcnt lgkmcnt(0)')
e('v_add_f32 v44, v44, v45')
e('v_add_f32 v46, v46, v47')
e('v_add_f32 v45, v44, v46')
e(f'v_min_u32 v44, -2, v{vM}')
e('v_min_u32 v45, -2, v45')
e('s_mov_b64 exec, 1')
e(f'buffer_store_dwordx2 v[44:45], v{vT0}, {srd(sWS)}, s{sSLOT} offen offset:{SL_ML} sc1')
e('s_mov_b64 exec, -1')
e('s_branch L_kwo')
lab('L_coef')
vML = 44
e(f'v_lshlrev_b32 v{vT2}, 2, v{vLANE}')
e(f's_mov_b32 s{sCNT}, 0')
lab('L_chk')
e(f'buffer_load_dword v{vML}, v{vT2}, {srd(sDBG)}, 0 offen sc1')
e('s_waitcnt vmcnt(0)')
e(f'v_cmp_ne_u32 vcc, 0x01010101, v{vML}')
e(f's_add_u32 s{sCNT}, s{sCNT}, 1')
e(f's_cmp_gt_u32 s{sCNT}, {SPIN}')
e('s_cbranch_scc1 L_chk_done')
e('s_cbranch_vccnz L_chk')
lab('L_chk_done')
e(f'v_and_b32 v{vT2}, 7, v{vLANE}')
e(f'v_mul_u32_u24 v{vT2}, {WS_SLOT}, v{vT2}')
e(f's_mov_b32 s{sCNT}, 0')
lab('L_pml')
e(f'buffer_load_dwordx2 {v2(vML)}, v{vT2}, {srd(sWS)}, s{sGRP} offen offset:{SL_ML} sc1')
e('s_waitcnt vmcnt(0)')
e(f'v_max_u32 v{vT1}, v{vML}, v{vML+1}')
poll_tail('L_pml', vT1)
e(f'v_mov_b32 v{vT1}, v{vML}')
allreduce8('v_max_f32', vT1)
e(f'v_sub_f32 v{vT1}, v{vML}, v{vT1}')
e(f'v_mul_f32 v{vT1}, 0x3fb8aa3b, v{vT1}')
e(f'v_exp_f32 v{vT1}, v{vT1}')
nop(0)
e(f'v_mul_f32 v{vT2}, v{vT1}, v{vML+1}')
allreduce8('v_add_f32', vT2)
e(f'v_rcp_f32 v{vT2}, v{vT2}')
nop(0)
e(f'v_mul_f32 v{vT3}, v{vT1}, v{vT2}')
e(f'v_and_b32 v{vT2}, 7, v{vLANE}')
e(f'v_lshlrev_b32 v{vT2}, 2, v{vT2}')
e(f'ds_write_b32 v{vT2}, v{vT3} offset:{L_COEF}')
lds_inc(C7)
e('s_branch L_kwo')
lab('L_ffn')
vG = 44
e(f'v_lshlrev_b32 v{vT2}, 2, v{vLANE}')
e(f'v_mov_b32 v{vT1}, {OOB}')
e(f'v_cmp_gt_u32 vcc, 12, v{vLANE}')
nop(1)
e(f'v_cndmask_b32 v{vT2}, v{vT1}, v{vT2}, vcc')
e(f's_mov_b32 s{sCNT}, 0')
e(f's_mul_i32 s{sT0}, s{sRQ}, 48')
e(f's_add_u32 s{sT0}, s{sT0}, s{sGRP}')
for s in range(8): e(f's_add_u32 s{sC+s}, s{sT0}, {s*WS_SLOT}')
lab('L_pff')
for s in range(8):
    e(f'buffer_load_dword v{vG+s}, v{vT2}, {srd(sWS)}, s{sC+s} offen offset:{SL_G} sc1')
    e(f'buffer_load_dword v{vG+8+s}, v{vT2}, {srd(sWS)}, s{sC+s} offen offset:{SL_U} sc1')
e('s_waitcnt vmcnt(0)')
umax_chain(vT1, list(range(vG, vG + 16)))
poll_tail('L_pff', vT1)
for s in range(1, 8):
    e(f'v_add_f32 v{vG}, v{vG}, v{vG+s}')
    e(f'v_add_f32 v{vG+8}, v{vG+8}, v{vG+8+s}')
bf16_round(vG, vG)
bf16_round(vG + 8, vG + 8)
e(f'v_mul_f32 v{vT1}, 0xbfb8aa3b, v{vG}')
e(f'v_exp_f32 v{vT1}, v{vT1}')
nop(0)
e(f'v_add_f32 v{vT1}, 1.0, v{vT1}')
e(f'v_rcp_f32 v{vT1}, v{vT1}')
nop(0)
e(f'v_mul_f32 v{vT1}, v{vG}, v{vT1}')
bf16_round(vT1, vT1)
e(f'v_mul_f32 v{vT1}, v{vT1}, v{vG+8}')
e(f'v_cvt_pk_bf16_f32 v{vT3}, v{vT1}, 0')
e(f'v_and_b32 v{vT2}, 7, v{vLANE}')
e(f'v_lshlrev_b32 v{vT2}, 5, v{vT2}')
e(f'v_lshrrev_b32 v{vT4}, 3, v{vLANE}')
e(f'v_lshlrev_b32 v{vT4}, 2, v{vT4}')
e(f'v_add_u32 v{vT2}, v{vT2}, v{vT4}')
e('s_mov_b64 exec, 0xffff')
e(f'ds_write_b32 v{vT2}, v{vT3} offset:{L_U+24}')
e('s_mov_b64 exec, -1')
lds_inc(C6)
lab('L_kwo')
wo_setup()
if not NODEFER: e('s_setprio 0')
vWO = vD
wo_issue(vm, vWO)
e('s_setprio 3')
stamp(5)
e('s_branch L_stagec')

lab('L_vwave')
vm = VM()
e('s_setprio 1')
vACC = 16
vP = 40
common_scalars()
e('s_waitcnt lgkmcnt(0)')
e(f's_cmp_lg_u32 s{sWAVE}, 7')
e('s_cbranch_scc1 L_noclr')
vCL = 24
for i in range(4): e(f'v_mov_b32 v{vCL+i}, -1')
e(f'v_mov_b32 v{vT7}, {OOB}')
e(f'v_lshlrev_b32 v{vT3}, 4, v{vLANE}')
e(f'v_lshrrev_b32 v{vT4}, 3, v{vLANE}')
e(f'v_lshlrev_b32 v{vT4}, 14, v{vT4}')
e(f'v_and_b32 v{vT5}, 7, v{vLANE}')
e(f'v_lshlrev_b32 v{vT5}, 4, v{vT5}')
e(f'v_add_u32 v{vT4}, v{vT4}, v{vT5}')
e(f'v_cmp_gt_u32 vcc, 32, v{vLANE}')
nop(1)
e(f'v_cndmask_b32 v{vT5}, v{vT7}, v{vT4}, vcc')
e(f'buffer_store_dwordx4 {v4(vCL)}, v{vT3}, {srd(sWS)}, s{sSLOT} offen offset:1024 sc1')
e(f'buffer_store_dwordx4 {v4(vCL)}, v{vT3}, {srd(sWS)}, s{sSLOT} offen sc1')
e(f'buffer_store_dwordx4 {v4(vCL)}, v{vT4}, {srd(sWS)}, s{sYB} offen sc1')
e(f's_add_u32 s{sT0}, s{sYB}, {8*16384}')
e(f'buffer_store_dwordx4 {v4(vCL)}, v{vT4}, {srd(sWS)}, s{sT0} offen sc1')
e(f's_add_u32 s{sT0}, s{sYB}, {16*16384}')
e(f'buffer_store_dwordx4 {v4(vCL)}, v{vT5}, {srd(sWS)}, s{sT0} offen sc1')
e('s_barrier')
e('s_setprio 3')
e('s_waitcnt vmcnt(0)')
lds_inc(C1)
e(f's_lshl_b32 s{sT0}, s{sHEAD}, 3')
e(f's_add_u32 s{sT0}, s{sT0}, s{sSPLIT}')
e('s_mov_b64 exec, 1')
e(f'buffer_store_byte v{vT1}, v{vT0}, {srd(sDBG)}, s{sT0} offen sc1')
e('s_mov_b64 exec, -1')
e('s_setprio 1')
e('s_branch L_vgo')
lab('L_noclr')
e('s_barrier')
lab('L_vgo')
stamp(1)
for G in range(16):
    for j in range(3):
        e(f'buffer_load_dwordx4 {v4(vD+12*G+4*j)}, v{vOFF}, {srd(sV)}, s{sKB} offen offset:{128*j} nt'); vm.issue(f'v{G}')
    e(f's_add_u32 s{sKB}, s{sKB}, 3072'); e(f's_sub_u32 s{sT5}, s{sKB}, {16*3072}'); e(f's_cmp_ge_u32 s{sKB}, s{sKE}'); e(f's_cselect_b32 s{sKB}, s{sT5}, s{sKB}')
stamp(2)
for i in range(24): e(f'v_mov_b32 v{vACC+i}, 0')
red_addr()
e(f's_sub_u32 s{sT4}, s{sWAVE}, 4')
e(f's_mul_i32 s{sT0}, s{sT4}, 768')
e(f'v_add_u32 v{vRA}, s{sT0}, v{vRA}')
wo_setup()
e(f's_cmp_eq_u32 s{sWAVE}, 4')
e(f's_cselect_b32 s{sWOB}, s{sWOB}, {OOB}')
e(f's_cselect_b32 s{sW2B}, s{sW2B}, {OOB}')
e(f's_lshl_b32 s{sT3}, s{sT4}, 2')
e(f'v_mov_b32 v{vT0}, s{sT3}')
lds_spin(C4, 1, vaddr=vT0)
stamp(3)
e(f'v_lshrrev_b32 v{vT2}, 3, v{vLANE}')
e(f'v_lshlrev_b32 v{vT2}, 6, v{vT2}')
e(f's_lshl_b32 s{sT3}, s{sT4}, 9')
e(f'v_add_u32 v{vT2}, s{sT3}, v{vT2}')
for i in range(4): e(f'ds_read_b128 {v4(vP+4*i)}, v{vT2} offset:{L_P+16*i}')
e('s_waitcnt lgkmcnt(0)')
e('s_setprio 3')
for G in range(16):
    vm.wait(f'v{G}')
    e(f'v_lshlrev_b32 v{vT0+(G&1)}, 16, v{vP+G}')
    for j in range(3):
        axpy(vACC + 8 * j, vD + 12 * G + 4 * j, vP + G, vT0 + (G & 1))
    if G == 2:
        wo_issue(vm, vD)
stamp(4)
reduce_r8(vACC, 3)
for j in range(3):
    e(f'ds_write_b64 v{vRA}, {v2(vACC+8*j)} offset:{L_RED+256*j}')
lds_inc(C8)
stamp(5)
e(f's_cmp_eq_u32 s{sWAVE}, 4')
e('s_cbranch_scc1 L_stagec')
e(f's_cmp_eq_u32 s{sWAVE}, 6')
e('s_cbranch_scc1 L_merge')
e(f's_cmp_eq_u32 s{sWAVE}, 7')
e('s_cbranch_scc1 L_final')
vTM = 128
e(f'v_lshlrev_b32 v{vT2}, 4, v{vLANE}')
lds_spin(C8, 4, sleep=False)
e(f'v_cmp_gt_u32 vcc, 48, v{vLANE}')
e('s_and_saveexec_b64 s[28:29], vcc')
for w in range(4):
    e(f'ds_read_b128 {v4(vTM+4*w)}, v{vT2} offset:{L_RED+768*w}')
e('s_waitcnt lgkmcnt(0)')
for c in range(4):
    e(f'v_add_f32 v{vTM+c}, v{vTM+c}, v{vTM+4+c}')
    e(f'v_add_f32 v{vTM+8+c}, v{vTM+8+c}, v{vTM+12+c}')
for c in range(4): e(f'v_add_f32 v{vTM+c}, v{vTM+c}, v{vTM+8+c}')
for c in range(4): e(f'v_min_u32 v{vTM+c}, -2, v{vTM+c}')
e(f'buffer_store_dwordx4 {v4(vTM)}, v{vT2}, {srd(sWS)}, s{sSLOT} offen offset:{SL_O} sc1')
stamp(6)
stamp_out()
lab('L_merge')
vO = 128
vCF = 164
lds_spin(C7, 1)
e(f'ds_read_b128 {v4(vCF)}, v{vT0} offset:{L_COEF}')
e(f'ds_read_b128 {v4(vCF+4)}, v{vT0} offset:{L_COEF+16}')
e(f'v_lshlrev_b32 v{vT3}, 2, v{vLANE}')
e(f'v_mov_b32 v{vT1}, {OOB}')
e(f'v_cmp_gt_u32 vcc, 48, v{vLANE}')
nop(1)
e(f'v_cndmask_b32 v{vT0}, v{vT1}, v{vT3}, vcc')
e(f'v_and_b32 v{vT3}, 7, v{vLANE}')
e(f'v_lshlrev_b32 v{vT3}, 5, v{vT3}')
e(f'v_lshrrev_b32 v{vT4}, 3, v{vLANE}')
e(f'v_lshlrev_b32 v{vT4}, 2, v{vT4}')
e(f'v_add_u32 v{vT3}, v{vT3}, v{vT4}')
e(f'v_cmp_gt_u32 s[30:31], 48, v{vLANE}')
e(f's_mov_b32 s{sCNT}, 0')
e(f's_mul_i32 s{sT0}, s{sRQ}, 192')
e(f's_add_u32 s{sT0}, s{sT0}, s{sGRP}')
for s in range(8): e(f's_add_u32 s{sC+s}, s{sT0}, {s*WS_SLOT}')
lab('L_po')
for s in range(8):
    e(f'buffer_load_dword v{vO+s}, v{vT0}, {srd(sWS)}, s{sC+s} offen offset:{SL_O} sc1')
e('s_waitcnt vmcnt(0)')
umax_chain(vT1, list(range(vO, vO + 8)))
poll_tail('L_po', vT1)
e('s_waitcnt lgkmcnt(0)')
e(f'v_mul_f32 v{vO}, v{vCF}, v{vO}')
e(f'v_mul_f32 v{vO+1}, v{vCF+1}, v{vO+1}')
for s in range(2, 8): e(f'v_fmac_f32 v{vO+(s&1)}, v{vCF+s}, v{vO+s}')
e(f'v_add_f32 v{vO}, v{vO}, v{vO+1}')
e(f'v_cvt_pk_bf16_f32 v{vO}, v{vO}, 0')
e('s_mov_b64 exec, s[30:31]')
e(f'ds_write_b32 v{vT3}, v{vO} offset:{L_U}')
e('s_waitcnt lgkmcnt(0)')
e('s_barrier')
stamp(6)
stamp_out()
lab('L_stagec')
vA = 16
vU = 32
for i in range(16): e(f'v_mov_b32 v{vA+i}, 0')
lds_spin(C6, 1)
e(f'v_lshrrev_b32 v{vT4}, 3, v{vLANE}')
e(f'v_lshlrev_b32 v{vT4}, 5, v{vT4}')
e(f'ds_read_b64 {v2(vU+6)}, v{vT4} offset:{L_U+24}')
y_addr(vT2, vT3)
e(f's_lshl_b32 s{sT0}, s{sWAVE}, 16')
e(f's_add_u32 s{sT0}, s{sT0}, s{sYB}')
e(f'v_and_b32 v{vT3}, 8, v{vLANE}')
e(f'v_cmp_eq_u32 s[30:31], 0, v{vT3}')
e('s_waitcnt vmcnt(6) lgkmcnt(0)')
for i in range(6, 8): e(f'v_lshlrev_b32 v{vU+8+i}, 16, v{vU+i}')
for i in range(6, 8): axpy(vA + 8, vWO + 4 * i, vU + i, vU + 8 + i)
reduce_r8(vA + 8, 1)
e(f'v_min_u32 v{vA+10}, -2, v{vA+8}')
e(f'v_min_u32 v{vA+11}, -2, v{vA+9}')
e('s_waitcnt vmcnt(0)')
e('s_barrier')
stamp(6)
e(f'ds_read_b128 {v4(vU)}, v{vT4} offset:{L_U}')
e(f'ds_read_b64 {v2(vU+4)}, v{vT4} offset:{L_U+16}')
e('s_waitcnt lgkmcnt(0)')
for i in range(6): e(f'v_lshlrev_b32 v{vU+8+i}, 16, v{vU+i}')
for i in range(6): axpy(vA, vWO + 4 * i, vU + i, vU + 8 + i)
reduce_r8(vA, 1)
e(f'v_min_u32 v{vA+8}, -2, v{vA}')
e(f'v_min_u32 v{vA+9}, -2, v{vA+1}')
e('s_mov_b64 exec, s[30:31]')
e(f'buffer_store_dwordx4 {v4(vA+8)}, v{vT2}, {srd(sWS)}, s{sT0} offen sc1')
stamp_out()
lab('L_final')
e(f's_cmp_ge_u32 s2, {NRED}')
e('s_cbranch_scc1 L_end2')
vY = 128
e(f'v_lshrrev_b32 v{vT0}, 2, v{vLANE}')
e(f'v_lshlrev_b32 v{vT0}, 7, v{vT0}')
e(f'v_and_b32 v{vT2}, 3, v{vLANE}')
e(f'v_lshlrev_b32 v{vT3}, 4, v{vT2}')
e(f'v_add_u32 v{vT0}, v{vT0}, v{vT3}')
e(f's_lshr_b32 s{sT0}, s2, 1')
e(f's_lshl_b32 s{sT0}, s{sT0}, 14')
e(f's_and_b32 s{sT1}, s2, 1')
e(f's_lshl_b32 s{sT1}, s{sT1}, 6')
e(f's_add_u32 s{sT0}, s{sT0}, s{sT1}')
e(f's_add_u32 s{sT0}, s{sT0}, {WS_Y}')
for i in range(1, 4): e(f's_add_u32 s{sC+i}, s{sT0}, {4096*i}')
e(f's_mov_b32 s{sC}, s{sT0}')
e(f'v_lshlrev_b32 v{vT2}, 2, v{vT2}')
e(f'v_lshrrev_b32 v{vT3}, 5, v{vLANE}')
e(f'v_lshlrev_b32 v{vT3}, 1, v{vT3}')
e(f'v_add_u32 v{vT2}, v{vT2}, v{vT3}')
e(f's_lshl_b32 s{sT1}, s2, 4')
e(f'buffer_load_ushort v{vT4}, v{vT2}, {srd(sX)}, s{sT1} offen')
e(f'v_and_b32 v{vT3}, 28, v{vLANE}')
e(f'v_cmp_eq_u32 s[30:31], 0, v{vT3}')
e('s_barrier')
stamp(6)
e(f's_mov_b32 s{sCNT}, 0')
lab('L_py')
for i in range(8):
    e(f'buffer_load_dwordx4 {v4(vY+4*i)}, v{vT0}, {srd(sWS)}, s{sC+i//2} offen offset:{2048*(i&1)} sc1')
e('s_waitcnt vmcnt(0)')
umax_chain(vT1, list(range(vY, vY + 32)))
poll_tail('L_py', vT1)
for step in (4, 2, 1):
    for w in range(step):
        for c in range(4):
            e(f'v_add_f32 v{vY+4*w+c}, v{vY+4*w+c}, v{vY+4*(w+step)+c}')
nop(1)
e(f'v_permlane32_swap_b32 v{vY}, v{vY+1}')
e(f'v_permlane32_swap_b32 v{vY+2}, v{vY+3}')
nop(1)
e(f'v_add_f32 v{vY}, v{vY}, v{vY+1}')
e(f'v_add_f32 v{vY+2}, v{vY+2}, v{vY+3}')
for dpp in ('row_ror:8', 'row_ror:4'):
    nop(1)
    e(f'v_add_f32 v{vY}, v{vY}, v{vY} {dpp} {DPP}')
    e(f'v_add_f32 v{vY+2}, v{vY+2}, v{vY+2} {dpp} {DPP}')
nop(1)
e(f'v_mov_b32 v{vY+1}, v{vY}')
e(f'v_mov_b32 v{vY+3}, v{vY+2}')
nop(1)
e(f'v_permlane16_swap_b32 v{vY+1}, v{vY}')
e(f'v_permlane16_swap_b32 v{vY+3}, v{vY+2}')
nop(1)
e(f'v_add_f32 v{vY}, v{vY}, v{vY+1}')
e(f'v_add_f32 v{vY+2}, v{vY+2}, v{vY+3}')
bf16_round(vY, vY)
bf16_round(vY + 2, vY + 2)
e(f'v_lshlrev_b32 v{vT4}, 16, v{vT4}')
e(f'v_add_f32 v{vY}, v{vT4}, v{vY}')
bf16_round(vY, vY)
e(f'v_add_f32 v{vY}, v{vY}, v{vY+2}')
e(f'v_cvt_pk_bf16_f32 v{vY}, v{vY}, v{vY}')
if THR:
    e('s_memrealtime s[96:97]')
    e('s_waitcnt lgkmcnt(0)')
    e('s_sub_u32 s96, s96, s98')
    e(f's_cmp_gt_u32 s96, {THR[0]}')
    e('s_cselect_b32 s96, 0x7fc07fc0, 0')
    e(f'v_or_b32 v{vY}, s96, v{vY}')
e('s_mov_b64 exec, s[30:31]')
e(f'buffer_store_short v{vY}, v{vT2}, {srd(sOUT)}, s{sT1} offen')
lab('L_end2')
if STAMPS:
    e('s_mov_b64 exec, -1')
    lab('L_stamp_out')
    e(f's_memrealtime s[{sST+14}:{sST+15}]')
    e('s_waitcnt lgkmcnt(0)')
    for i in range(8): e(f'v_mov_b32 v{200+i}, s{sST+2*i}')
    e(f's_lshl_b32 s{sT0}, s2, 3')
    e(f's_add_u32 s{sT0}, s{sT0}, s{sWAVE}')
    e(f's_lshl_b32 s{sT0}, s{sT0}, 5')
    e(f's_add_u32 s{sT0}, s{sT0}, {WS_STAMP}')
    e(f'v_mov_b32 v{vT0}, 0')
    e('s_mov_b64 exec, 1')
    e(f'buffer_store_dwordx4 {v4(200)}, v{vT0}, {srd(sWS)}, s{sT0} offen')
    e(f'buffer_store_dwordx4 {v4(204)}, v{vT0}, {srd(sWS)}, s{sT0} offen offset:16')
lab('L_end')
e('s_endpgm')
L.append('.section .rodata,"a"')
L.append('.p2align 6')
L.append(f'.amdhsa_kernel {NAME}')
L.append('  .amdhsa_next_free_vgpr 256')
L.append('  .amdhsa_next_free_sgpr 102')
L.append('  .amdhsa_accum_offset 256')
L.append('  .amdhsa_group_segment_fixed_size 0')
L.append('  .amdhsa_kernarg_size 96')
L.append('  .amdhsa_user_sgpr_count 2')
L.append('  .amdhsa_user_sgpr_kernarg_segment_ptr 1')
L.append('  .amdhsa_system_sgpr_workgroup_id_x 1')
L.append('.end_amdhsa_kernel')
open(sys.argv[1], 'w').write('\n'.join(L) + '\n')
```

```python
import sys, copy
STAMPS = '--stamps' in sys.argv
NODEFER = '--nodefer' in sys.argv
THR = [int(a.split('=')[1]) for a in sys.argv if a.startswith('--thr=')]
NAME = 'parallel_sum__sliding_block_cached__glu_gated_swiglu__decode_kernel'

L = []
def e(s): L.append('    ' + s)
def lab(s): L.append(s + ':')
def cmt(s): L.append('    ; ' + s)

HEAD_STRIDE = 32768 * 384
WIN = 28672 * 384
WS_SLOT = 4096
SL_Q, SL_O, SL_G, SL_U, SL_ML = 0, 1536, 3072, 3456, 3840
WS_Y = 256 * WS_SLOT
WS_Y_BYTES = 40 * 16384
WS_USED = WS_Y + WS_Y_BYTES
WS_STAMP = 2 << 20
OOB = 0x40000000
SPIN = 0x40000
NRED = 80

sX, sK, sV, sWQ, sWO, sW1, sW3, sW2, sOUT, sDBG, sWS = [40 + 4 * i for i in range(11)]
def srd(b): return f's[{b}:{b+3}]'
sHEAD, sSPLIT, sWAVE = 3, 4, 5
sT0, sT1, sT2, sT3 = 6, 7, 8, 9
sKB = 10
sWQB = 11
sSLOT = 12
sGRP = 13
sWOB = 14
sW2B = 15
sCNT = 16
sFB = 17
sT4 = 18
sT5 = 19
sC = 20
sRQ, sCH = 32, 33
sYB = 34
sKE = 39
sST = 84

L_RED = 0
L_FRED = 3072
L_QBF = 4608
L_P = 5120
L_WMAX = 7168
L_WSUM = 7184
L_CNT = 7200
C1, C2, C3, C6, C7, C8 = [L_CNT + 4 * i for i in range(6)]
C4 = L_CNT + 32
L_COEF = 7264
L_TAG = 7296
L_U = 7312 + 112
LDS_BYTES = 7680

vTID = 0
vOFF = 1
vT0, vT1, vT2, vT3 = 2, 3, 4, 5
vLANE = 6
vRA = 7
vM = 8
vT4, vT5, vT6, vT7 = 9, 10, 11, 12
vTG = 14
vX = 60
vD = 64

class VM:
    def __init__(self): self.q = []
    def issue(self, tag): self.q.append(tag)
    def wait(self, tag):
        if tag not in self.q: return
        idx = max(i for i, t in enumerate(self.q) if t == tag)
        n = len(self.q) - 1 - idx
        assert n <= 63, n
        e(f's_waitcnt vmcnt({n})')
        self.q = self.q[idx + 1:]

def stamp(i):
    if STAMPS: e(f's_memrealtime s[{sST+2*i}:{sST+2*i+1}]')
def stamp_out():
    if STAMPS:
        e('s_mov_b64 exec, -1')
        e('s_branch L_stamp_out')
    else:
        e('s_endpgm')
def nop(n): e(f's_nop {n}')
def v4(b): return f'v[{b}:{b+3}]'
def v2(b): return f'v[{b}:{b+1}]'
DPP = 'row_mask:0xf bank_mask:0xf'

def bf16_round(dst, src):
    e(f'v_cvt_pk_bf16_f32 v{dst}, v{src}, v{src}')
    e(f'v_and_b32 v{dst}, 0xffff0000, v{dst}')

def allreduce_rows(op, v, tmp):
    nop(1)
    e(f'v_mov_b32 v{tmp}, v{v}')
    nop(1)
    e(f'v_permlane16_swap_b32 v{tmp}, v{v}')
    nop(1)
    e(f'{op} v{v}, v{tmp}, v{v}')
    nop(1)
    e(f'v_mov_b32 v{tmp}, v{v}')
    nop(1)
    e(f'v_permlane32_swap_b32 v{tmp}, v{v}')
    nop(1)
    e(f'{op} v{v}, v{tmp}, v{v}')

def allreduce8(op, v):
    nop(1)
    e(f'{op} v{v}, v{v}, v{v} quad_perm:[1,0,3,2] {DPP}')
    nop(1)
    e(f'{op} v{v}, v{v}, v{v} quad_perm:[2,3,0,1] {DPP}')
    nop(1)
    e(f'{op} v{v}, v{v}, v{v} row_half_mirror {DPP}')

def allreduce64(op, v, tmp):
    allreduce8(op, v)
    nop(1)
    e(f'{op} v{v}, v{v}, v{v} row_mirror {DPP}')
    allreduce_rows(op, v, tmp)

def reduce_r8(acc, nj):
    nop(2)
    for j in range(nj):
        for ee in range(4): e(f'v_permlane32_swap_b32 v{acc+8*j+ee}, v{acc+8*j+ee+4}')
    nop(1)
    for j in range(nj):
        for ee in range(4): e(f'v_add_f32 v{acc+8*j+ee}, v{acc+8*j+ee}, v{acc+8*j+ee+4}')
    nop(1)
    for j in range(nj):
        for ee in range(2): e(f'v_permlane16_swap_b32 v{acc+8*j+ee}, v{acc+8*j+ee+2}')
    nop(1)
    for j in range(nj):
        for ee in range(2): e(f'v_add_f32 v{acc+8*j+ee}, v{acc+8*j+ee}, v{acc+8*j+ee+2}')
    nop(1)
    for j in range(nj):
        for ee in range(2): e(f'v_add_f32 v{acc+8*j+ee}, v{acc+8*j+ee}, v{acc+8*j+ee} row_ror:8 {DPP}')

def axpy(acc, data, lo, hi):
    for d in range(4):
        e(f'v_dot2c_f32_bf16 v{acc+2*d}, v{data+d}, v{lo}')
        e(f'v_dot2c_f32_bf16 v{acc+2*d+1}, v{data+d}, v{hi}')

uid = [0]
def lds_spin(addr, target, sleep=True, vaddr=None):
    uid[0] += 1
    n = uid[0]
    if vaddr is None:
        e(f'v_mov_b32 v{vT0}, 0'); vaddr = vT0
    e(f's_mov_b32 s{sCNT}, 0')
    lab(f'L_sp{n}')
    e(f'ds_read_b32 v{vT1}, v{vaddr} offset:{addr}')
    e('s_waitcnt lgkmcnt(0)')
    e(f'v_readfirstlane_b32 s{sT5}, v{vT1}')
    e(f's_add_u32 s{sCNT}, s{sCNT}, 1')
    e(f's_cmp_ge_u32 s{sT5}, {target}')
    e(f's_cbranch_scc1 L_spd{n}')
    e(f's_cmp_gt_u32 s{sCNT}, {SPIN*16}')
    e(f's_cbranch_scc1 L_spd{n}')
    if sleep: e('s_sleep 1')
    e(f's_branch L_sp{n}')
    lab(f'L_spd{n}')

def lds_inc(addr):
    e('s_waitcnt lgkmcnt(0)')
    e(f'v_mov_b32 v{vT0}, 0')
    e(f'v_mov_b32 v{vT1}, 1')
    e('s_mov_b64 exec, 1')
    e(f'ds_add_u32 v{vT0}, v{vT1} offset:{addr}')
    e('s_mov_b64 exec, -1')

def get_tag():
    e(f'v_mov_b32 v{vT0}, 0')
    e(f'ds_read_b64 {v2(vTG)}, v{vT0} offset:{L_TAG}')
    e('s_waitcnt lgkmcnt(0)')

def tag_check(dst, tmp, grans):
    first = True
    for g in grans:
        if first:
            e(f'v_xor_b32 v{dst}, v{g+2}, v{vTG}')
            e(f'v_xor_b32 v{tmp}, v{g+3}, v{vTG+1}')
            e(f'v_or_b32 v{dst}, v{dst}, v{tmp}')
            first = False
        else:
            e(f'v_xor_b32 v{g+2}, v{g+2}, v{vTG}')
            e(f'v_xor_b32 v{g+3}, v{g+3}, v{vTG+1}')
            e(f'v_or3_b32 v{dst}, v{dst}, v{g+2}, v{g+3}')

def poll_tail(name, chk, mask=None):
    e(f'v_cmp_ne_u32 vcc, 0, v{chk}')
    e(f's_add_u32 s{sCNT}, s{sCNT}, 1')
    if mask: e(f's_and_b64 vcc, vcc, {mask}')
    e(f's_cmp_gt_u32 s{sCNT}, {SPIN}')
    e(f's_cbranch_scc1 {name}_done')
    e(f's_cbranch_vccnz {name}')
    lab(f'{name}_done')

def red_addr():
    e(f'v_and_b32 v{vRA}, 7, v{vLANE}')
    e(f'v_lshlrev_b32 v{vRA}, 5, v{vRA}')
    e(f'v_lshrrev_b32 v{vT6}, 5, v{vLANE}')
    e(f'v_lshlrev_b32 v{vT6}, 4, v{vT6}')
    e(f'v_add_u32 v{vRA}, v{vRA}, v{vT6}')
    e(f'v_bfe_u32 v{vT6}, v{vLANE}, 4, 1')
    e(f'v_lshlrev_b32 v{vT6}, 3, v{vT6}')
    e(f'v_add_u32 v{vRA}, v{vRA}, v{vT6}')

def wo_setup():
    e(f'v_lshrrev_b32 v{vT0}, 3, v{vLANE}')
    e(f'v_and_b32 v{vT1}, 7, v{vLANE}')
    e(f'v_lshlrev_b32 v{vT1}, 4, v{vT1}')
    e(f'v_mul_u32_u24 v{vT4}, 1280, v{vT0}')
    e(f'v_add_u32 v{vT4}, v{vT4}, v{vT1}')
    e(f'v_mov_b32 v{vT2}, {OOB}')
    e(f'v_cmp_gt_u32 vcc, 32, v{vLANE}')
    nop(1)
    e(f'v_cndmask_b32 v{vT5}, v{vT2}, v{vT4}, vcc')
    e(f's_mul_i32 s{sT0}, s{sCH}, 640')
    e(f's_lshl_b32 s{sT1}, s{sWAVE}, 7')
    e(f's_add_u32 s{sT0}, s{sT0}, s{sT1}')
    e(f's_lshl_b32 s{sT1}, s{sHEAD}, 2')
    e(f's_add_u32 s{sT1}, s{sT1}, s{sRQ}')
    e(f's_mul_i32 s{sWOB}, s{sT1}, {48*1280}')
    e(f's_add_u32 s{sWOB}, s{sWOB}, s{sT0}')
    e(f's_mul_i32 s{sW2B}, s{sT1}, {12*1280}')
    e(f's_add_u32 s{sW2B}, s{sW2B}, s{sT0}')

def wo_issue(vm, base):
    e(f'buffer_load_dwordx4 {v4(base+24)}, v{vT4}, {srd(sW2)}, s{sW2B} offen nt'); vm.issue('wo')
    e(f's_add_u32 s{sW2B}, s{sW2B}, {8*1280}')
    e(f'buffer_load_dwordx4 {v4(base+28)}, v{vT5}, {srd(sW2)}, s{sW2B} offen nt'); vm.issue('wo')
    for i in range(6):
        e(f'buffer_load_dwordx4 {v4(base+4*i)}, v{vT4}, {srd(sWO)}, s{sWOB} offen nt'); vm.issue('wo')
        if i < 5: e(f's_add_u32 s{sWOB}, s{sWOB}, {8*1280}')

def adv():
    e(f's_add_u32 s{sKB}, s{sKB}, 3072')
    e(f's_sub_u32 s{sT5}, s{sKB}, {16*3072}')
    e(f's_cmp_ge_u32 s{sKB}, s{sKE}')
    e(f's_cselect_b32 s{sKB}, s{sT5}, s{sKB}')

def publish192(base, slot_off):
    e(f'v_lshlrev_b32 v{vT2}, 3, v{vLANE}')
    e(f'v_lshlrev_b32 v{vT3}, 4, v{vLANE}')
    for w in range(4):
        e(f'ds_read_b64 {v2(base+8+2*w)}, v{vT2} offset:{L_RED+768*w}')
    for w in range(4):
        e(f'ds_read_b64 {v2(base+16+2*w)}, v{vT2} offset:{L_RED+768*w+512}')
    e(f'v_mov_b32 v{base+2}, v{vTG}')
    e(f'v_mov_b32 v{base+3}, v{vTG+1}')
    e(f'v_mov_b32 v{base+6}, v{vTG}')
    e(f'v_mov_b32 v{base+7}, v{vTG+1}')
    e('s_waitcnt lgkmcnt(4)')
    for c in range(2):
        e(f'v_add_f32 v{base+8+c}, v{base+8+c}, v{base+10+c}')
        e(f'v_add_f32 v{base+12+c}, v{base+12+c}, v{base+14+c}')
    for c in range(2): e(f'v_add_f32 v{base+c}, v{base+8+c}, v{base+12+c}')
    e(f'buffer_store_dwordx4 {v4(base)}, v{vT3}, {srd(sWS)}, s{sSLOT} offen offset:{slot_off} sc1')
    e('s_waitcnt lgkmcnt(0)')
    for c in range(2):
        e(f'v_add_f32 v{base+16+c}, v{base+16+c}, v{base+18+c}')
        e(f'v_add_f32 v{base+20+c}, v{base+20+c}, v{base+22+c}')
    for c in range(2): e(f'v_add_f32 v{base+4+c}, v{base+16+c}, v{base+20+c}')
    e('s_mov_b32 exec_hi, 0')
    e(f'buffer_store_dwordx4 {v4(base+4)}, v{vT3}, {srd(sWS)}, s{sSLOT} offen offset:{slot_off+1024} sc1')
    e('s_mov_b64 exec, -1')

hdr = open('parallel_sum__sliding_block_cached__glu_gated_swiglu__decode.s.ref').read().split('\n')
for line in hdr:
    if line.startswith('; @launch'):
        L.append(f'; @launch grid=(256,1,1) block=(512,1,1) lds={LDS_BYTES}')
    elif line.startswith(';'):
        L.append(line)
    else:
        break
L.append('.amdgcn_target "amdgcn-amd-amdhsa--gfx950"')
L.append('.text')
L.append(f'.globl {NAME}')
L.append('.p2align 8')
L.append(f'.type {NAME},@function')
lab(NAME)
stamp(0)
if THR: e('s_memrealtime s[98:99]')
e('s_cmp_ge_u32 s2, 256')
e('s_cbranch_scc1 L_end')
for (sr, off) in [(sX, 0), (sWQ, 24), (sDBG, 80), (sV, 16), (sW1, 48), (sW3, 56), (sK, 8), (sWS, 88), (sWO, 32), (sW2, 64), (sOUT, 72)]:
    e(f's_load_dwordx2 s[{sr}:{sr+1}], s[0:1], {off}')
e('s_memrealtime s[36:37]')
e(f'v_lshrrev_b32 v{vT0}, 6, v0')
e(f'v_and_b32 v{vLANE}, 63, v0')
e(f'v_readfirstlane_b32 s{sWAVE}, v{vT0}')
e(f'v_mov_b32 v{vT3}, 0')
e(f'v_and_b32 v{vT4}, 15, v0')
e(f'v_lshlrev_b32 v{vT4}, 2, v{vT4}')
e(f'ds_write_b32 v{vT4}, v{vT3} offset:{L_CNT}')
for (sr, nb) in [(sX, 1280), (sWQ, 7864320), (sK, 402653184), (sWS, (WS_STAMP + 65536*4) if STAMPS else WS_USED), (sV, 402653184), (sW1, 1966080),
                 (sW3, 1966080), (sDBG, 256), (sWO, 7864320), (sW2, 1966080), (sOUT, 1280)]:
    e(f's_mov_b32 s{sr+2}, {nb}')
    e(f's_mov_b32 s{sr+3}, 0x00020000')
e(f's_and_b32 s{sHEAD}, s2, 7')
e(f's_lshr_b32 s{sSPLIT}, s2, 3')
e(f's_and_b32 s{sT0}, s{sSPLIT}, 3')
e(f's_lshl_b32 s{sHEAD}, s{sHEAD}, 2')
e(f's_add_u32 s{sHEAD}, s{sHEAD}, s{sT0}')
e(f's_lshr_b32 s{sSPLIT}, s{sSPLIT}, 2')
e(f'v_lshrrev_b32 v{vT0}, 3, v{vLANE}')
e(f'v_and_b32 v{vT1}, 7, v{vLANE}')
e(f'v_lshlrev_b32 v{vT2}, 4, v{vT1}')
e(f'v_mul_u32_u24 v{vOFF}, 384, v{vT0}')
e(f'v_add_u32 v{vOFF}, v{vOFF}, v{vT2}')
e(f's_mul_i32 s{sKB}, s{sHEAD}, {HEAD_STRIDE}')
e(f's_mul_i32 s{sT0}, s{sSPLIT}, {512*384}')
e(f's_add_u32 s{sKB}, s{sKB}, s{sT0}')
e(f's_and_b32 s{sT1}, s{sWAVE}, 3')
e(f's_mul_i32 s{sT0}, s{sT1}, {128*384}')
e(f's_add_u32 s{sKB}, s{sKB}, s{sT0}')
e(f's_add_u32 s{sKB}, s{sKB}, {WIN}')
e(f's_lshr_b32 s{sT0}, s2, 4')
e(f's_xor_b32 s{sT0}, s{sT0}, s2')
e(f's_lshl_b32 s{sT1}, s{sT1}, 2')
e(f's_xor_b32 s{sT0}, s{sT0}, s{sT1}')
e(f's_and_b32 s{sT0}, s{sT0}, 15')
e(f's_add_u32 s{sKE}, s{sKB}, {16*3072}')
e(f's_mul_i32 s{sT0}, s{sT0}, 3072')
e(f's_add_u32 s{sKB}, s{sKB}, s{sT0}')
e(f's_cmp_ge_u32 s{sWAVE}, 4')
e('s_cbranch_scc1 L_vwave')

def common_scalars():
    e(f's_lshl_b32 s{sGRP}, s{sHEAD}, 15')
    e(f's_lshl_b32 s{sT0}, s{sSPLIT}, 12')
    e(f's_add_u32 s{sSLOT}, s{sGRP}, s{sT0}')
    e(f's_lshr_b32 s{sRQ}, s{sSPLIT}, 1')
    e(f's_and_b32 s{sCH}, s{sSPLIT}, 1')
    e(f's_mul_i32 s{sYB}, s{sCH}, {20*16384}')
    e(f's_lshl_b32 s{sT0}, s{sHEAD}, 9')
    e(f's_add_u32 s{sYB}, s{sYB}, s{sT0}')
    e(f's_lshl_b32 s{sT0}, s{sRQ}, 7')
    e(f's_add_u32 s{sYB}, s{sYB}, s{sT0}')
    e(f's_add_u32 s{sYB}, s{sYB}, {WS_Y}')

vm = VM()
e('s_setprio 2')
vWQ = vD + 12 * 11
vAC = vD + 12 * 7
vFA = vAC + 24
vXS = 16
e(f's_mul_i32 s{sT0}, s{sSPLIT}, 80')
e(f's_mul_i32 s{sT1}, s{sWAVE}, 20')
e(f's_add_u32 s{sT0}, s{sT0}, s{sT1}')
e(f's_lshl_b32 s{sT3}, s{sT0}, 1')
e(f's_mul_i32 s{sWQB}, s{sT0}, 12288')
e(f's_mul_i32 s{sT1}, s{sHEAD}, 384')
e(f's_add_u32 s{sWQB}, s{sWQB}, s{sT1}')
e(f's_mul_i32 s{sFB}, s{sT0}, 3072')
e(f's_mul_i32 s{sT1}, s{sHEAD}, 96')
e(f's_add_u32 s{sFB}, s{sFB}, s{sT1}')
e(f'v_mul_u32_u24 v{vT3}, 20, v{vLANE}')
e(f'v_lshlrev_b32 v{vT4}, 1, v{vT0}')
e(f'v_mul_u32_u24 v{vT5}, 12288, v{vT0}')
e(f'v_add_u32 v{vT5}, v{vT5}, v{vT2}')
e(f'v_mul_u32_u24 v{vT6}, 3072, v{vT0}')
e(f'v_add_u32 v{vT6}, v{vT6}, v{vT2}')
e(f'v_mov_b32 v{vT7}, {OOB}')
e(f'v_cmp_gt_u32 vcc, 6, v{vT1}')
nop(1)
e(f'v_cndmask_b32 v{vT6}, v{vT7}, v{vT6}, vcc')
e(f'v_cmp_gt_u32 vcc, 32, v{vLANE}')
nop(1)
e(f'v_cndmask_b32 v{vM}, v{vT7}, v{vT5}, vcc')
e(f'v_cndmask_b32 v{vRA}, v{vT7}, v{vT6}, vcc')
e('s_waitcnt lgkmcnt(0)')
stamp(1)
e(f'buffer_load_dwordx4 {v4(vXS)}, v{vT3}, {srd(sX)}, 0 offen'); vm.issue('x')
e(f'buffer_load_dword v{vXS+4}, v{vT3}, {srd(sX)}, 0 offen offset:16'); vm.issue('x')
for k in range(3):
    e(f'buffer_load_ushort v{vX+k}, v{vT4}, {srd(sX)}, s{sT3} offen offset:{16*k}'); vm.issue('x')
for k in range(3):
    vo = vT5 if k < 2 else vM
    vf = vT6 if k < 2 else vRA
    for j in range(3):
        e(f'buffer_load_dwordx4 {v4(vWQ+20*k+4*j)}, v{vo}, {srd(sWQ)}, s{sWQB} offen offset:{128*j} nt'); vm.issue('wq')
    e(f'buffer_load_dwordx4 {v4(vWQ+20*k+12)}, v{vf}, {srd(sW1)}, s{sFB} offen nt'); vm.issue('wq')
    e(f'buffer_load_dwordx4 {v4(vWQ+20*k+16)}, v{vf}, {srd(sW3)}, s{sFB} offen nt'); vm.issue('wq')
    if k < 2:
        e(f's_add_u32 s{sWQB}, s{sWQB}, {8*12288}')
        e(f's_add_u32 s{sFB}, s{sFB}, {8*3072}')
def kload(G):
    for j in range(3):
        e(f'buffer_load_dwordx4 {v4(vD+12*G+4*j)}, v{vOFF}, {srd(sK)}, s{sKB} offen offset:{128*j} nt'); vm.issue(f'k{G}')
    adv()
common_scalars()
e('s_barrier')
vm.wait('x')
e(f'v_lshlrev_b32 v{vT0}, 16, v{vXS}')
e(f'v_and_b32 v{vT1}, 0xffff0000, v{vXS}')
e(f'v_add_f32 v{vT3}, v{vT0}, v{vT1}')
for d in range(1, 5):
    e(f'v_lshlrev_b32 v{vT0}, 16, v{vXS+d}')
    e(f'v_and_b32 v{vT1}, 0xffff0000, v{vXS+d}')
    e(f'v_add_f32 v{vT3}, v{vT3}, v{vT0}')
    e(f'v_add_f32 v{vT3}, v{vT3}, v{vT1}')
allreduce64('v_add_f32', vT3, vT4)
e(f'v_mul_f32 v{vT3}, 0x3acccccd, v{vT3}')
e(f'v_mov_b32 v{vT5}, 0')
for d in range(5):
    e(f'v_lshlrev_b32 v{vT0}, 16, v{vXS+d}')
    e(f'v_and_b32 v{vT1}, 0xffff0000, v{vXS+d}')
    e(f'v_sub_f32 v{vT0}, v{vT0}, v{vT3}')
    e(f'v_sub_f32 v{vT1}, v{vT1}, v{vT3}')
    e(f'v_fmac_f32 v{vT5}, v{vT0}, v{vT0}')
    e(f'v_fmac_f32 v{vT5}, v{vT1}, v{vT1}')
allreduce64('v_add_f32', vT5, vT4)
e(f'v_mul_f32 v{vT5}, 0x3acccccd, v{vT5}')
bf16_round(vT3, vT3)
bf16_round(vT5, vT5)
e(f'v_add_f32 v{vT5}, 0x3727c5ac, v{vT5}')
bf16_round(vT5, vT5)
e(f'v_sqrt_f32 v{vT5}, v{vT5}')
nop(0)
bf16_round(vT5, vT5)
e(f'v_rcp_f32 v{vT6}, v{vT5}')
nop(0)
for k in range(3):
    e(f'v_lshlrev_b32 v{vT0}, 16, v{vX+k}')
    e(f'v_sub_f32 v{vT0}, v{vT0}, v{vT3}')
    bf16_round(vT0, vT0)
    e(f'v_mul_f32 v{vT4}, v{vT0}, v{vT6}')
    e(f'v_fma_f32 v{vT0}, -v{vT4}, v{vT5}, v{vT0}')
    e(f'v_fmac_f32 v{vT4}, v{vT0}, v{vT6}')
    e(f'v_cvt_pk_bf16_f32 v{vX+k}, v{vT4}, 0')
for i in range(40): e(f'v_mov_b32 v{vAC+i}, 0')
red_addr()
vm.wait('wq')
for k in range(3):
    e(f'v_lshlrev_b32 v{vT1}, 16, v{vX+k}')
    for j in range(3): axpy(vAC + 8 * j, vWQ + 20 * k + 4 * j, vX + k, vT1)
    axpy(vFA, vWQ + 20 * k + 12, vX + k, vT1)
    axpy(vFA + 8, vWQ + 20 * k + 16, vX + k, vT1)
reduce_r8(vAC, 5)
e(f's_mul_i32 s{sT0}, s{sWAVE}, 768')
e(f'v_add_u32 v{vT2}, s{sT0}, v{vRA}')
for j in range(3):
    e(f'ds_write_b64 v{vT2}, {v2(vAC+8*j)} offset:{L_RED+256*j}')
e(f's_mul_i32 s{sT0}, s{sWAVE}, 384')
e(f'v_add_u32 v{vT2}, s{sT0}, v{vRA}')
e(f'v_and_b32 v{vT1}, 7, v{vLANE}')
e(f'v_cmp_gt_u32 vcc, 6, v{vT1}')
e('s_and_saveexec_b64 s[28:29], vcc')
e(f'ds_write_b64 v{vT2}, {v2(vFA)} offset:{L_FRED}')
e(f'ds_write_b64 v{vT2}, {v2(vFA+8)} offset:{L_FRED+192}')
e('s_mov_b64 exec, s[28:29]')
lds_inc(C1)
stamp(2)
for G in range(16): kload(G)
lds_spin(C2, 1)
stamp(3)
vQ = 16
vS = 28
e(f'v_and_b32 v{vT0}, 7, v{vLANE}')
e(f'v_lshlrev_b32 v{vT0}, 4, v{vT0}')
for j in range(3):
    e(f'ds_read_b128 {v4(vQ+4*j)}, v{vT0} offset:{L_QBF+128*j}')
get_tag()
for G in range(16):
    vm.wait(f'k{G}')
    e(f'v_mov_b32 v{vS+G}, 0')
    e(f'v_mov_b32 v{vT0}, 0')
    e(f'v_mov_b32 v{vT1}, 0')
    accs = [vS + G, vT0, vT1]
    for d in range(4):
        for j in range(3):
            e(f'v_dot2c_f32_bf16 v{accs[j]}, v{vD+12*G+4*j+d}, v{vQ+4*j+d}')
    nop(2)
    e(f'v_add_f32 v{vT0}, v{vT0}, v{vT1}')
    e(f'v_add_f32 v{vS+G}, v{vS+G}, v{vT0}')
for G in range(16):
    e(f'v_add_f32 v{vS+G}, v{vS+G}, v{vS+G} quad_perm:[1,0,3,2] {DPP}')
for G in range(16):
    e(f'v_add_f32 v{vS+G}, v{vS+G}, v{vS+G} quad_perm:[2,3,0,1] {DPP}')
for G in range(16):
    e(f'v_add_f32 v{vS+G}, v{vS+G}, v{vS+G} row_half_mirror {DPP}')
for G in range(16):
    bf16_round(vS + G, vS + G)
    e(f'v_mul_f32 v{vS+G}, 0x3d93cd3a, v{vS+G}')
    bf16_round(vS + G, vS + G)
stamp(4)
e(f'v_max3_f32 v{vM}, v{vS}, v{vS+1}, v{vS+2}')
for G in range(3, 15, 2): e(f'v_max3_f32 v{vM}, v{vM}, v{vS+G}, v{vS+G+1}')
e(f'v_max_f32 v{vM}, v{vM}, v{vS+15}')
nop(1)
e(f'v_max_f32 v{vM}, v{vM}, v{vM} row_ror:8 {DPP}')
allreduce_rows('v_max_f32', vM, vT1)
e(f'v_mov_b32 v{vT2}, 0')
for G in range(16):
    e(f'v_sub_f32 v{vS+G}, v{vS+G}, v{vM}')
    e(f'v_mul_f32 v{vS+G}, 0x3fb8aa3b, v{vS+G}')
    e(f'v_exp_f32 v{vS+G}, v{vS+G}')
    nop(0)
    e(f'v_add_f32 v{vT2}, v{vT2}, v{vS+G}')
    e(f'v_cvt_pk_bf16_f32 v{vS+G}, v{vS+G}, 0')
e(f'v_lshrrev_b32 v{vT4}, 3, v{vLANE}')
e(f'v_lshlrev_b32 v{vT4}, 6, v{vT4}')
e(f's_lshl_b32 s{sT1}, s{sWAVE}, 9')
e(f'v_add_u32 v{vT4}, s{sT1}, v{vT4}')
e(f'v_and_b32 v{vT1}, 7, v{vLANE}')
e(f'v_cmp_eq_u32 vcc, 0, v{vT1}')
e('s_and_saveexec_b64 s[28:29], vcc')
for i in range(4): e(f'ds_write_b128 v{vT4}, {v4(vS+4*i)} offset:{L_P+16*i}')
e('s_mov_b64 exec, s[28:29]')
e(f's_lshl_b32 s{sT0}, s{sWAVE}, 2')
e(f'v_mov_b32 v{vT3}, s{sT0}')
e('s_waitcnt lgkmcnt(0)')
e(f'v_mov_b32 v{vT1}, 1')
e(f'ds_write_b32 v{vT3}, v{vT1} offset:{C4}')
nop(1)
e(f'v_add_f32 v{vT2}, v{vT2}, v{vT2} row_ror:8 {DPP}')
allreduce_rows('v_add_f32', vT2, vT1)
e(f'ds_write_b32 v{vT3}, v{vM} offset:{L_WMAX}')
e(f'ds_write_b32 v{vT3}, v{vT2} offset:{L_WSUM}')
lds_inc(C3)
e(f's_cmp_eq_u32 s{sWAVE}, 2')
e('s_cbranch_scc1 L_ffn')
e(f's_cmp_lg_u32 s{sWAVE}, 1')
e('s_cbranch_scc1 L_kwo')
lds_spin(C3, 4)
e(f'ds_read_b128 {v4(44)}, v{vT0} offset:{L_WMAX}')
e(f'ds_read_b128 {v4(48)}, v{vT0} offset:{L_WSUM}')
e('s_waitcnt lgkmcnt(0)')
e('v_max3_f32 v52, v44, v45, v46')
e('v_max_f32 v52, v52, v47')
e('v_mov_b32 v53, 0')
for w in range(4):
    e(f'v_sub_f32 v{44+w}, v{44+w}, v52')
    e(f'v_mul_f32 v{44+w}, 0x3fb8aa3b, v{44+w}')
    e(f'v_exp_f32 v{44+w}, v{44+w}')
    nop(0)
    e(f'v_fmac_f32 v53, v{44+w}, v{48+w}')
e(f'v_mov_b32 v54, v{vTG}')
e(f'v_mov_b32 v55, v{vTG+1}')
e('s_mov_b64 exec, 1')
e(f'buffer_store_dwordx4 v[52:55], v{vT0}, {srd(sWS)}, s{sSLOT} offen offset:{SL_ML} sc1')
e('s_mov_b64 exec, -1')
e('s_branch L_kwo')
lab('L_ffn')
vG = 44
e(f'v_lshrrev_b32 v{vT2}, 3, v{vLANE}')
e(f'v_lshlrev_b32 v{vT2}, 12, v{vT2}')
e(f'v_and_b32 v{vT3}, 7, v{vLANE}')
e(f'v_lshlrev_b32 v{vT4}, 4, v{vT3}')
e(f'v_add_u32 v{vT2}, v{vT2}, v{vT4}')
e(f'v_mov_b32 v{vT1}, {OOB}')
e(f'v_cmp_gt_u32 s[30:31], 6, v{vT3}')
nop(1)
e(f'v_cndmask_b32 v{vT2}, v{vT1}, v{vT2}, s[30:31]')
e(f's_mul_i32 s{sT0}, s{sRQ}, 96')
e(f's_add_u32 s{sT0}, s{sT0}, s{sGRP}')
e(f's_mov_b32 s{sCNT}, 0')
lab('L_pff')
e(f'buffer_load_dwordx4 {v4(vG)}, v{vT2}, {srd(sWS)}, s{sT0} offen offset:{SL_G} sc1')
e(f'buffer_load_dwordx4 {v4(vG+4)}, v{vT2}, {srd(sWS)}, s{sT0} offen offset:{SL_U} sc1')
e('s_waitcnt vmcnt(0)')
tag_check(vT1, vT4, [vG, vG + 4])
poll_tail('L_pff', vT1, 's[30:31]')
for r in (vG, vG + 1, vG + 4, vG + 5):
    nop(1)
    e(f'v_add_f32 v{r}, v{r}, v{r} row_ror:8 {DPP}')
    allreduce_rows('v_add_f32', r, vT1)
for c in range(2):
    bf16_round(vG + c, vG + c)
    bf16_round(vG + 4 + c, vG + 4 + c)
    e(f'v_mul_f32 v{vT1}, 0xbfb8aa3b, v{vG+c}')
    e(f'v_exp_f32 v{vT1}, v{vT1}')
    nop(0)
    e(f'v_add_f32 v{vT1}, 1.0, v{vT1}')
    e(f'v_rcp_f32 v{vT1}, v{vT1}')
    nop(0)
    e(f'v_mul_f32 v{vT1}, v{vG+c}, v{vT1}')
    bf16_round(vT1, vT1)
    e(f'v_mul_f32 v{vT1}, v{vT1}, v{vG+4+c}')
    e(f'v_cvt_pk_bf16_f32 v{vG+8+c}, v{vT1}, 0')
e(f'v_and_b32 v{vT2}, 3, v{vLANE}')
e(f'v_lshlrev_b32 v{vT2}, 6, v{vT2}')
e(f'v_and_b32 v{vT4}, 4, v{vLANE}')
e(f'v_add_u32 v{vT2}, v{vT2}, v{vT4}')
e('s_mov_b64 exec, 0xff')
e(f'ds_write_b32 v{vT2}, v{vG+8} offset:{L_U+24}')
e(f'ds_write_b32 v{vT2}, v{vG+9} offset:{L_U+24+32}')
e('s_mov_b64 exec, -1')
lds_inc(C6)
lab('L_kwo')
wo_setup()
if not NODEFER: e('s_setprio 0')
vWO = vD
wo_issue(vm, vWO)
e('s_setprio 3')
stamp(5)
e(f's_cmp_lg_u32 s{sWAVE}, 0')
e('s_cbranch_scc1 L_stagec')
vML = 44
e(f'v_and_b32 v{vT2}, 7, v{vLANE}')
e(f'v_lshlrev_b32 v{vT2}, 12, v{vT2}')
e(f's_mov_b32 s{sCNT}, 0')
lab('L_pml')
e(f'buffer_load_dwordx4 {v4(vML)}, v{vT2}, {srd(sWS)}, s{sGRP} offen offset:{SL_ML} sc1')
e('s_waitcnt vmcnt(0)')
tag_check(vT1, vT4, [vML])
poll_tail('L_pml', vT1)
e(f'v_mov_b32 v{vT1}, v{vML}')
allreduce8('v_max_f32', vT1)
e(f'v_sub_f32 v{vT1}, v{vML}, v{vT1}')
e(f'v_mul_f32 v{vT1}, 0x3fb8aa3b, v{vT1}')
e(f'v_exp_f32 v{vT1}, v{vT1}')
nop(0)
e(f'v_mul_f32 v{vT2}, v{vT1}, v{vML+1}')
allreduce8('v_add_f32', vT2)
e(f'v_rcp_f32 v{vT2}, v{vT2}')
nop(0)
e(f'v_mul_f32 v{vT3}, v{vT1}, v{vT2}')
e(f'v_and_b32 v{vT2}, 1, v{vLANE}')
e(f'v_lshlrev_b32 v{vT2}, 4, v{vT2}')
e(f'v_and_b32 v{vT4}, 6, v{vLANE}')
e(f'v_lshlrev_b32 v{vT4}, 1, v{vT4}')
e(f'v_add_u32 v{vT2}, v{vT2}, v{vT4}')
e(f'ds_write_b32 v{vT2}, v{vT3} offset:{L_COEF}')
lds_inc(C7)
e('s_branch L_stagec')

lab('L_vwave')
vm = VM()
e('s_setprio 1')
vACC = 16
vP = 40
common_scalars()
e('s_waitcnt lgkmcnt(0)')
e(f's_cmp_lg_u32 s{sWAVE}, 7')
e('s_cbranch_scc1 L_notag')
e('s_setprio 3')
e(f'v_mov_b32 v{vT3}, 0')
e('s_cmp_lg_u32 s2, 0')
e('s_cbranch_scc1 L_tagrd')
e('s_or_b32 s37, s37, 0x80000000')
e(f'v_mov_b32 v{vTG}, s36')
e(f'v_mov_b32 v{vTG+1}, s37')
e('s_mov_b64 exec, 1')
e(f'buffer_store_dwordx2 {v2(vTG)}, v{vT3}, {srd(sDBG)}, 0 offen sc1')
e('s_mov_b64 exec, -1')
e('s_barrier')
e('s_branch L_tagok')
lab('L_tagrd')
e(f'buffer_load_dwordx2 {v2(vTG)}, v{vT3}, {srd(sDBG)}, 0 offen sc1')
e('s_barrier')
e(f's_mov_b32 s{sCNT}, 0')
lab('L_tagl')
e('s_waitcnt vmcnt(0)')
e(f'v_cmp_eq_u32 vcc, 0, v{vTG+1}')
e(f's_add_u32 s{sCNT}, s{sCNT}, 1')
e(f's_cmp_gt_u32 s{sCNT}, {SPIN}')
e('s_cbranch_scc1 L_tagok')
e('s_cbranch_vccz L_tagok')
e(f'buffer_load_dwordx2 {v2(vTG)}, v{vT3}, {srd(sDBG)}, 0 offen sc1')
e('s_branch L_tagl')
lab('L_tagok')
e(f'ds_write_b64 v{vT3}, {v2(vTG)} offset:{L_TAG}')
lds_inc(C1)
e('s_setprio 1')
e('s_branch L_vgo')
lab('L_notag')
e('s_barrier')
lab('L_vgo')
stamp(1)
def vload(G):
    for j in range(3):
        e(f'buffer_load_dwordx4 {v4(vD+12*G+4*j)}, v{vOFF}, {srd(sV)}, s{sKB} offen offset:{128*j} nt'); vm.issue(f'v{G}')
    adv()
VPRE = 2
for G in range(VPRE): vload(G)
e(f's_cmp_eq_u32 s{sWAVE}, 4')
e('s_cbranch_scc1 L_vrest')
e(f's_cmp_eq_u32 s{sWAVE}, 7')
e('s_cbranch_scc1 L_vrest')
e('s_setprio 3')
lds_spin(C1, 5, sleep=False)
get_tag()
e(f's_cmp_eq_u32 s{sWAVE}, 5')
e('s_cbranch_scc1 L_w5')
vTM = 16
e(f'v_lshlrev_b32 v{vT2}, 3, v{vLANE}')
e(f'v_lshlrev_b32 v{vT3}, 4, v{vLANE}')
for w in range(4):
    e(f'ds_read_b64 {v2(vTM+4+2*w)}, v{vT2} offset:{L_FRED+384*w}')
e(f'v_mov_b32 v{vTM+2}, v{vTG}')
e(f'v_mov_b32 v{vTM+3}, v{vTG+1}')
e('s_waitcnt lgkmcnt(0)')
for c in range(2):
    e(f'v_add_f32 v{vTM+4+c}, v{vTM+4+c}, v{vTM+6+c}')
    e(f'v_add_f32 v{vTM+8+c}, v{vTM+8+c}, v{vTM+10+c}')
for c in range(2): e(f'v_add_f32 v{vTM+c}, v{vTM+4+c}, v{vTM+8+c}')
e(f'v_cmp_gt_u32 vcc, 48, v{vLANE}')
e('s_and_saveexec_b64 s[28:29], vcc')
e(f'buffer_store_dwordx4 {v4(vTM)}, v{vT3}, {srd(sWS)}, s{sSLOT} offen offset:{SL_G} sc1')
e('s_mov_b64 exec, s[28:29]')
e('s_branch L_vsvc_done')
lab('L_w5')
publish192(16, SL_Q)
e(f'v_and_b32 v{vT2}, 7, v{vLANE}')
e(f'v_lshlrev_b32 v{vT2}, 12, v{vT2}')
e(f's_mov_b32 s{sCNT}, 0')
lab('L_gp')
e(f'buffer_load_dwordx4 {v4(40)}, v{vT2}, {srd(sWS)}, s{sGRP} offen offset:{SL_Q+95*16} sc1')
e('s_waitcnt vmcnt(0)')
tag_check(vT1, vT4, [40])
poll_tail('L_gp', vT1)
vQA = 16
vQB = 48
e(f'v_lshlrev_b32 v{vT3}, 4, v{vLANE}')
e(f'v_and_b32 v{vT2}, 31, v{vLANE}')
e(f'v_lshlrev_b32 v{vT2}, 4, v{vT2}')
e(f'v_lshrrev_b32 v{vT4}, 5, v{vLANE}')
e(f'v_lshlrev_b32 v{vT4}, 12, v{vT4}')
e(f'v_add_u32 v{vT2}, v{vT2}, v{vT4}')
for s_ in range(8): e(f's_add_u32 s{sC+s_}, s{sGRP}, {s_*WS_SLOT}')
e(f's_mov_b32 s{sCNT}, 0')
lab('L_gq')
for s_ in range(8):
    e(f'buffer_load_dwordx4 {v4(vQA+4*s_)}, v{vT3}, {srd(sWS)}, s{sC+s_} offen offset:{SL_Q} sc1')
for s_ in range(4):
    e(f'buffer_load_dwordx4 {v4(vQB+4*s_)}, v{vT2}, {srd(sWS)}, s{sC+2*s_} offen offset:{SL_Q+1024} sc1')
e('s_waitcnt vmcnt(0)')
tag_check(vT1, vT4, [vQA + 4 * i for i in range(12)])
poll_tail('L_gq', vT1)
for step in (4, 2, 1):
    for w in range(step):
        for c in range(2):
            e(f'v_add_f32 v{vQA+4*w+c}, v{vQA+4*w+c}, v{vQA+4*(w+step)+c}')
for step in (2, 1):
    for w in range(step):
        for c in range(2):
            e(f'v_add_f32 v{vQB+4*w+c}, v{vQB+4*w+c}, v{vQB+4*(w+step)+c}')
for c in range(2):
    nop(1)
    e(f'v_mov_b32 v{vT1}, v{vQB+c}')
    nop(1)
    e(f'v_permlane32_swap_b32 v{vT1}, v{vQB+c}')
    nop(1)
    e(f'v_add_f32 v{vQB+c}, v{vT1}, v{vQB+c}')
e(f'v_cvt_pk_bf16_f32 v{vQA}, v{vQA}, v{vQA+1}')
e(f'v_cvt_pk_bf16_f32 v{vQB}, v{vQB}, v{vQB+1}')
e(f'v_lshlrev_b32 v{vT4}, 2, v{vLANE}')
e(f'ds_write_b32 v{vT4}, v{vQA} offset:{L_QBF}')
e('s_mov_b32 exec_hi, 0')
e(f'ds_write_b32 v{vT4}, v{vQB} offset:{L_QBF+256}')
e('s_mov_b64 exec, -1')
lds_inc(C2)
if STAMPS: e(f's_memrealtime s[{sST+2}:{sST+3}]')
lab('L_vsvc_done')
e('s_setprio 1')
lab('L_vrest')
for G in range(VPRE, 16): vload(G)
stamp(2)
for i in range(24): e(f'v_mov_b32 v{vACC+i}, 0')
red_addr()
e(f's_sub_u32 s{sT4}, s{sWAVE}, 4')
e(f's_mul_i32 s{sT0}, s{sT4}, 768')
e(f'v_add_u32 v{vRA}, s{sT0}, v{vRA}')
wo_setup()
e(f's_cmp_eq_u32 s{sWAVE}, 4')
e(f's_cselect_b32 s{sWOB}, s{sWOB}, {OOB}')
e(f's_cselect_b32 s{sW2B}, s{sW2B}, {OOB}')
e(f's_lshl_b32 s{sT3}, s{sT4}, 2')
e(f'v_mov_b32 v{vT7}, s{sT3}')
lds_spin(C4, 1, vaddr=vT7)
stamp(3)
e(f'v_lshrrev_b32 v{vT2}, 3, v{vLANE}')
e(f'v_lshlrev_b32 v{vT2}, 6, v{vT2}')
e(f's_lshl_b32 s{sT3}, s{sT4}, 9')
e(f'v_add_u32 v{vT2}, s{sT3}, v{vT2}')
for i in range(4): e(f'ds_read_b128 {v4(vP+4*i)}, v{vT2} offset:{L_P+16*i}')
get_tag()
e('s_setprio 3')
for G in range(16):
    vm.wait(f'v{G}')
    e(f'v_lshlrev_b32 v{vT0+(G&1)}, 16, v{vP+G}')
    for j in range(3):
        axpy(vACC + 8 * j, vD + 12 * G + 4 * j, vP + G, vT0 + (G & 1))
    if G == 2:
        wo_issue(vm, vD)
    if G == 11:
        cmt('scale factor of this wave pair: exp(m_w - M_wg)')
        nop(2)
        lds_spin(C3, 4)
        e(f'ds_read_b128 {v4(56)}, v{vT0} offset:{L_WMAX}')
        e(f'ds_read_b32 v{vM}, v{vT7} offset:{L_WMAX}')
        e('s_waitcnt lgkmcnt(0)')
        e('v_max3_f32 v56, v56, v57, v58')
        e('v_max_f32 v56, v56, v59')
        e(f'v_sub_f32 v{vM}, v{vM}, v56')
        e(f'v_mul_f32 v{vM}, 0x3fb8aa3b, v{vM}')
        e(f'v_exp_f32 v{vM}, v{vM}')
        nop(0)
stamp(4)
reduce_r8(vACC, 3)
for j in range(3):
    for c in range(2): e(f'v_mul_f32 v{vACC+8*j+c}, v{vM}, v{vACC+8*j+c}')
for j in range(3):
    e(f'ds_write_b64 v{vRA}, {v2(vACC+8*j)} offset:{L_RED+256*j}')
lds_inc(C8)
stamp(5)
e(f's_cmp_eq_u32 s{sWAVE}, 4')
e('s_cbranch_scc1 L_stagec')
e(f's_cmp_eq_u32 s{sWAVE}, 6')
e('s_cbranch_scc1 L_merge')
e(f's_cmp_eq_u32 s{sWAVE}, 7')
e('s_cbranch_scc1 L_final')
lds_spin(C8, 4, sleep=False)
publish192(128, SL_O)
stamp(6)
stamp_out()
lab('L_merge')
vO = 128
vCF = 164
e(f'v_and_b32 v{vT3}, 31, v{vLANE}')
e(f'v_lshlrev_b32 v{vT2}, 4, v{vT3}')
e(f'v_lshrrev_b32 v{vT4}, 5, v{vLANE}')
e(f'v_lshlrev_b32 v{vT5}, 12, v{vT4}')
e(f'v_add_u32 v{vT2}, v{vT2}, v{vT5}')
e(f'v_mov_b32 v{vT1}, {OOB}')
e(f'v_cmp_gt_u32 s[30:31], 24, v{vT3}')
nop(1)
e(f'v_cndmask_b32 v{vT2}, v{vT1}, v{vT2}, s[30:31]')
e(f'v_lshlrev_b32 v{vT5}, 4, v{vT4}')
e(f'v_lshlrev_b32 v{vT3}, 1, v{vT3}')
e(f'v_add_u32 v{vT3}, v{vT3}, v{vT4}')
e(f'v_lshrrev_b32 v{vT4}, 3, v{vT3}')
e(f'v_lshlrev_b32 v{vT4}, 2, v{vT4}')
e(f'v_and_b32 v{vT3}, 7, v{vT3}')
e(f'v_lshlrev_b32 v{vT3}, 5, v{vT3}')
e(f'v_add_u32 v{vT3}, v{vT3}, v{vT4}')
e(f's_mul_i32 s{sT0}, s{sRQ}, 384')
e(f's_add_u32 s{sT0}, s{sT0}, s{sGRP}')
for i in range(4): e(f's_add_u32 s{sC+i}, s{sT0}, {2*i*WS_SLOT}')
e(f's_mov_b32 s{sCNT}, 0')
lab('L_po')
for i in range(4):
    e(f'buffer_load_dwordx4 {v4(vO+4*i)}, v{vT2}, {srd(sWS)}, s{sC+i} offen offset:{SL_O} sc1')
e('s_waitcnt vmcnt(0)')
tag_check(vT1, vT4, [vO + 4 * i for i in range(4)])
poll_tail('L_po', vT1, 's[30:31]')
lds_spin(C7, 1, sleep=False)
e(f'ds_read_b128 {v4(vCF)}, v{vT5} offset:{L_COEF}')
e('s_waitcnt lgkmcnt(0)')
e(f'v_mul_f32 v{vO}, v{vCF}, v{vO}')
e(f'v_mul_f32 v{vO+1}, v{vCF}, v{vO+1}')
for i in range(1, 4):
    e(f'v_fmac_f32 v{vO}, v{vCF+i}, v{vO+4*i}')
    e(f'v_fmac_f32 v{vO+1}, v{vCF+i}, v{vO+4*i+1}')
nop(1)
e(f'v_permlane32_swap_b32 v{vO}, v{vO+1}')
nop(1)
e(f'v_add_f32 v{vO}, v{vO}, v{vO+1}')
e(f'v_cvt_pk_bf16_f32 v{vO}, v{vO}, 0')
e('s_mov_b64 exec, s[30:31]')
e(f'ds_write_b32 v{vT3}, v{vO} offset:{L_U}')
e('s_waitcnt lgkmcnt(0)')
e('s_barrier')
stamp(6)
stamp_out()
lab('L_stagec')
vA = 16
vU = 32
for i in range(8): e(f'v_mov_b32 v{vA+i}, 0')
lds_spin(C6, 1)
e(f'v_lshrrev_b32 v{vT4}, 3, v{vLANE}')
e(f'v_lshlrev_b32 v{vT4}, 5, v{vT4}')
e(f'ds_read_b64 {v2(vU+6)}, v{vT4} offset:{L_U+24}')
e(f'v_bfe_u32 v{vT2}, v{vLANE}, 1, 2')
e(f'v_lshlrev_b32 v{vT2}, 14, v{vT2}')
e(f'v_and_b32 v{vT3}, 1, v{vLANE}')
e(f'v_lshlrev_b32 v{vT3}, 6, v{vT3}')
e(f'v_add_u32 v{vT2}, v{vT2}, v{vT3}')
e(f'v_and_b32 v{vT3}, 48, v{vLANE}')
e(f'v_add_u32 v{vT2}, v{vT2}, v{vT3}')
e(f's_lshl_b32 s{sT0}, s{sWAVE}, 16')
e(f's_add_u32 s{sT0}, s{sT0}, s{sYB}')
e(f'v_and_b32 v{vT3}, 8, v{vLANE}')
e(f'v_cmp_eq_u32 s[30:31], 0, v{vT3}')
e(f'v_mov_b32 v{vA+10}, v{vTG}')
e(f'v_mov_b32 v{vA+11}, v{vTG+1}')
e('s_waitcnt vmcnt(6) lgkmcnt(0)')
for i in range(6, 8): e(f'v_lshlrev_b32 v{vU+8+i}, 16, v{vU+i}')
for i in range(6, 8): axpy(vA, vWO + 4 * i, vU + i, vU + 8 + i)
e('s_waitcnt vmcnt(0)')
e('s_barrier')
stamp(6)
e(f'ds_read_b128 {v4(vU)}, v{vT4} offset:{L_U}')
e(f'ds_read_b64 {v2(vU+4)}, v{vT4} offset:{L_U+16}')
e('s_waitcnt lgkmcnt(0)')
for i in range(6): e(f'v_lshlrev_b32 v{vU+8+i}, 16, v{vU+i}')
for i in range(6): axpy(vA, vWO + 4 * i, vU + i, vU + 8 + i)
reduce_r8(vA, 1)
e(f'v_mov_b32 v{vA+8}, v{vA}')
e(f'v_mov_b32 v{vA+9}, v{vA+1}')
e('s_mov_b64 exec, s[30:31]')
e(f'buffer_store_dwordx4 {v4(vA+8)}, v{vT2}, {srd(sWS)}, s{sT0} offen sc1')
stamp_out()
lab('L_final')
e(f's_cmp_ge_u32 s2, {NRED}')
e('s_cbranch_scc1 L_end2')
vY = 128
e(f'v_lshrrev_b32 v{vT0}, 2, v{vLANE}')
e(f'v_lshlrev_b32 v{vT0}, 7, v{vT0}')
e(f'v_and_b32 v{vT2}, 3, v{vLANE}')
e(f'v_lshlrev_b32 v{vT3}, 4, v{vT2}')
e(f'v_add_u32 v{vT0}, v{vT0}, v{vT3}')
e(f's_lshr_b32 s{sT0}, s2, 1')
e(f's_lshl_b32 s{sT0}, s{sT0}, 14')
e(f's_and_b32 s{sT1}, s2, 1')
e(f's_lshl_b32 s{sT1}, s{sT1}, 6')
e(f's_add_u32 s{sT0}, s{sT0}, s{sT1}')
e(f's_add_u32 s{sT0}, s{sT0}, {WS_Y}')
for i in range(1, 4): e(f's_add_u32 s{sC+i}, s{sT0}, {4096*i}')
e(f's_mov_b32 s{sC}, s{sT0}')
e(f'v_lshlrev_b32 v{vT2}, 2, v{vT2}')
e(f'v_lshrrev_b32 v{vT3}, 5, v{vLANE}')
e(f'v_lshlrev_b32 v{vT3}, 1, v{vT3}')
e(f'v_add_u32 v{vT2}, v{vT2}, v{vT3}')
e(f's_lshl_b32 s{sT1}, s2, 4')
e(f'buffer_load_ushort v{vT5}, v{vT2}, {srd(sX)}, s{sT1} offen')
e(f'v_and_b32 v{vT3}, 28, v{vLANE}')
e(f'v_cmp_eq_u32 s[30:31], 0, v{vT3}')
e('s_barrier')
stamp(6)
e(f's_mov_b32 s{sCNT}, 0')
lab('L_py')
for i in range(8):
    e(f'buffer_load_dwordx4 {v4(vY+4*i)}, v{vT0}, {srd(sWS)}, s{sC+i//2} offen offset:{2048*(i&1)} sc1')
e('s_waitcnt vmcnt(0)')
tag_check(vT1, vT4, [vY + 4 * i for i in range(8)])
poll_tail('L_py', vT1)
for step in (4, 2, 1):
    for w in range(step):
        for c in range(2):
            e(f'v_add_f32 v{vY+4*w+c}, v{vY+4*w+c}, v{vY+4*(w+step)+c}')
nop(1)
e(f'v_permlane32_swap_b32 v{vY}, v{vY+1}')
nop(1)
e(f'v_add_f32 v{vY}, v{vY}, v{vY+1}')
for dpp in ('row_ror:8', 'row_ror:4'):
    nop(1)
    e(f'v_add_f32 v{vY}, v{vY}, v{vY} {dpp} {DPP}')
nop(1)
e(f'v_mov_b32 v{vY+1}, v{vY}')
nop(1)
e(f'v_permlane16_swap_b32 v{vY+1}, v{vY}')
nop(1)
e(f'v_add_f32 v{vY}, v{vY}, v{vY+1}')
e(f'v_lshlrev_b32 v{vT5}, 16, v{vT5}')
e(f'v_add_f32 v{vY}, v{vT5}, v{vY}')
e(f'v_cvt_pk_bf16_f32 v{vY}, v{vY}, v{vY}')
if THR:
    e('s_memrealtime s[96:97]')
    e('s_waitcnt lgkmcnt(0)')
    e('s_sub_u32 s96, s96, s98')
    e(f's_cmp_gt_u32 s96, {THR[0]}')
    e('s_cselect_b32 s96, 0x7fc07fc0, 0')
    e(f'v_or_b32 v{vY}, s96, v{vY}')
e('s_mov_b64 exec, s[30:31]')
e(f'buffer_store_short v{vY}, v{vT2}, {srd(sOUT)}, s{sT1} offen')
lab('L_end2')
if STAMPS:
    e('s_mov_b64 exec, -1')
    lab('L_stamp_out')
    e(f's_memrealtime s[{sST+14}:{sST+15}]')
    e('s_waitcnt lgkmcnt(0)')
    for i in range(8): e(f'v_mov_b32 v{200+i}, s{sST+2*i}')
    e(f's_lshl_b32 s{sT0}, s2, 3')
    e(f's_add_u32 s{sT0}, s{sT0}, s{sWAVE}')
    e(f's_lshl_b32 s{sT0}, s{sT0}, 5')
    e(f's_add_u32 s{sT0}, s{sT0}, {WS_STAMP}')
    e(f'v_mov_b32 v{vT0}, 0')
    e('s_mov_b64 exec, 1')
    e(f'buffer_store_dwordx4 {v4(200)}, v{vT0}, {srd(sWS)}, s{sT0} offen')
    e(f'buffer_store_dwordx4 {v4(204)}, v{vT0}, {srd(sWS)}, s{sT0} offen offset:16')
lab('L_end')
e('s_endpgm')
L.append('.section .rodata,"a"')
L.append('.p2align 6')
L.append(f'.amdhsa_kernel {NAME}')
L.append('  .amdhsa_next_free_vgpr 256')
L.append('  .amdhsa_next_free_sgpr 102')
L.append('  .amdhsa_accum_offset 256')
L.append('  .amdhsa_group_segment_fixed_size 0')
L.append('  .amdhsa_kernarg_size 96')
L.append('  .amdhsa_user_sgpr_count 2')
L.append('  .amdhsa_user_sgpr_kernarg_segment_ptr 1')
L.append('  .amdhsa_system_sgpr_workgroup_id_x 1')
L.append('.end_amdhsa_kernel')
open(sys.argv[1], 'w').write('\n'.join(L) + '\n')
```

```python
import sys, copy
STAMPS = '--stamps' in sys.argv
NODEFER = '--nodefer' in sys.argv
THR = [int(a.split('=')[1]) for a in sys.argv if a.startswith('--thr=')]
NAME = 'parallel_sum__sliding_block_cached__glu_gated_swiglu__decode_kernel'

L = []
def e(s): L.append('    ' + s)
def lab(s): L.append(s + ':')
def cmt(s): L.append('    ; ' + s)

HEAD_STRIDE = 32768 * 384
WIN = 28672 * 384
WS_SLOT = 4096
SL_Q, SL_O, SL_G, SL_U, SL_ML = 0, 1536, 3072, 3456, 3840
WS_Y = 256 * WS_SLOT
WS_Y_BYTES = 40 * 16384
WS_USED = WS_Y + WS_Y_BYTES
WS_STAMP = 2 << 20
OOB = 0x40000000
SPIN = 0x4000
NOTAG = '--notag' in sys.argv
NOQ = '--noq' in sys.argv
NRED = 80

sX, sK, sV, sWQ, sWO, sW1, sW3, sW2, sOUT, sDBG, sWS = [40 + 4 * i for i in range(11)]
def srd(b): return f's[{b}:{b+3}]'
sHEAD, sSPLIT, sWAVE = 3, 4, 5
sT0, sT1, sT2, sT3 = 6, 7, 8, 9
sKB = 10
sWQB = 11
sSLOT = 12
sGRP = 13
sWOB = 14
sW2B = 15
sCNT = 16
sFB = 17
sT4 = 18
sT5 = 19
sC = 20
sRQ, sCH = 32, 33
sYB = 34
sKE = 39
sST = 84

L_RED = 0
L_FRED = 3072
L_QBF = 4608
L_P = 5120
L_WMAX = 7168
L_WSUM = 7184
L_CNT = 7200
C1, C2, C3, C6, C7, C8, C9 = [L_CNT + 4 * i for i in range(7)]
C4 = L_CNT + 32
L_COEF = 7264
L_TAG = 7296
L_U = 7312 + 112
LDS_BYTES = 7680

vTID = 0
vOFF = 1
vT0, vT1, vT2, vT3 = 2, 3, 4, 5
vLANE = 6
vRA = 7
vM = 8
vT4, vT5, vT6, vT7 = 9, 10, 11, 12
vTG = 14
vX = 60
vD = 64

class VM:
    def __init__(self): self.q = []
    def issue(self, tag): self.q.append(tag)
    def wait(self, tag):
        if tag not in self.q: return
        idx = max(i for i, t in enumerate(self.q) if t == tag)
        n = len(self.q) - 1 - idx
        assert n <= 63, n
        e(f's_waitcnt vmcnt({n})')
        self.q = self.q[idx + 1:]

def stamp(i):
    if STAMPS: e(f's_memrealtime s[{sST+2*i}:{sST+2*i+1}]')
def stamp_out():
    if STAMPS:
        e('s_mov_b64 exec, -1')
        e('s_branch L_stamp_out')
    else:
        e('s_endpgm')
def nop(n): e(f's_nop {n}')
def v4(b): return f'v[{b}:{b+3}]'
def v2(b): return f'v[{b}:{b+1}]'
DPP = 'row_mask:0xf bank_mask:0xf'

def bf16_round(dst, src):
    e(f'v_cvt_pk_bf16_f32 v{dst}, v{src}, v{src}')
    e(f'v_and_b32 v{dst}, 0xffff0000, v{dst}')

def allreduce_rows(op, v, tmp):
    nop(1)
    e(f'v_mov_b32 v{tmp}, v{v}')
    nop(1)
    e(f'v_permlane16_swap_b32 v{tmp}, v{v}')
    nop(1)
    e(f'{op} v{v}, v{tmp}, v{v}')
    nop(1)
    e(f'v_mov_b32 v{tmp}, v{v}')
    nop(1)
    e(f'v_permlane32_swap_b32 v{tmp}, v{v}')
    nop(1)
    e(f'{op} v{v}, v{tmp}, v{v}')

def allreduce8(op, v):
    nop(1)
    e(f'{op} v{v}, v{v}, v{v} quad_perm:[1,0,3,2] {DPP}')
    nop(1)
    e(f'{op} v{v}, v{v}, v{v} quad_perm:[2,3,0,1] {DPP}')
    nop(1)
    e(f'{op} v{v}, v{v}, v{v} row_half_mirror {DPP}')

def allreduce64(op, v, tmp):
    allreduce8(op, v)
    nop(1)
    e(f'{op} v{v}, v{v}, v{v} row_mirror {DPP}')
    allreduce_rows(op, v, tmp)

def reduce_r8(acc, nj):
    nop(2)
    for j in range(nj):
        for ee in range(4): e(f'v_permlane32_swap_b32 v{acc+8*j+ee}, v{acc+8*j+ee+4}')
    nop(1)
    for j in range(nj):
        for ee in range(4): e(f'v_add_f32 v{acc+8*j+ee}, v{acc+8*j+ee}, v{acc+8*j+ee+4}')
    nop(1)
    for j in range(nj):
        for ee in range(2): e(f'v_permlane16_swap_b32 v{acc+8*j+ee}, v{acc+8*j+ee+2}')
    nop(1)
    for j in range(nj):
        for ee in range(2): e(f'v_add_f32 v{acc+8*j+ee}, v{acc+8*j+ee}, v{acc+8*j+ee+2}')
    nop(1)
    for j in range(nj):
        for ee in range(2): e(f'v_add_f32 v{acc+8*j+ee}, v{acc+8*j+ee}, v{acc+8*j+ee} row_ror:8 {DPP}')

def axpy(acc, data, lo, hi):
    for d in range(4):
        e(f'v_dot2c_f32_bf16 v{acc+2*d}, v{data+d}, v{lo}')
        e(f'v_dot2c_f32_bf16 v{acc+2*d+1}, v{data+d}, v{hi}')

uid = [0]
def lds_spin(addr, target, sleep=True, vaddr=None):
    uid[0] += 1
    n = uid[0]
    if vaddr is None:
        e(f'v_mov_b32 v{vT0}, 0'); vaddr = vT0
    e(f's_mov_b32 s{sCNT}, 0')
    lab(f'L_sp{n}')
    e(f'ds_read_b32 v{vT1}, v{vaddr} offset:{addr}')
    e('s_waitcnt lgkmcnt(0)')
    e(f'v_readfirstlane_b32 s{sT5}, v{vT1}')
    e(f's_add_u32 s{sCNT}, s{sCNT}, 1')
    e(f's_cmp_ge_u32 s{sT5}, {target}')
    e(f's_cbranch_scc1 L_spd{n}')
    e(f's_cmp_gt_u32 s{sCNT}, {SPIN*16}')
    e(f's_cbranch_scc1 L_spd{n}')
    if sleep: e('s_sleep 1')
    e(f's_branch L_sp{n}')
    lab(f'L_spd{n}')

def lds_inc(addr):
    e('s_waitcnt lgkmcnt(0)')
    e(f'v_mov_b32 v{vT0}, 0')
    e(f'v_mov_b32 v{vT1}, 1')
    e('s_mov_b64 exec, 1')
    e(f'ds_add_u32 v{vT0}, v{vT1} offset:{addr}')
    e('s_mov_b64 exec, -1')

def get_tag():
    e(f'v_mov_b32 v{vT0}, 0')
    e(f'ds_read_b64 {v2(vTG)}, v{vT0} offset:{L_TAG}')
    e('s_waitcnt lgkmcnt(0)')

def tag_check(dst, tmp, grans):
    first = True
    for g in grans:
        if first:
            e(f'v_xor_b32 v{dst}, v{g+2}, v{vTG}')
            e(f'v_xor_b32 v{tmp}, v{g+3}, v{vTG+1}')
            e(f'v_or_b32 v{dst}, v{dst}, v{tmp}')
            first = False
        else:
            e(f'v_xor_b32 v{g+2}, v{g+2}, v{vTG}')
            e(f'v_xor_b32 v{g+3}, v{g+3}, v{vTG+1}')
            e(f'v_or3_b32 v{dst}, v{dst}, v{g+2}, v{g+3}')

def poll_tail(name, chk, mask=None):
    e(f'v_cmp_ne_u32 vcc, 0, v{chk}')
    e(f's_add_u32 s{sCNT}, s{sCNT}, 1')
    if mask: e(f's_and_b64 vcc, vcc, {mask}')
    e(f's_cmp_gt_u32 s{sCNT}, {SPIN}')
    e(f's_cbranch_scc1 {name}_done')
    e(f's_cbranch_vccnz {name}')
    lab(f'{name}_done')

def red_addr():
    e(f'v_and_b32 v{vRA}, 7, v{vLANE}')
    e(f'v_lshlrev_b32 v{vRA}, 5, v{vRA}')
    e(f'v_lshrrev_b32 v{vT6}, 5, v{vLANE}')
    e(f'v_lshlrev_b32 v{vT6}, 4, v{vT6}')
    e(f'v_add_u32 v{vRA}, v{vRA}, v{vT6}')
    e(f'v_bfe_u32 v{vT6}, v{vLANE}, 4, 1')
    e(f'v_lshlrev_b32 v{vT6}, 3, v{vT6}')
    e(f'v_add_u32 v{vRA}, v{vRA}, v{vT6}')

def wo_setup():
    e(f'v_lshrrev_b32 v{vT0}, 3, v{vLANE}')
    e(f'v_and_b32 v{vT1}, 7, v{vLANE}')
    e(f'v_lshlrev_b32 v{vT1}, 4, v{vT1}')
    e(f'v_mul_u32_u24 v{vT4}, 1280, v{vT0}')
    e(f'v_add_u32 v{vT4}, v{vT4}, v{vT1}')
    e(f'v_mov_b32 v{vT2}, {OOB}')
    e(f'v_cmp_gt_u32 vcc, 32, v{vLANE}')
    nop(1)
    e(f'v_cndmask_b32 v{vT5}, v{vT2}, v{vT4}, vcc')
    e(f's_mul_i32 s{sT0}, s{sCH}, 640')
    e(f's_lshl_b32 s{sT1}, s{sWAVE}, 7')
    e(f's_add_u32 s{sT0}, s{sT0}, s{sT1}')
    e(f's_lshl_b32 s{sT1}, s{sHEAD}, 2')
    e(f's_add_u32 s{sT1}, s{sT1}, s{sRQ}')
    e(f's_mul_i32 s{sWOB}, s{sT1}, {48*1280}')
    e(f's_add_u32 s{sWOB}, s{sWOB}, s{sT0}')
    e(f's_mul_i32 s{sW2B}, s{sT1}, {12*1280}')
    e(f's_add_u32 s{sW2B}, s{sW2B}, s{sT0}')

def wo_issue(vm, base):
    e(f'buffer_load_dwordx4 {v4(base+24)}, v{vT4}, {srd(sW2)}, s{sW2B} offen nt'); vm.issue('wo')
    e(f's_add_u32 s{sW2B}, s{sW2B}, {8*1280}')
    e(f'buffer_load_dwordx4 {v4(base+28)}, v{vT5}, {srd(sW2)}, s{sW2B} offen nt'); vm.issue('wo')
    for i in range(6):
        e(f'buffer_load_dwordx4 {v4(base+4*i)}, v{vT4}, {srd(sWO)}, s{sWOB} offen nt'); vm.issue('wo')
        if i < 5: e(f's_add_u32 s{sWOB}, s{sWOB}, {8*1280}')

def adv():
    e(f's_add_u32 s{sKB}, s{sKB}, 3072')
    e(f's_sub_u32 s{sT5}, s{sKB}, {16*3072}')
    e(f's_cmp_ge_u32 s{sKB}, s{sKE}')
    e(f's_cselect_b32 s{sKB}, s{sT5}, s{sKB}')

def publish192(base, slot_off):
    e(f'v_lshlrev_b32 v{vT2}, 3, v{vLANE}')
    e(f'v_lshlrev_b32 v{vT3}, 4, v{vLANE}')
    for w in range(4):
        e(f'ds_read_b64 {v2(base+8+2*w)}, v{vT2} offset:{L_RED+768*w}')
    for w in range(4):
        e(f'ds_read_b64 {v2(base+16+2*w)}, v{vT2} offset:{L_RED+768*w+512}')
    e(f'v_mov_b32 v{base+2}, v{vTG}')
    e(f'v_mov_b32 v{base+3}, v{vTG+1}')
    e(f'v_mov_b32 v{base+6}, v{vTG}')
    e(f'v_mov_b32 v{base+7}, v{vTG+1}')
    e('s_waitcnt lgkmcnt(4)')
    for c in range(2):
        e(f'v_add_f32 v{base+8+c}, v{base+8+c}, v{base+10+c}')
        e(f'v_add_f32 v{base+12+c}, v{base+12+c}, v{base+14+c}')
    for c in range(2): e(f'v_add_f32 v{base+c}, v{base+8+c}, v{base+12+c}')
    e(f'buffer_store_dwordx4 {v4(base)}, v{vT3}, {srd(sWS)}, s{sSLOT} offen offset:{slot_off} sc1')
    e('s_waitcnt lgkmcnt(0)')
    for c in range(2):
        e(f'v_add_f32 v{base+16+c}, v{base+16+c}, v{base+18+c}')
        e(f'v_add_f32 v{base+20+c}, v{base+20+c}, v{base+22+c}')
    for c in range(2): e(f'v_add_f32 v{base+4+c}, v{base+16+c}, v{base+20+c}')
    e('s_mov_b32 exec_hi, 0')
    e(f'buffer_store_dwordx4 {v4(base+4)}, v{vT3}, {srd(sWS)}, s{sSLOT} offen offset:{slot_off+1024} sc1')
    e('s_mov_b64 exec, -1')

hdr = open('parallel_sum__sliding_block_cached__glu_gated_swiglu__decode.s.ref').read().split('\n')
for line in hdr:
    if line.startswith('; @launch'):
        L.append(f'; @launch grid=(256,1,1) block=(512,1,1) lds={LDS_BYTES}')
    elif line.startswith(';'):
        L.append(line)
    else:
        break
L.append('.amdgcn_target "amdgcn-amd-amdhsa--gfx950"')
L.append('.text')
L.append(f'.globl {NAME}')
L.append('.p2align 8')
L.append(f'.type {NAME},@function')
lab(NAME)
stamp(0)
if THR: e('s_memrealtime s[98:99]')
e('s_cmp_ge_u32 s2, 256')
e('s_cbranch_scc1 L_end')
for (sr, off) in [(sX, 0), (sWQ, 24), (sDBG, 80), (sV, 16), (sW1, 48), (sW3, 56), (sK, 8), (sWS, 88), (sWO, 32), (sW2, 64), (sOUT, 72)]:
    e(f's_load_dwordx2 s[{sr}:{sr+1}], s[0:1], {off}')
e('s_memrealtime s[36:37]')
e(f'v_lshrrev_b32 v{vT0}, 6, v0')
e(f'v_and_b32 v{vLANE}, 63, v0')
e(f'v_readfirstlane_b32 s{sWAVE}, v{vT0}')
e(f'v_mov_b32 v{vT3}, 0')
e(f'v_and_b32 v{vT4}, 15, v0')
e(f'v_lshlrev_b32 v{vT4}, 2, v{vT4}')
e(f'ds_write_b32 v{vT4}, v{vT3} offset:{L_CNT}')
for (sr, nb) in [(sX, 1280), (sWQ, 7864320), (sK, 402653184), (sWS, (WS_STAMP + 65536*4) if STAMPS else WS_USED), (sV, 402653184), (sW1, 1966080),
                 (sW3, 1966080), (sDBG, 256), (sWO, 7864320), (sW2, 1966080), (sOUT, 1280)]:
    e(f's_mov_b32 s{sr+2}, {nb}')
    e(f's_mov_b32 s{sr+3}, 0x00020000')
e(f's_and_b32 s{sHEAD}, s2, 7')
e(f's_lshr_b32 s{sSPLIT}, s2, 3')
e(f's_and_b32 s{sT0}, s{sSPLIT}, 3')
e(f's_lshl_b32 s{sHEAD}, s{sHEAD}, 2')
e(f's_add_u32 s{sHEAD}, s{sHEAD}, s{sT0}')
e(f's_lshr_b32 s{sSPLIT}, s{sSPLIT}, 2')
e(f'v_lshrrev_b32 v{vT0}, 3, v{vLANE}')
e(f'v_and_b32 v{vT1}, 7, v{vLANE}')
e(f'v_lshlrev_b32 v{vT2}, 4, v{vT1}')
e(f'v_mul_u32_u24 v{vOFF}, 384, v{vT0}')
e(f'v_add_u32 v{vOFF}, v{vOFF}, v{vT2}')
e(f's_mul_i32 s{sKB}, s{sHEAD}, {HEAD_STRIDE}')
e(f's_mul_i32 s{sT0}, s{sSPLIT}, {512*384}')
e(f's_add_u32 s{sKB}, s{sKB}, s{sT0}')
e(f's_and_b32 s{sT1}, s{sWAVE}, 3')
e(f's_mul_i32 s{sT0}, s{sT1}, {128*384}')
e(f's_add_u32 s{sKB}, s{sKB}, s{sT0}')
e(f's_add_u32 s{sKB}, s{sKB}, {WIN}')
e(f's_lshr_b32 s{sT0}, s2, 4')
e(f's_xor_b32 s{sT0}, s{sT0}, s2')
e(f's_lshl_b32 s{sT1}, s{sT1}, 2')
e(f's_xor_b32 s{sT0}, s{sT0}, s{sT1}')
e(f's_and_b32 s{sT0}, s{sT0}, 15')
e(f's_add_u32 s{sKE}, s{sKB}, {16*3072}')
e(f's_mul_i32 s{sT0}, s{sT0}, 3072')
e(f's_add_u32 s{sKB}, s{sKB}, s{sT0}')
e(f's_cmp_ge_u32 s{sWAVE}, 4')
e('s_cbranch_scc1 L_vwave')

def common_scalars():
    e(f's_lshl_b32 s{sGRP}, s{sHEAD}, 15')
    e(f's_lshl_b32 s{sT0}, s{sSPLIT}, 12')
    e(f's_add_u32 s{sSLOT}, s{sGRP}, s{sT0}')
    e(f's_lshr_b32 s{sRQ}, s{sSPLIT}, 1')
    e(f's_and_b32 s{sCH}, s{sSPLIT}, 1')
    e(f's_mul_i32 s{sYB}, s{sCH}, {20*16384}')
    e(f's_lshl_b32 s{sT0}, s{sHEAD}, 9')
    e(f's_add_u32 s{sYB}, s{sYB}, s{sT0}')
    e(f's_lshl_b32 s{sT0}, s{sRQ}, 7')
    e(f's_add_u32 s{sYB}, s{sYB}, s{sT0}')
    e(f's_add_u32 s{sYB}, s{sYB}, {WS_Y}')

vm = VM()
e('s_setprio 2')
vWQ = vD + 12 * 11
vAC = vD + 12 * 7
vFA = vAC + 24
vXS = 16
e(f's_mul_i32 s{sT0}, s{sSPLIT}, 80')
e(f's_mul_i32 s{sT1}, s{sWAVE}, 20')
e(f's_add_u32 s{sT0}, s{sT0}, s{sT1}')
e(f's_lshl_b32 s{sT3}, s{sT0}, 1')
e(f's_mul_i32 s{sWQB}, s{sT0}, 12288')
e(f's_mul_i32 s{sT1}, s{sHEAD}, 384')
e(f's_add_u32 s{sWQB}, s{sWQB}, s{sT1}')
e(f's_mul_i32 s{sFB}, s{sT0}, 3072')
e(f's_mul_i32 s{sT1}, s{sHEAD}, 96')
e(f's_add_u32 s{sFB}, s{sFB}, s{sT1}')
e(f'v_mul_u32_u24 v{vT3}, 20, v{vLANE}')
e(f'v_lshlrev_b32 v{vT4}, 1, v{vT0}')
e(f'v_mul_u32_u24 v{vT5}, 12288, v{vT0}')
e(f'v_add_u32 v{vT5}, v{vT5}, v{vT2}')
e(f'v_mul_u32_u24 v{vT6}, 3072, v{vT0}')
e(f'v_add_u32 v{vT6}, v{vT6}, v{vT2}')
e(f'v_mov_b32 v{vT7}, {OOB}')
e(f'v_cmp_gt_u32 vcc, 6, v{vT1}')
nop(1)
e(f'v_cndmask_b32 v{vT6}, v{vT7}, v{vT6}, vcc')
e(f'v_cmp_gt_u32 vcc, 32, v{vLANE}')
nop(1)
e(f'v_cndmask_b32 v{vM}, v{vT7}, v{vT5}, vcc')
e(f'v_cndmask_b32 v{vRA}, v{vT7}, v{vT6}, vcc')
e('s_waitcnt lgkmcnt(0)')
stamp(1)
e(f'buffer_load_dwordx4 {v4(vXS)}, v{vT3}, {srd(sX)}, 0 offen'); vm.issue('x')
e(f'buffer_load_dword v{vXS+4}, v{vT3}, {srd(sX)}, 0 offen offset:16'); vm.issue('x')
for k in range(3):
    e(f'buffer_load_ushort v{vX+k}, v{vT4}, {srd(sX)}, s{sT3} offen offset:{16*k}'); vm.issue('x')
for k in range(3):
    vo = vT5 if k < 2 else vM
    vf = vT6 if k < 2 else vRA
    for j in range(3):
        e(f'buffer_load_dwordx4 {v4(vWQ+20*k+4*j)}, v{vo}, {srd(sWQ)}, s{sWQB} offen offset:{128*j} nt'); vm.issue('wq')
    e(f'buffer_load_dwordx4 {v4(vWQ+20*k+12)}, v{vf}, {srd(sW1)}, s{sFB} offen nt'); vm.issue('wq')
    e(f'buffer_load_dwordx4 {v4(vWQ+20*k+16)}, v{vf}, {srd(sW3)}, s{sFB} offen nt'); vm.issue('wq')
    if k < 2:
        e(f's_add_u32 s{sWQB}, s{sWQB}, {8*12288}')
        e(f's_add_u32 s{sFB}, s{sFB}, {8*3072}')
def kload(G):
    for j in range(3):
        e(f'buffer_load_dwordx4 {v4(vD+12*G+4*j)}, v{vOFF}, {srd(sK)}, s{sKB} offen offset:{128*j} nt'); vm.issue(f'k{G}')
    adv()
common_scalars()
e('s_barrier')
vm.wait('x')
e(f'v_lshlrev_b32 v{vT0}, 16, v{vXS}')
e(f'v_and_b32 v{vT1}, 0xffff0000, v{vXS}')
e(f'v_add_f32 v{vT3}, v{vT0}, v{vT1}')
for d in range(1, 5):
    e(f'v_lshlrev_b32 v{vT0}, 16, v{vXS+d}')
    e(f'v_and_b32 v{vT1}, 0xffff0000, v{vXS+d}')
    e(f'v_add_f32 v{vT3}, v{vT3}, v{vT0}')
    e(f'v_add_f32 v{vT3}, v{vT3}, v{vT1}')
allreduce64('v_add_f32', vT3, vT4)
e(f'v_mul_f32 v{vT3}, 0x3acccccd, v{vT3}')
e(f'v_mov_b32 v{vT5}, 0')
for d in range(5):
    e(f'v_lshlrev_b32 v{vT0}, 16, v{vXS+d}')
    e(f'v_and_b32 v{vT1}, 0xffff0000, v{vXS+d}')
    e(f'v_sub_f32 v{vT0}, v{vT0}, v{vT3}')
    e(f'v_sub_f32 v{vT1}, v{vT1}, v{vT3}')
    e(f'v_fmac_f32 v{vT5}, v{vT0}, v{vT0}')
    e(f'v_fmac_f32 v{vT5}, v{vT1}, v{vT1}')
allreduce64('v_add_f32', vT5, vT4)
e(f'v_mul_f32 v{vT5}, 0x3acccccd, v{vT5}')
bf16_round(vT3, vT3)
bf16_round(vT5, vT5)
e(f'v_add_f32 v{vT5}, 0x3727c5ac, v{vT5}')
bf16_round(vT5, vT5)
e(f'v_sqrt_f32 v{vT5}, v{vT5}')
nop(0)
bf16_round(vT5, vT5)
e(f'v_rcp_f32 v{vT6}, v{vT5}')
nop(0)
for k in range(3):
    e(f'v_lshlrev_b32 v{vT0}, 16, v{vX+k}')
    e(f'v_sub_f32 v{vT0}, v{vT0}, v{vT3}')
    bf16_round(vT0, vT0)
    e(f'v_mul_f32 v{vT4}, v{vT0}, v{vT6}')
    e(f'v_fma_f32 v{vT0}, -v{vT4}, v{vT5}, v{vT0}')
    e(f'v_fmac_f32 v{vT4}, v{vT0}, v{vT6}')
    e(f'v_cvt_pk_bf16_f32 v{vX+k}, v{vT4}, 0')
for i in range(40): e(f'v_mov_b32 v{vAC+i}, 0')
red_addr()
vm.wait('wq')
for k in range(3):
    e(f'v_lshlrev_b32 v{vT1}, 16, v{vX+k}')
    for j in range(3): axpy(vAC + 8 * j, vWQ + 20 * k + 4 * j, vX + k, vT1)
    axpy(vFA, vWQ + 20 * k + 12, vX + k, vT1)
    axpy(vFA + 8, vWQ + 20 * k + 16, vX + k, vT1)
reduce_r8(vAC, 5)
e(f's_mul_i32 s{sT0}, s{sWAVE}, 768')
e(f'v_add_u32 v{vT2}, s{sT0}, v{vRA}')
for j in range(3):
    e(f'ds_write_b64 v{vT2}, {v2(vAC+8*j)} offset:{L_RED+256*j}')
e(f's_mul_i32 s{sT0}, s{sWAVE}, 384')
e(f'v_add_u32 v{vT2}, s{sT0}, v{vRA}')
e(f'v_and_b32 v{vT1}, 7, v{vLANE}')
e(f'v_cmp_gt_u32 vcc, 6, v{vT1}')
e('s_and_saveexec_b64 s[28:29], vcc')
e(f'ds_write_b64 v{vT2}, {v2(vFA)} offset:{L_FRED}')
e(f'ds_write_b64 v{vT2}, {v2(vFA+8)} offset:{L_FRED+192}')
e('s_mov_b64 exec, s[28:29]')
lds_inc(C1)
stamp(2)
for G in range(16): kload(G)
lds_spin(C2, 1)
stamp(3)
vQ = 16
vS = 28
e(f'v_and_b32 v{vT0}, 7, v{vLANE}')
e(f'v_lshlrev_b32 v{vT0}, 4, v{vT0}')
for j in range(3):
    e(f'ds_read_b128 {v4(vQ+4*j)}, v{vT0} offset:{L_QBF+128*j}')
get_tag()
for G in range(16):
    vm.wait(f'k{G}')
    e(f'v_mov_b32 v{vS+G}, 0')
    e(f'v_mov_b32 v{vT0}, 0')
    e(f'v_mov_b32 v{vT1}, 0')
    accs = [vS + G, vT0, vT1]
    for d in range(4):
        for j in range(3):
            e(f'v_dot2c_f32_bf16 v{accs[j]}, v{vD+12*G+4*j+d}, v{vQ+4*j+d}')
    nop(2)
    e(f'v_add_f32 v{vT0}, v{vT0}, v{vT1}')
    e(f'v_add_f32 v{vS+G}, v{vS+G}, v{vT0}')
for G in range(16):
    e(f'v_add_f32 v{vS+G}, v{vS+G}, v{vS+G} quad_perm:[1,0,3,2] {DPP}')
for G in range(16):
    e(f'v_add_f32 v{vS+G}, v{vS+G}, v{vS+G} quad_perm:[2,3,0,1] {DPP}')
for G in range(16):
    e(f'v_add_f32 v{vS+G}, v{vS+G}, v{vS+G} row_half_mirror {DPP}')
for G in range(16):
    bf16_round(vS + G, vS + G)
    e(f'v_mul_f32 v{vS+G}, 0x3d93cd3a, v{vS+G}')
    bf16_round(vS + G, vS + G)
stamp(4)
e(f'v_max3_f32 v{vM}, v{vS}, v{vS+1}, v{vS+2}')
for G in range(3, 15, 2): e(f'v_max3_f32 v{vM}, v{vM}, v{vS+G}, v{vS+G+1}')
e(f'v_max_f32 v{vM}, v{vM}, v{vS+15}')
nop(1)
e(f'v_max_f32 v{vM}, v{vM}, v{vM} row_ror:8 {DPP}')
allreduce_rows('v_max_f32', vM, vT1)
e(f'v_mov_b32 v{vT2}, 0')
for G in range(16):
    e(f'v_sub_f32 v{vS+G}, v{vS+G}, v{vM}')
    e(f'v_mul_f32 v{vS+G}, 0x3fb8aa3b, v{vS+G}')
    e(f'v_exp_f32 v{vS+G}, v{vS+G}')
    nop(0)
    e(f'v_add_f32 v{vT2}, v{vT2}, v{vS+G}')
    e(f'v_cvt_pk_bf16_f32 v{vS+G}, v{vS+G}, 0')
e(f'v_lshrrev_b32 v{vT4}, 3, v{vLANE}')
e(f'v_lshlrev_b32 v{vT4}, 6, v{vT4}')
e(f's_lshl_b32 s{sT1}, s{sWAVE}, 9')
e(f'v_add_u32 v{vT4}, s{sT1}, v{vT4}')
e(f'v_and_b32 v{vT1}, 7, v{vLANE}')
e(f'v_cmp_eq_u32 vcc, 0, v{vT1}')
e('s_and_saveexec_b64 s[28:29], vcc')
for i in range(4): e(f'ds_write_b128 v{vT4}, {v4(vS+4*i)} offset:{L_P+16*i}')
e('s_mov_b64 exec, s[28:29]')
e(f's_lshl_b32 s{sT0}, s{sWAVE}, 2')
e(f'v_mov_b32 v{vT3}, s{sT0}')
e('s_waitcnt lgkmcnt(0)')
e(f'v_mov_b32 v{vT1}, 1')
e(f'ds_write_b32 v{vT3}, v{vT1} offset:{C4}')
nop(1)
e(f'v_add_f32 v{vT2}, v{vT2}, v{vT2} row_ror:8 {DPP}')
allreduce_rows('v_add_f32', vT2, vT1)
e(f'ds_write_b32 v{vT3}, v{vM} offset:{L_WMAX}')
e(f'ds_write_b32 v{vT3}, v{vT2} offset:{L_WSUM}')
lds_inc(C3)
e(f's_cmp_eq_u32 s{sWAVE}, 2')
e('s_cbranch_scc1 L_ffn')
e(f's_cmp_lg_u32 s{sWAVE}, 1')
e('s_cbranch_scc1 L_kwo')
lds_spin(C3, 4)
e(f'ds_read_b128 {v4(44)}, v{vT0} offset:{L_WMAX}')
e(f'ds_read_b128 {v4(48)}, v{vT0} offset:{L_WSUM}')
e('s_waitcnt lgkmcnt(0)')
e('v_max3_f32 v52, v44, v45, v46')
e('v_max_f32 v52, v52, v47')
e('v_mov_b32 v53, 0')
for w in range(4):
    e(f'v_sub_f32 v{44+w}, v{44+w}, v52')
    e(f'v_mul_f32 v{44+w}, 0x3fb8aa3b, v{44+w}')
    e(f'v_exp_f32 v{44+w}, v{44+w}')
    nop(0)
    e(f'v_fmac_f32 v53, v{44+w}, v{48+w}')
e(f'v_mov_b32 v54, v{vTG}')
e(f'v_mov_b32 v55, v{vTG+1}')
e('s_mov_b64 exec, 1')
e(f'buffer_store_dwordx4 v[52:55], v{vT0}, {srd(sWS)}, s{sSLOT} offen offset:{SL_ML} sc1')
e('s_mov_b64 exec, -1')
e('s_branch L_kwo')
lab('L_ffn')
vG = 44
e(f'v_lshrrev_b32 v{vT2}, 3, v{vLANE}')
e(f'v_lshlrev_b32 v{vT2}, 12, v{vT2}')
e(f'v_and_b32 v{vT3}, 7, v{vLANE}')
e(f'v_lshlrev_b32 v{vT4}, 4, v{vT3}')
e(f'v_add_u32 v{vT2}, v{vT2}, v{vT4}')
e(f'v_mov_b32 v{vT1}, {OOB}')
e(f'v_cmp_gt_u32 s[30:31], 6, v{vT3}')
nop(1)
e(f'v_cndmask_b32 v{vT2}, v{vT1}, v{vT2}, s[30:31]')
e(f's_mul_i32 s{sT0}, s{sRQ}, 96')
e(f's_add_u32 s{sT0}, s{sT0}, s{sGRP}')
e(f's_mov_b32 s{sCNT}, 0')
lab('L_pff')
e(f'buffer_load_dwordx4 {v4(vG)}, v{vT2}, {srd(sWS)}, s{sT0} offen offset:{SL_G} sc1')
e(f'buffer_load_dwordx4 {v4(vG+4)}, v{vT2}, {srd(sWS)}, s{sT0} offen offset:{SL_U} sc1')
e('s_waitcnt vmcnt(0)')
tag_check(vT1, vT4, [vG, vG + 4])
poll_tail('L_pff', vT1, 's[30:31]')
for r in (vG, vG + 1, vG + 4, vG + 5):
    nop(1)
    e(f'v_add_f32 v{r}, v{r}, v{r} row_ror:8 {DPP}')
    allreduce_rows('v_add_f32', r, vT1)
for c in range(2):
    bf16_round(vG + c, vG + c)
    bf16_round(vG + 4 + c, vG + 4 + c)
    e(f'v_mul_f32 v{vT1}, 0xbfb8aa3b, v{vG+c}')
    e(f'v_exp_f32 v{vT1}, v{vT1}')
    nop(0)
    e(f'v_add_f32 v{vT1}, 1.0, v{vT1}')
    e(f'v_rcp_f32 v{vT1}, v{vT1}')
    nop(0)
    e(f'v_mul_f32 v{vT1}, v{vG+c}, v{vT1}')
    bf16_round(vT1, vT1)
    e(f'v_mul_f32 v{vT1}, v{vT1}, v{vG+4+c}')
    e(f'v_cvt_pk_bf16_f32 v{vG+8+c}, v{vT1}, 0')
e(f'v_and_b32 v{vT2}, 3, v{vLANE}')
e(f'v_lshlrev_b32 v{vT2}, 6, v{vT2}')
e(f'v_and_b32 v{vT4}, 4, v{vLANE}')
e(f'v_add_u32 v{vT2}, v{vT2}, v{vT4}')
e('s_mov_b64 exec, 0xff')
e(f'ds_write_b32 v{vT2}, v{vG+8} offset:{L_U+24}')
e(f'ds_write_b32 v{vT2}, v{vG+9} offset:{L_U+24+32}')
e('s_mov_b64 exec, -1')
lds_inc(C6)
lab('L_kwo')
if not NODEFER: lds_spin(C9, 4)
wo_setup()
vWO = vD
wo_issue(vm, vWO)
e('s_setprio 3')
stamp(5)
e(f's_cmp_lg_u32 s{sWAVE}, 0')
e('s_cbranch_scc1 L_stagec')
vML = 44
e(f'v_and_b32 v{vT2}, 7, v{vLANE}')
e(f'v_lshlrev_b32 v{vT2}, 12, v{vT2}')
e(f's_mov_b32 s{sCNT}, 0')
lab('L_pml')
e(f'buffer_load_dwordx4 {v4(vML)}, v{vT2}, {srd(sWS)}, s{sGRP} offen offset:{SL_ML} sc1')
e('s_waitcnt vmcnt(0)')
tag_check(vT1, vT4, [vML])
poll_tail('L_pml', vT1)
e(f'v_mov_b32 v{vT1}, v{vML}')
allreduce8('v_max_f32', vT1)
e(f'v_sub_f32 v{vT1}, v{vML}, v{vT1}')
e(f'v_mul_f32 v{vT1}, 0x3fb8aa3b, v{vT1}')
e(f'v_exp_f32 v{vT1}, v{vT1}')
nop(0)
e(f'v_mul_f32 v{vT2}, v{vT1}, v{vML+1}')
allreduce8('v_add_f32', vT2)
e(f'v_rcp_f32 v{vT2}, v{vT2}')
nop(0)
e(f'v_mul_f32 v{vT3}, v{vT1}, v{vT2}')
e(f'v_and_b32 v{vT2}, 1, v{vLANE}')
e(f'v_lshlrev_b32 v{vT2}, 4, v{vT2}')
e(f'v_and_b32 v{vT4}, 6, v{vLANE}')
e(f'v_lshlrev_b32 v{vT4}, 1, v{vT4}')
e(f'v_add_u32 v{vT2}, v{vT2}, v{vT4}')
e(f'ds_write_b32 v{vT2}, v{vT3} offset:{L_COEF}')
lds_inc(C7)
e('s_branch L_stagec')

lab('L_vwave')
vm = VM()
e('s_setprio 1')
vACC = 16
vP = 40
common_scalars()
e('s_waitcnt lgkmcnt(0)')
e(f's_cmp_lg_u32 s{sWAVE}, 7')
e('s_cbranch_scc1 L_notag')
e('s_setprio 3')
e(f'v_mov_b32 v{vT3}, 0')
if NOTAG:
    e(f'v_mov_b32 v{vTG}, 0x1234567')
    e(f'v_mov_b32 v{vTG+1}, 0x7654321')
    e('s_barrier')
    e('s_branch L_tagok')
e('s_cmp_lg_u32 s2, 0')
e('s_cbranch_scc1 L_tagrd')
e('s_or_b32 s37, s37, 0x80000000')
e(f'v_mov_b32 v16, s36')
e(f'v_mov_b32 v17, s37')
e(f'v_mov_b32 v18, 0')
e(f'v_mov_b32 v19, 0')
e('s_mov_b64 exec, 1')
e(f'buffer_atomic_cmpswap_x2 v[16:19], v{vT3}, {srd(sDBG)}, 0 offen sc1')
e('s_mov_b64 exec, -1')
lab('L_tagrd')
e(f'buffer_load_dwordx2 {v2(vTG)}, v{vT3}, {srd(sDBG)}, 0 offen sc1')
e('s_barrier')
e(f's_mov_b32 s{sCNT}, 0')
lab('L_tagl')
e('s_waitcnt vmcnt(0)')
e(f'v_cmp_eq_u32 vcc, 0, v{vTG+1}')
e(f's_add_u32 s{sCNT}, s{sCNT}, 1')
e(f's_cmp_gt_u32 s{sCNT}, {SPIN}')
e('s_cbranch_scc1 L_tagok')
e('s_cbranch_vccz L_tagok')
e(f'buffer_load_dwordx2 {v2(vTG)}, v{vT3}, {srd(sDBG)}, 0 offen sc1')
e('s_branch L_tagl')
lab('L_tagok')
e(f'ds_write_b64 v{vT3}, {v2(vTG)} offset:{L_TAG}')
lds_inc(C1)
e('s_setprio 1')
e('s_branch L_vgo')
lab('L_notag')
e('s_barrier')
lab('L_vgo')
stamp(1)
def vload(G):
    for j in range(3):
        e(f'buffer_load_dwordx4 {v4(vD+12*G+4*j)}, v{vOFF}, {srd(sV)}, s{sKB} offen offset:{128*j} nt'); vm.issue(f'v{G}')
    adv()
VPRE = 2
for G in range(VPRE): vload(G)
e(f's_cmp_eq_u32 s{sWAVE}, 4')
e('s_cbranch_scc1 L_vrest')
e(f's_cmp_eq_u32 s{sWAVE}, 7')
e('s_cbranch_scc1 L_vrest')
e('s_setprio 3')
lds_spin(C1, 5, sleep=False)
get_tag()
e(f's_cmp_eq_u32 s{sWAVE}, 5')
e('s_cbranch_scc1 L_w5')
vTM = 16
e(f'v_lshlrev_b32 v{vT2}, 3, v{vLANE}')
e(f'v_lshlrev_b32 v{vT3}, 4, v{vLANE}')
for w in range(4):
    e(f'ds_read_b64 {v2(vTM+4+2*w)}, v{vT2} offset:{L_FRED+384*w}')
e(f'v_mov_b32 v{vTM+2}, v{vTG}')
e(f'v_mov_b32 v{vTM+3}, v{vTG+1}')
e('s_waitcnt lgkmcnt(0)')
for c in range(2):
    e(f'v_add_f32 v{vTM+4+c}, v{vTM+4+c}, v{vTM+6+c}')
    e(f'v_add_f32 v{vTM+8+c}, v{vTM+8+c}, v{vTM+10+c}')
for c in range(2): e(f'v_add_f32 v{vTM+c}, v{vTM+4+c}, v{vTM+8+c}')
e(f'v_cmp_gt_u32 vcc, 48, v{vLANE}')
e('s_and_saveexec_b64 s[28:29], vcc')
e(f'buffer_store_dwordx4 {v4(vTM)}, v{vT3}, {srd(sWS)}, s{sSLOT} offen offset:{SL_G} sc1')
e('s_mov_b64 exec, s[28:29]')
e('s_branch L_vsvc_done')
lab('L_w5')
publish192(16, SL_Q)
if NOQ:
    lds_inc(C2)
    e('s_branch L_vsvc_done')
e(f'v_and_b32 v{vT2}, 7, v{vLANE}')
e(f'v_lshlrev_b32 v{vT2}, 12, v{vT2}')
e(f's_mov_b32 s{sCNT}, 0')
lab('L_gp')
e(f'buffer_load_dwordx4 {v4(40)}, v{vT2}, {srd(sWS)}, s{sGRP} offen offset:{SL_Q+95*16} sc1')
e('s_waitcnt vmcnt(0)')
tag_check(vT1, vT4, [40])
poll_tail('L_gp', vT1)
vQA = 16
vQB = 48
e(f'v_lshlrev_b32 v{vT3}, 4, v{vLANE}')
e(f'v_and_b32 v{vT2}, 31, v{vLANE}')
e(f'v_lshlrev_b32 v{vT2}, 4, v{vT2}')
e(f'v_lshrrev_b32 v{vT4}, 5, v{vLANE}')
e(f'v_lshlrev_b32 v{vT4}, 12, v{vT4}')
e(f'v_add_u32 v{vT2}, v{vT2}, v{vT4}')
for s_ in range(8): e(f's_add_u32 s{sC+s_}, s{sGRP}, {s_*WS_SLOT}')
e(f's_mov_b32 s{sCNT}, 0')
lab('L_gq')
for s_ in range(8):
    e(f'buffer_load_dwordx4 {v4(vQA+4*s_)}, v{vT3}, {srd(sWS)}, s{sC+s_} offen offset:{SL_Q} sc1')
for s_ in range(4):
    e(f'buffer_load_dwordx4 {v4(vQB+4*s_)}, v{vT2}, {srd(sWS)}, s{sC+2*s_} offen offset:{SL_Q+1024} sc1')
e('s_waitcnt vmcnt(0)')
tag_check(vT1, vT4, [vQA + 4 * i for i in range(12)])
poll_tail('L_gq', vT1)
for step in (4, 2, 1):
    for w in range(step):
        for c in range(2):
            e(f'v_add_f32 v{vQA+4*w+c}, v{vQA+4*w+c}, v{vQA+4*(w+step)+c}')
for step in (2, 1):
    for w in range(step):
        for c in range(2):
            e(f'v_add_f32 v{vQB+4*w+c}, v{vQB+4*w+c}, v{vQB+4*(w+step)+c}')
for c in range(2):
    nop(1)
    e(f'v_mov_b32 v{vT1}, v{vQB+c}')
    nop(1)
    e(f'v_permlane32_swap_b32 v{vT1}, v{vQB+c}')
    nop(1)
    e(f'v_add_f32 v{vQB+c}, v{vT1}, v{vQB+c}')
e(f'v_cvt_pk_bf16_f32 v{vQA}, v{vQA}, v{vQA+1}')
e(f'v_cvt_pk_bf16_f32 v{vQB}, v{vQB}, v{vQB+1}')
e(f'v_lshlrev_b32 v{vT4}, 2, v{vLANE}')
e(f'ds_write_b32 v{vT4}, v{vQA} offset:{L_QBF}')
e('s_mov_b32 exec_hi, 0')
e(f'ds_write_b32 v{vT4}, v{vQB} offset:{L_QBF+256}')
e('s_mov_b64 exec, -1')
lds_inc(C2)
if STAMPS: e(f's_memrealtime s[{sST+2}:{sST+3}]')
lab('L_vsvc_done')
e('s_setprio 1')
lab('L_vrest')
for G in range(VPRE, 16): vload(G)
lds_inc(C9)
stamp(2)
for i in range(24): e(f'v_mov_b32 v{vACC+i}, 0')
red_addr()
e(f's_sub_u32 s{sT4}, s{sWAVE}, 4')
e(f's_mul_i32 s{sT0}, s{sT4}, 768')
e(f'v_add_u32 v{vRA}, s{sT0}, v{vRA}')
wo_setup()
e(f's_cmp_eq_u32 s{sWAVE}, 4')
e(f's_cselect_b32 s{sWOB}, s{sWOB}, {OOB}')
e(f's_cselect_b32 s{sW2B}, s{sW2B}, {OOB}')
e(f's_lshl_b32 s{sT3}, s{sT4}, 2')
e(f'v_mov_b32 v{vT7}, s{sT3}')
lds_spin(C4, 1, vaddr=vT7)
stamp(3)
e(f'v_lshrrev_b32 v{vT2}, 3, v{vLANE}')
e(f'v_lshlrev_b32 v{vT2}, 6, v{vT2}')
e(f's_lshl_b32 s{sT3}, s{sT4}, 9')
e(f'v_add_u32 v{vT2}, s{sT3}, v{vT2}')
for i in range(4): e(f'ds_read_b128 {v4(vP+4*i)}, v{vT2} offset:{L_P+16*i}')
get_tag()
e('s_setprio 3')
for G in range(16):
    vm.wait(f'v{G}')
    e(f'v_lshlrev_b32 v{vT0+(G&1)}, 16, v{vP+G}')
    for j in range(3):
        axpy(vACC + 8 * j, vD + 12 * G + 4 * j, vP + G, vT0 + (G & 1))
    if G == 2 and NODEFER:
        wo_issue(vm, vD)
    if G == 11:
        cmt('scale factor of this wave pair: exp(m_w - M_wg)')
        nop(2)
        lds_spin(C3, 4)
        e(f'ds_read_b128 {v4(56)}, v{vT0} offset:{L_WMAX}')
        e(f'ds_read_b32 v{vM}, v{vT7} offset:{L_WMAX}')
        e('s_waitcnt lgkmcnt(0)')
        e('v_max3_f32 v56, v56, v57, v58')
        e('v_max_f32 v56, v56, v59')
        e(f'v_sub_f32 v{vM}, v{vM}, v56')
        e(f'v_mul_f32 v{vM}, 0x3fb8aa3b, v{vM}')
        e(f'v_exp_f32 v{vM}, v{vM}')
        nop(0)
stamp(4)
reduce_r8(vACC, 3)
for j in range(3):
    for c in range(2): e(f'v_mul_f32 v{vACC+8*j+c}, v{vM}, v{vACC+8*j+c}')
for j in range(3):
    e(f'ds_write_b64 v{vRA}, {v2(vACC+8*j)} offset:{L_RED+256*j}')
lds_inc(C8)
stamp(5)
e(f's_cmp_eq_u32 s{sWAVE}, 4')
e('s_cbranch_scc1 L_w4wo' if not NODEFER else 's_cbranch_scc1 L_stagec')
e(f's_cmp_eq_u32 s{sWAVE}, 6')
e('s_cbranch_scc1 L_merge')
e(f's_cmp_eq_u32 s{sWAVE}, 7')
e('s_cbranch_scc1 L_final')
lds_spin(C8, 4, sleep=False)
publish192(128, SL_O)
stamp(6)
stamp_out()
lab('L_merge')
vO = 128
vCF = 164
e(f'v_and_b32 v{vT3}, 31, v{vLANE}')
e(f'v_lshlrev_b32 v{vT2}, 4, v{vT3}')
e(f'v_lshrrev_b32 v{vT4}, 5, v{vLANE}')
e(f'v_lshlrev_b32 v{vT5}, 12, v{vT4}')
e(f'v_add_u32 v{vT2}, v{vT2}, v{vT5}')
e(f'v_mov_b32 v{vT1}, {OOB}')
e(f'v_cmp_gt_u32 s[30:31], 24, v{vT3}')
nop(1)
e(f'v_cndmask_b32 v{vT2}, v{vT1}, v{vT2}, s[30:31]')
e(f'v_lshlrev_b32 v{vT5}, 4, v{vT4}')
e(f'v_lshlrev_b32 v{vT3}, 1, v{vT3}')
e(f'v_add_u32 v{vT3}, v{vT3}, v{vT4}')
e(f'v_lshrrev_b32 v{vT4}, 3, v{vT3}')
e(f'v_lshlrev_b32 v{vT4}, 2, v{vT4}')
e(f'v_and_b32 v{vT3}, 7, v{vT3}')
e(f'v_lshlrev_b32 v{vT3}, 5, v{vT3}')
e(f'v_add_u32 v{vT3}, v{vT3}, v{vT4}')
e(f's_mul_i32 s{sT0}, s{sRQ}, 384')
e(f's_add_u32 s{sT0}, s{sT0}, s{sGRP}')
for i in range(4): e(f's_add_u32 s{sC+i}, s{sT0}, {2*i*WS_SLOT}')
e(f's_mov_b32 s{sCNT}, 0')
lab('L_po')
for i in range(4):
    e(f'buffer_load_dwordx4 {v4(vO+4*i)}, v{vT2}, {srd(sWS)}, s{sC+i} offen offset:{SL_O} sc1')
e('s_waitcnt vmcnt(0)')
tag_check(vT1, vT4, [vO + 4 * i for i in range(4)])
poll_tail('L_po', vT1, 's[30:31]')
lds_spin(C7, 1, sleep=False)
e(f'ds_read_b128 {v4(vCF)}, v{vT5} offset:{L_COEF}')
e('s_waitcnt lgkmcnt(0)')
e(f'v_mul_f32 v{vO}, v{vCF}, v{vO}')
e(f'v_mul_f32 v{vO+1}, v{vCF}, v{vO+1}')
for i in range(1, 4):
    e(f'v_fmac_f32 v{vO}, v{vCF+i}, v{vO+4*i}')
    e(f'v_fmac_f32 v{vO+1}, v{vCF+i}, v{vO+4*i+1}')
nop(1)
e(f'v_permlane32_swap_b32 v{vO}, v{vO+1}')
nop(1)
e(f'v_add_f32 v{vO}, v{vO}, v{vO+1}')
e(f'v_cvt_pk_bf16_f32 v{vO}, v{vO}, 0')
e('s_mov_b64 exec, s[30:31]')
e(f'ds_write_b32 v{vT3}, v{vO} offset:{L_U}')
e('s_waitcnt lgkmcnt(0)')
e('s_barrier')
stamp(6)
stamp_out()
lab('L_w4wo')
lds_spin(C9, 4)
wo_issue(vm, vD)
lab('L_stagec')
vA = 16
vU = 32
for i in range(8): e(f'v_mov_b32 v{vA+i}, 0')
lds_spin(C6, 1)
e(f'v_lshrrev_b32 v{vT4}, 3, v{vLANE}')
e(f'v_lshlrev_b32 v{vT4}, 5, v{vT4}')
e(f'ds_read_b64 {v2(vU+6)}, v{vT4} offset:{L_U+24}')
e(f'v_bfe_u32 v{vT2}, v{vLANE}, 1, 2')
e(f'v_lshlrev_b32 v{vT2}, 14, v{vT2}')
e(f'v_and_b32 v{vT3}, 1, v{vLANE}')
e(f'v_lshlrev_b32 v{vT3}, 6, v{vT3}')
e(f'v_add_u32 v{vT2}, v{vT2}, v{vT3}')
e(f'v_and_b32 v{vT3}, 48, v{vLANE}')
e(f'v_add_u32 v{vT2}, v{vT2}, v{vT3}')
e(f's_lshl_b32 s{sT0}, s{sWAVE}, 16')
e(f's_add_u32 s{sT0}, s{sT0}, s{sYB}')
e(f'v_and_b32 v{vT3}, 8, v{vLANE}')
e(f'v_cmp_eq_u32 s[30:31], 0, v{vT3}')
e(f'v_mov_b32 v{vA+10}, v{vTG}')
e(f'v_mov_b32 v{vA+11}, v{vTG+1}')
e('s_waitcnt vmcnt(6) lgkmcnt(0)')
for i in range(6, 8): e(f'v_lshlrev_b32 v{vU+8+i}, 16, v{vU+i}')
for i in range(6, 8): axpy(vA, vWO + 4 * i, vU + i, vU + 8 + i)
e('s_waitcnt vmcnt(0)')
e('s_barrier')
stamp(6)
e(f'ds_read_b128 {v4(vU)}, v{vT4} offset:{L_U}')
e(f'ds_read_b64 {v2(vU+4)}, v{vT4} offset:{L_U+16}')
e('s_waitcnt lgkmcnt(0)')
for i in range(6): e(f'v_lshlrev_b32 v{vU+8+i}, 16, v{vU+i}')
for i in range(6): axpy(vA, vWO + 4 * i, vU + i, vU + 8 + i)
reduce_r8(vA, 1)
e(f'v_mov_b32 v{vA+8}, v{vA}')
e(f'v_mov_b32 v{vA+9}, v{vA+1}')
e('s_mov_b64 exec, s[30:31]')
e(f'buffer_store_dwordx4 {v4(vA+8)}, v{vT2}, {srd(sWS)}, s{sT0} offen sc1')
stamp_out()
lab('L_final')
e(f's_cmp_ge_u32 s2, {NRED}')
e('s_cbranch_scc1 L_end2')
vY = 128
e(f'v_lshrrev_b32 v{vT0}, 2, v{vLANE}')
e(f'v_lshlrev_b32 v{vT0}, 7, v{vT0}')
e(f'v_and_b32 v{vT2}, 3, v{vLANE}')
e(f'v_lshlrev_b32 v{vT3}, 4, v{vT2}')
e(f'v_add_u32 v{vT0}, v{vT0}, v{vT3}')
e(f's_lshr_b32 s{sT0}, s2, 1')
e(f's_lshl_b32 s{sT0}, s{sT0}, 14')
e(f's_and_b32 s{sT1}, s2, 1')
e(f's_lshl_b32 s{sT1}, s{sT1}, 6')
e(f's_add_u32 s{sT0}, s{sT0}, s{sT1}')
e(f's_add_u32 s{sT0}, s{sT0}, {WS_Y}')
for i in range(1, 4): e(f's_add_u32 s{sC+i}, s{sT0}, {4096*i}')
e(f's_mov_b32 s{sC}, s{sT0}')
e(f'v_lshlrev_b32 v{vT2}, 2, v{vT2}')
e(f'v_lshrrev_b32 v{vT3}, 5, v{vLANE}')
e(f'v_lshlrev_b32 v{vT3}, 1, v{vT3}')
e(f'v_add_u32 v{vT2}, v{vT2}, v{vT3}')
e(f's_lshl_b32 s{sT1}, s2, 4')
e(f'buffer_load_ushort v{vT5}, v{vT2}, {srd(sX)}, s{sT1} offen')
e(f'v_and_b32 v{vT3}, 28, v{vLANE}')
e(f'v_cmp_eq_u32 s[30:31], 0, v{vT3}')
e('s_barrier')
stamp(6)
e(f's_mov_b32 s{sCNT}, 0')
lab('L_py')
for i in range(8):
    e(f'buffer_load_dwordx4 {v4(vY+4*i)}, v{vT0}, {srd(sWS)}, s{sC+i//2} offen offset:{2048*(i&1)} sc1')
e('s_waitcnt vmcnt(0)')
tag_check(vT1, vT4, [vY + 4 * i for i in range(8)])
poll_tail('L_py', vT1)
for step in (4, 2, 1):
    for w in range(step):
        for c in range(2):
            e(f'v_add_f32 v{vY+4*w+c}, v{vY+4*w+c}, v{vY+4*(w+step)+c}')
nop(1)
e(f'v_permlane32_swap_b32 v{vY}, v{vY+1}')
nop(1)
e(f'v_add_f32 v{vY}, v{vY}, v{vY+1}')
for dpp in ('row_ror:8', 'row_ror:4'):
    nop(1)
    e(f'v_add_f32 v{vY}, v{vY}, v{vY} {dpp} {DPP}')
nop(1)
e(f'v_mov_b32 v{vY+1}, v{vY}')
nop(1)
e(f'v_permlane16_swap_b32 v{vY+1}, v{vY}')
nop(1)
e(f'v_add_f32 v{vY}, v{vY}, v{vY+1}')
e(f'v_lshlrev_b32 v{vT5}, 16, v{vT5}')
e(f'v_add_f32 v{vY}, v{vT5}, v{vY}')
e(f'v_cvt_pk_bf16_f32 v{vY}, v{vY}, v{vY}')
if THR:
    e('s_memrealtime s[96:97]')
    e('s_waitcnt lgkmcnt(0)')
    e('s_sub_u32 s96, s96, s98')
    e(f's_cmp_gt_u32 s96, {THR[0]}')
    e('s_cselect_b32 s96, 0x7fc07fc0, 0')
    e(f'v_or_b32 v{vY}, s96, v{vY}')
e('s_mov_b64 exec, s[30:31]')
e(f'buffer_store_short v{vY}, v{vT2}, {srd(sOUT)}, s{sT1} offen')
lab('L_end2')
if STAMPS:
    e('s_mov_b64 exec, -1')
    lab('L_stamp_out')
    e(f's_memrealtime s[{sST+14}:{sST+15}]')
    e('s_waitcnt lgkmcnt(0)')
    for i in range(8): e(f'v_mov_b32 v{200+i}, s{sST+2*i}')
    e(f's_lshl_b32 s{sT0}, s2, 3')
    e(f's_add_u32 s{sT0}, s{sT0}, s{sWAVE}')
    e(f's_lshl_b32 s{sT0}, s{sT0}, 5')
    e(f's_add_u32 s{sT0}, s{sT0}, {WS_STAMP}')
    e(f'v_mov_b32 v{vT0}, 0')
    e('s_mov_b64 exec, 1')
    e(f'buffer_store_dwordx4 {v4(200)}, v{vT0}, {srd(sWS)}, s{sT0} offen')
    e(f'buffer_store_dwordx4 {v4(204)}, v{vT0}, {srd(sWS)}, s{sT0} offen offset:16')
lab('L_end')
e('s_endpgm')
L.append('.section .rodata,"a"')
L.append('.p2align 6')
L.append(f'.amdhsa_kernel {NAME}')
L.append('  .amdhsa_next_free_vgpr 256')
L.append('  .amdhsa_next_free_sgpr 102')
L.append('  .amdhsa_accum_offset 256')
L.append('  .amdhsa_group_segment_fixed_size 0')
L.append('  .amdhsa_kernarg_size 96')
L.append('  .amdhsa_user_sgpr_count 2')
L.append('  .amdhsa_user_sgpr_kernarg_segment_ptr 1')
L.append('  .amdhsa_system_sgpr_workgroup_id_x 1')
L.append('.end_amdhsa_kernel')
open(sys.argv[1], 'w').write('\n'.join(L) + '\n')
```

```python
import sys, copy
STAMPS = '--stamps' in sys.argv
NODEFER = '--nodefer' in sys.argv
THR = [int(a.split('=')[1]) for a in sys.argv if a.startswith('--thr=')]
NAME = 'parallel_sum__sliding_block_cached__glu_gated_swiglu__decode_kernel'

L = []
def e(s): L.append('    ' + s)
def lab(s): L.append(s + ':')
def cmt(s): L.append('    ; ' + s)

HEAD_STRIDE = 32768 * 384
WIN = 28672 * 384
WS_SLOT = 4096
SL_Q, SL_O, SL_G, SL_U, SL_ML, SL_ID = 0, 1536, 3072, 3456, 3840, 3968
NFAST = 4
ALWAYS_SLOW = '--slow' in sys.argv
WS_Y = 256 * WS_SLOT
WS_Y_BYTES = 40 * 16384
WS_USED = WS_Y + WS_Y_BYTES
WS_STAMP = 2 << 20
OOB = 0x40000000
SPIN = 0x4000
RINGS = [int(a.split('=')[1]) for a in sys.argv if a.startswith('--ring=')]
RING = RINGS[0] if RINGS else 4
SLS = [int(a.split('=')[1]) for a in sys.argv if a.startswith('--sl=')]
SL = SLS[0] if SLS else 6
DUP = '--dup' in sys.argv
NOPIPE = '--nopipe' in sys.argv
WINS = [int(a.split('=')[1]) for a in sys.argv if a.startswith('--win=')]
WINN = WINS[0] if WINS else 6
VPRES = [int(a.split('=')[1]) for a in sys.argv if a.startswith('--vpre=')]
NOTAG = '--notag' in sys.argv
NOQ = '--noq' in sys.argv
NRED = 80

sX, sK, sV, sWQ, sWO, sW1, sW3, sW2, sOUT, sDBG, sWS = [40 + 4 * i for i in range(11)]
def srd(b): return f's[{b}:{b+3}]'
sHEAD, sSPLIT, sWAVE = 3, 4, 5
sT0, sT1, sT2, sT3 = 6, 7, 8, 9
sKB = 10
sWQB = 11
sSLOT = 12
sGRP = 13
sWOB = 14
sW2B = 15
sCNT = 16
sFB = 17
sT4 = 18
sT5 = 19
sC = 20
sRQ, sCH = 32, 33
sYB = 34
sKE = 39
sMODE = 35
sST = 84

L_RED = 0
L_FRED = 3072
L_QBF = 4608
L_P = 5120
L_WMAX = 7168
L_WSUM = 7184
L_CNT = 7200
C1, C2, C3, C6, C7, C8, C9, C10 = [L_CNT + 4 * i for i in range(8)]
C4 = L_CNT + 32
L_COEF = 7264
L_TAG = 7296
L_MODE = 7304
L_U = 7312 + 112
LDS_BYTES = 7680

vTID = 0
vOFF = 1
vT0, vT1, vT2, vT3 = 2, 3, 4, 5
vLANE = 6
vRA = 7
vM = 8
vT4, vT5, vT6, vT7 = 9, 10, 11, 12
vTG = 14
vX = 60
vD = 64

class VM:
    def __init__(self): self.q = []
    def issue(self, tag): self.q.append(tag)
    def window(self, w):
        e(f's_waitcnt vmcnt({w-1})')
        if len(self.q) > w - 1: self.q = self.q[len(self.q) - (w - 1):] if w > 1 else []
    def wait(self, tag):
        if tag not in self.q: return
        idx = max(i for i, t in enumerate(self.q) if t == tag)
        n = len(self.q) - 1 - idx
        assert n <= 63, n
        e(f's_waitcnt vmcnt({n})')
        self.q = self.q[idx + 1:]

def stamp(i):
    if STAMPS: e(f's_memrealtime s[{sST+2*i}:{sST+2*i+1}]')
def stamp_out():
    if STAMPS:
        e('s_mov_b64 exec, -1')
        e('s_branch L_stamp_out')
    else:
        e('s_endpgm')
def nop(n): e(f's_nop {n}')
def v4(b): return f'v[{b}:{b+3}]'
def v2(b): return f'v[{b}:{b+1}]'
DPP = 'row_mask:0xf bank_mask:0xf'

def bf16_round(dst, src):
    e(f'v_cvt_pk_bf16_f32 v{dst}, v{src}, v{src}')
    e(f'v_and_b32 v{dst}, 0xffff0000, v{dst}')

def allreduce_rows(op, v, tmp):
    nop(1)
    e(f'v_mov_b32 v{tmp}, v{v}')
    nop(1)
    e(f'v_permlane16_swap_b32 v{tmp}, v{v}')
    nop(1)
    e(f'{op} v{v}, v{tmp}, v{v}')
    nop(1)
    e(f'v_mov_b32 v{tmp}, v{v}')
    nop(1)
    e(f'v_permlane32_swap_b32 v{tmp}, v{v}')
    nop(1)
    e(f'{op} v{v}, v{tmp}, v{v}')

def allreduce8(op, v):
    nop(1)
    e(f'{op} v{v}, v{v}, v{v} quad_perm:[1,0,3,2] {DPP}')
    nop(1)
    e(f'{op} v{v}, v{v}, v{v} quad_perm:[2,3,0,1] {DPP}')
    nop(1)
    e(f'{op} v{v}, v{v}, v{v} row_half_mirror {DPP}')

def allreduce64(op, v, tmp):
    allreduce8(op, v)
    nop(1)
    e(f'{op} v{v}, v{v}, v{v} row_mirror {DPP}')
    allreduce_rows(op, v, tmp)

def reduce_r8(acc, nj):
    nop(2)
    for j in range(nj):
        for ee in range(4): e(f'v_permlane32_swap_b32 v{acc+8*j+ee}, v{acc+8*j+ee+4}')
    nop(1)
    for j in range(nj):
        for ee in range(4): e(f'v_add_f32 v{acc+8*j+ee}, v{acc+8*j+ee}, v{acc+8*j+ee+4}')
    nop(1)
    for j in range(nj):
        for ee in range(2): e(f'v_permlane16_swap_b32 v{acc+8*j+ee}, v{acc+8*j+ee+2}')
    nop(1)
    for j in range(nj):
        for ee in range(2): e(f'v_add_f32 v{acc+8*j+ee}, v{acc+8*j+ee}, v{acc+8*j+ee+2}')
    nop(1)
    for j in range(nj):
        for ee in range(2): e(f'v_add_f32 v{acc+8*j+ee}, v{acc+8*j+ee}, v{acc+8*j+ee} row_ror:8 {DPP}')

def axpy(acc, data, lo, hi):
    for d in range(4):
        e(f'v_dot2c_f32_bf16 v{acc+2*d}, v{data+d}, v{lo}')
        e(f'v_dot2c_f32_bf16 v{acc+2*d+1}, v{data+d}, v{hi}')

uid = [0]
def lds_spin(addr, target, sleep=True, vaddr=None):
    uid[0] += 1
    n = uid[0]
    if vaddr is None:
        e(f'v_mov_b32 v{vT0}, 0'); vaddr = vT0
    e(f's_mov_b32 s{sCNT}, 0')
    lab(f'L_sp{n}')
    e(f'ds_read_b32 v{vT1}, v{vaddr} offset:{addr}')
    e('s_waitcnt lgkmcnt(0)')
    e(f'v_readfirstlane_b32 s{sT5}, v{vT1}')
    e(f's_add_u32 s{sCNT}, s{sCNT}, 1')
    e(f's_cmp_ge_u32 s{sT5}, {target}')
    e(f's_cbranch_scc1 L_spd{n}')
    e(f's_cmp_gt_u32 s{sCNT}, {SPIN*16}')
    e(f's_cbranch_scc1 L_spd{n}')
    if sleep: e('s_sleep 1')
    e(f's_branch L_sp{n}')
    lab(f'L_spd{n}')

def lds_inc(addr):
    e('s_waitcnt lgkmcnt(0)')
    e(f'v_mov_b32 v{vT0}, 0')
    e(f'v_mov_b32 v{vT1}, 1')
    e('s_mov_b64 exec, 1')
    e(f'ds_add_u32 v{vT0}, v{vT1} offset:{addr}')
    e('s_mov_b64 exec, -1')

def get_tag():
    e(f'v_mov_b32 v{vT0}, 0')
    e(f'ds_read_b64 {v2(vTG)}, v{vT0} offset:{L_TAG}')
    e('s_waitcnt lgkmcnt(0)')

def tag_check(dst, tmp, grans):
    first = True
    for g in grans:
        if first:
            e(f'v_xor_b32 v{dst}, v{g+2}, v{vTG}')
            e(f'v_xor_b32 v{tmp}, v{g+3}, v{vTG+1}')
            e(f'v_or_b32 v{dst}, v{dst}, v{tmp}')
            first = False
        else:
            e(f'v_xor_b32 v{g+2}, v{g+2}, v{vTG}')
            e(f'v_xor_b32 v{g+3}, v{g+3}, v{vTG+1}')
            e(f'v_or3_b32 v{dst}, v{dst}, v{g+2}, v{g+3}')

def poll_tail(name, chk, mask=None):
    e(f'v_cmp_ne_u32 vcc, 0, v{chk}')
    e(f's_add_u32 s{sCNT}, s{sCNT}, 1')
    if mask: e(f's_and_b64 vcc, vcc, {mask}')
    e(f's_cmp_gt_u32 s{sCNT}, {SPIN}')
    e(f's_cbranch_scc1 {name}_done')
    e(f's_cbranch_vccnz {name}')
    lab(f'{name}_done')

def red_addr():
    e(f'v_and_b32 v{vRA}, 7, v{vLANE}')
    e(f'v_lshlrev_b32 v{vRA}, 5, v{vRA}')
    e(f'v_lshrrev_b32 v{vT6}, 5, v{vLANE}')
    e(f'v_lshlrev_b32 v{vT6}, 4, v{vT6}')
    e(f'v_add_u32 v{vRA}, v{vRA}, v{vT6}')
    e(f'v_bfe_u32 v{vT6}, v{vLANE}, 4, 1')
    e(f'v_lshlrev_b32 v{vT6}, 3, v{vT6}')
    e(f'v_add_u32 v{vRA}, v{vRA}, v{vT6}')

def wo_setup():
    e(f'v_lshrrev_b32 v{vT0}, 3, v{vLANE}')
    e(f'v_and_b32 v{vT1}, 7, v{vLANE}')
    e(f'v_lshlrev_b32 v{vT1}, 4, v{vT1}')
    e(f'v_mul_u32_u24 v{vT4}, 1280, v{vT0}')
    e(f'v_add_u32 v{vT4}, v{vT4}, v{vT1}')
    e(f'v_mov_b32 v{vT2}, {OOB}')
    e(f'v_cmp_gt_u32 vcc, 32, v{vLANE}')
    nop(1)
    e(f'v_cndmask_b32 v{vT5}, v{vT2}, v{vT4}, vcc')
    e(f's_mul_i32 s{sT0}, s{sCH}, 640')
    e(f's_lshl_b32 s{sT1}, s{sWAVE}, 7')
    e(f's_add_u32 s{sT0}, s{sT0}, s{sT1}')
    e(f's_lshl_b32 s{sT1}, s{sHEAD}, 2')
    e(f's_add_u32 s{sT1}, s{sT1}, s{sRQ}')
    e(f's_mul_i32 s{sWOB}, s{sT1}, {48*1280}')
    e(f's_add_u32 s{sWOB}, s{sWOB}, s{sT0}')
    e(f's_mul_i32 s{sW2B}, s{sT1}, {12*1280}')
    e(f's_add_u32 s{sW2B}, s{sW2B}, s{sT0}')

def wo_issue(vm, base):
    e(f'buffer_load_dwordx4 {v4(base+24)}, v{vT4}, {srd(sW2)}, s{sW2B} offen nt'); vm.issue('wo')
    e(f's_add_u32 s{sW2B}, s{sW2B}, {8*1280}')
    e(f'buffer_load_dwordx4 {v4(base+28)}, v{vT5}, {srd(sW2)}, s{sW2B} offen nt'); vm.issue('wo')
    for i in range(6):
        e(f'buffer_load_dwordx4 {v4(base+4*i)}, v{vT4}, {srd(sWO)}, s{sWOB} offen nt'); vm.issue('wo')
        if i < 5: e(f's_add_u32 s{sWOB}, s{sWOB}, {8*1280}')

def adv():
    e(f's_add_u32 s{sKB}, s{sKB}, 3072')
    e(f's_sub_u32 s{sT5}, s{sKB}, {16*3072}')
    e(f's_cmp_ge_u32 s{sKB}, s{sKE}')
    e(f's_cselect_b32 s{sKB}, s{sT5}, s{sKB}')

sid = [0]
def gstore(data, vaddr, off, mode=None):
    base = f'buffer_store_dwordx4 {v4(data)}, v{vaddr}, {srd(sWS)}, s{sSLOT} offen offset:{off}'
    if mode == 'plain': e(base); return
    if mode == 'wt': e(base + ' sc1'); return
    sid[0] += 1
    n = sid[0]
    e(f's_cmp_eq_u32 s{sMODE}, 0')
    e(f's_cbranch_scc1 L_gs{n}')
    e(base + ' sc1')
    e(f's_branch L_gsd{n}')
    lab(f'L_gs{n}')
    e(base)
    lab(f'L_gsd{n}')

def get_mode():
    e(f'v_mov_b32 v{vT0}, 0')
    e(f'ds_read_b32 v{vT1}, v{vT0} offset:{L_MODE}')
    e('s_waitcnt lgkmcnt(0)')
    e(f'v_readfirstlane_b32 s{sMODE}, v{vT1}')

def publish192(base, slot_off, mode=None):
    e(f'v_lshlrev_b32 v{vT2}, 3, v{vLANE}')
    e(f'v_lshlrev_b32 v{vT3}, 4, v{vLANE}')
    for w in range(4):
        e(f'ds_read_b64 {v2(base+8+2*w)}, v{vT2} offset:{L_RED+768*w}')
    for w in range(4):
        e(f'ds_read_b64 {v2(base+16+2*w)}, v{vT2} offset:{L_RED+768*w+512}')
    e(f'v_mov_b32 v{base+2}, v{vTG}')
    e(f'v_mov_b32 v{base+3}, v{vTG+1}')
    e(f'v_mov_b32 v{base+6}, v{vTG}')
    e(f'v_mov_b32 v{base+7}, v{vTG+1}')
    e('s_waitcnt lgkmcnt(4)')
    for c in range(2):
        e(f'v_add_f32 v{base+8+c}, v{base+8+c}, v{base+10+c}')
        e(f'v_add_f32 v{base+12+c}, v{base+12+c}, v{base+14+c}')
    for c in range(2): e(f'v_add_f32 v{base+c}, v{base+8+c}, v{base+12+c}')
    gstore(base, vT3, slot_off, mode)
    e('s_waitcnt lgkmcnt(0)')
    for c in range(2):
        e(f'v_add_f32 v{base+16+c}, v{base+16+c}, v{base+18+c}')
        e(f'v_add_f32 v{base+20+c}, v{base+20+c}, v{base+22+c}')
    for c in range(2): e(f'v_add_f32 v{base+4+c}, v{base+16+c}, v{base+20+c}')
    e('s_mov_b32 exec_hi, 0')
    gstore(base + 4, vT3, slot_off + 1024, mode)
    e('s_mov_b64 exec, -1')

hdr = open('parallel_sum__sliding_block_cached__glu_gated_swiglu__decode.s.ref').read().split('\n')
for line in hdr:
    if line.startswith('; @launch'):
        L.append(f'; @launch grid=(256,1,1) block=(512,1,1) lds={LDS_BYTES}')
    elif line.startswith(';'):
        L.append(line)
    else:
        break
L.append('.amdgcn_target "amdgcn-amd-amdhsa--gfx950"')
L.append('.text')
L.append(f'.globl {NAME}')
L.append('.p2align 8')
L.append(f'.type {NAME},@function')
lab(NAME)
stamp(0)
if THR: e('s_memrealtime s[98:99]')
e('s_cmp_ge_u32 s2, 256')
e('s_cbranch_scc1 L_end')
for (sr, off) in [(sX, 0), (sWQ, 24), (sDBG, 80), (sV, 16), (sW1, 48), (sW3, 56), (sK, 8), (sWS, 88), (sWO, 32), (sW2, 64), (sOUT, 72)]:
    e(f's_load_dwordx2 s[{sr}:{sr+1}], s[0:1], {off}')
e('s_memrealtime s[36:37]')
e(f'v_lshrrev_b32 v{vT0}, 6, v0')
e(f'v_and_b32 v{vLANE}, 63, v0')
e(f'v_readfirstlane_b32 s{sWAVE}, v{vT0}')
e(f'v_mov_b32 v{vT3}, 0')
e(f'v_and_b32 v{vT4}, 15, v0')
e(f'v_lshlrev_b32 v{vT4}, 2, v{vT4}')
e(f'ds_write_b32 v{vT4}, v{vT3} offset:{L_CNT}')
for (sr, nb) in [(sX, 1280), (sWQ, 7864320), (sK, 402653184), (sWS, (WS_STAMP + 65536*4) if STAMPS else WS_USED), (sV, 402653184), (sW1, 1966080),
                 (sW3, 1966080), (sDBG, 256), (sWO, 7864320), (sW2, 1966080), (sOUT, 1280)]:
    e(f's_mov_b32 s{sr+2}, {nb}')
    e(f's_mov_b32 s{sr+3}, 0x00020000')
e(f's_and_b32 s{sHEAD}, s2, 7')
e(f's_lshr_b32 s{sSPLIT}, s2, 3')
e(f's_and_b32 s{sT0}, s{sSPLIT}, 3')
e(f's_lshl_b32 s{sHEAD}, s{sHEAD}, 2')
e(f's_add_u32 s{sHEAD}, s{sHEAD}, s{sT0}')
e(f's_lshr_b32 s{sSPLIT}, s{sSPLIT}, 2')
e(f'v_lshrrev_b32 v{vT0}, 3, v{vLANE}')
e(f'v_and_b32 v{vT1}, 7, v{vLANE}')
e(f'v_lshlrev_b32 v{vT2}, 4, v{vT1}')
e(f'v_mul_u32_u24 v{vOFF}, 384, v{vT0}')
e(f'v_add_u32 v{vOFF}, v{vOFF}, v{vT2}')
e(f's_mul_i32 s{sKB}, s{sHEAD}, {HEAD_STRIDE}')
e(f's_mul_i32 s{sT0}, s{sSPLIT}, {512*384}')
e(f's_add_u32 s{sKB}, s{sKB}, s{sT0}')
e(f's_and_b32 s{sT1}, s{sWAVE}, 3')
e(f's_mul_i32 s{sT0}, s{sT1}, {128*384}')
e(f's_add_u32 s{sKB}, s{sKB}, s{sT0}')
e(f's_add_u32 s{sKB}, s{sKB}, {WIN}')
e(f's_lshr_b32 s{sT0}, s2, 4')
e(f's_xor_b32 s{sT0}, s{sT0}, s2')
e(f's_lshl_b32 s{sT1}, s{sT1}, 2')
e(f's_xor_b32 s{sT0}, s{sT0}, s{sT1}')
e(f's_and_b32 s{sT0}, s{sT0}, 15')
e(f's_add_u32 s{sKE}, s{sKB}, {16*3072}')
e(f's_mul_i32 s{sT0}, s{sT0}, 3072')
e(f's_add_u32 s{sKB}, s{sKB}, s{sT0}')
e(f's_cmp_ge_u32 s{sWAVE}, 4')
e('s_cbranch_scc1 L_vwave')

def common_scalars():
    e(f's_lshl_b32 s{sGRP}, s{sHEAD}, 15')
    e(f's_lshl_b32 s{sT0}, s{sSPLIT}, 12')
    e(f's_add_u32 s{sSLOT}, s{sGRP}, s{sT0}')
    e(f's_lshr_b32 s{sRQ}, s{sSPLIT}, 1')
    e(f's_and_b32 s{sCH}, s{sSPLIT}, 1')
    e(f's_mul_i32 s{sYB}, s{sCH}, {20*16384}')
    e(f's_lshl_b32 s{sT0}, s{sHEAD}, 9')
    e(f's_add_u32 s{sYB}, s{sYB}, s{sT0}')
    e(f's_lshl_b32 s{sT0}, s{sRQ}, 7')
    e(f's_add_u32 s{sYB}, s{sYB}, s{sT0}')
    e(f's_add_u32 s{sYB}, s{sYB}, {WS_Y}')

vm = VM()
e('s_setprio 2')
vWQ = vD + 12 * 11
vAC = vD + 12 * 7
vFA = vAC + 24
vXS = 16
e(f's_mul_i32 s{sT0}, s{sSPLIT}, 80')
e(f's_mul_i32 s{sT1}, s{sWAVE}, 20')
e(f's_add_u32 s{sT0}, s{sT0}, s{sT1}')
e(f's_lshl_b32 s{sT3}, s{sT0}, 1')
e(f's_mul_i32 s{sWQB}, s{sT0}, 12288')
e(f's_mul_i32 s{sT1}, s{sHEAD}, 384')
e(f's_add_u32 s{sWQB}, s{sWQB}, s{sT1}')
e(f's_mul_i32 s{sFB}, s{sT0}, 3072')
e(f's_mul_i32 s{sT1}, s{sHEAD}, 96')
e(f's_add_u32 s{sFB}, s{sFB}, s{sT1}')
e(f'v_mul_u32_u24 v{vT3}, 20, v{vLANE}')
e(f'v_lshlrev_b32 v{vT4}, 1, v{vT0}')
e(f'v_mul_u32_u24 v{vT5}, 12288, v{vT0}')
e(f'v_add_u32 v{vT5}, v{vT5}, v{vT2}')
e(f'v_mul_u32_u24 v{vT6}, 3072, v{vT0}')
e(f'v_add_u32 v{vT6}, v{vT6}, v{vT2}')
e(f'v_mov_b32 v{vT7}, {OOB}')
e(f'v_cmp_gt_u32 vcc, 6, v{vT1}')
nop(1)
e(f'v_cndmask_b32 v{vT6}, v{vT7}, v{vT6}, vcc')
e(f'v_cmp_gt_u32 vcc, 32, v{vLANE}')
nop(1)
e(f'v_cndmask_b32 v{vM}, v{vT7}, v{vT5}, vcc')
e(f'v_cndmask_b32 v{vRA}, v{vT7}, v{vT6}, vcc')
e('s_waitcnt lgkmcnt(0)')
stamp(1)
e(f'buffer_load_dwordx4 {v4(vXS)}, v{vT3}, {srd(sX)}, 0 offen'); vm.issue('x')
e(f'buffer_load_dword v{vXS+4}, v{vT3}, {srd(sX)}, 0 offen offset:16'); vm.issue('x')
for k in range(3):
    e(f'buffer_load_ushort v{vX+k}, v{vT4}, {srd(sX)}, s{sT3} offen offset:{16*k}'); vm.issue('x')
for k in range(3):
    vo = vT5 if k < 2 else vM
    vf = vT6 if k < 2 else vRA
    for j in range(3):
        e(f'buffer_load_dwordx4 {v4(vWQ+20*k+4*j)}, v{vo}, {srd(sWQ)}, s{sWQB} offen offset:{128*j} nt'); vm.issue('wq')
    e(f'buffer_load_dwordx4 {v4(vWQ+20*k+12)}, v{vf}, {srd(sW1)}, s{sFB} offen nt'); vm.issue('wq')
    e(f'buffer_load_dwordx4 {v4(vWQ+20*k+16)}, v{vf}, {srd(sW3)}, s{sFB} offen nt'); vm.issue('wq')
    if k < 2:
        e(f's_add_u32 s{sWQB}, s{sWQB}, {8*12288}')
        e(f's_add_u32 s{sFB}, s{sFB}, {8*3072}')
def kload(G):
    for j in range(3):
        if WINN: vm.window(WINN)
        e(f'buffer_load_dwordx4 {v4(vD+12*G+4*j)}, v{vOFF}, {srd(sK)}, s{sKB} offen offset:{128*j} nt'); vm.issue(f'k{G}')
    adv()
common_scalars()
e('s_barrier')
vm.wait('x')
e(f'v_lshlrev_b32 v{vT0}, 16, v{vXS}')
e(f'v_and_b32 v{vT1}, 0xffff0000, v{vXS}')
e(f'v_add_f32 v{vT3}, v{vT0}, v{vT1}')
for d in range(1, 5):
    e(f'v_lshlrev_b32 v{vT0}, 16, v{vXS+d}')
    e(f'v_and_b32 v{vT1}, 0xffff0000, v{vXS+d}')
    e(f'v_add_f32 v{vT3}, v{vT3}, v{vT0}')
    e(f'v_add_f32 v{vT3}, v{vT3}, v{vT1}')
allreduce64('v_add_f32', vT3, vT4)
e(f'v_mul_f32 v{vT3}, 0x3acccccd, v{vT3}')
e(f'v_mov_b32 v{vT5}, 0')
for d in range(5):
    e(f'v_lshlrev_b32 v{vT0}, 16, v{vXS+d}')
    e(f'v_and_b32 v{vT1}, 0xffff0000, v{vXS+d}')
    e(f'v_sub_f32 v{vT0}, v{vT0}, v{vT3}')
    e(f'v_sub_f32 v{vT1}, v{vT1}, v{vT3}')
    e(f'v_fmac_f32 v{vT5}, v{vT0}, v{vT0}')
    e(f'v_fmac_f32 v{vT5}, v{vT1}, v{vT1}')
allreduce64('v_add_f32', vT5, vT4)
e(f'v_mul_f32 v{vT5}, 0x3acccccd, v{vT5}')
bf16_round(vT3, vT3)
bf16_round(vT5, vT5)
e(f'v_add_f32 v{vT5}, 0x3727c5ac, v{vT5}')
bf16_round(vT5, vT5)
e(f'v_sqrt_f32 v{vT5}, v{vT5}')
nop(0)
bf16_round(vT5, vT5)
e(f'v_rcp_f32 v{vT6}, v{vT5}')
nop(0)
for k in range(3):
    e(f'v_lshlrev_b32 v{vT0}, 16, v{vX+k}')
    e(f'v_sub_f32 v{vT0}, v{vT0}, v{vT3}')
    bf16_round(vT0, vT0)
    e(f'v_mul_f32 v{vT4}, v{vT0}, v{vT6}')
    e(f'v_fma_f32 v{vT0}, -v{vT4}, v{vT5}, v{vT0}')
    e(f'v_fmac_f32 v{vT4}, v{vT0}, v{vT6}')
    e(f'v_cvt_pk_bf16_f32 v{vX+k}, v{vT4}, 0')
for i in range(40): e(f'v_mov_b32 v{vAC+i}, 0')
red_addr()
vm.wait('wq')
for k in range(3):
    e(f'v_lshlrev_b32 v{vT1}, 16, v{vX+k}')
    for j in range(3): axpy(vAC + 8 * j, vWQ + 20 * k + 4 * j, vX + k, vT1)
    axpy(vFA, vWQ + 20 * k + 12, vX + k, vT1)
    axpy(vFA + 8, vWQ + 20 * k + 16, vX + k, vT1)
reduce_r8(vAC, 5)
e(f's_mul_i32 s{sT0}, s{sWAVE}, 768')
e(f'v_add_u32 v{vT2}, s{sT0}, v{vRA}')
for j in range(3):
    e(f'ds_write_b64 v{vT2}, {v2(vAC+8*j)} offset:{L_RED+256*j}')
e(f's_mul_i32 s{sT0}, s{sWAVE}, 384')
e(f'v_add_u32 v{vT2}, s{sT0}, v{vRA}')
e(f'v_and_b32 v{vT1}, 7, v{vLANE}')
e(f'v_cmp_gt_u32 vcc, 6, v{vT1}')
e('s_and_saveexec_b64 s[28:29], vcc')
e(f'ds_write_b64 v{vT2}, {v2(vFA)} offset:{L_FRED}')
e(f'ds_write_b64 v{vT2}, {v2(vFA+8)} offset:{L_FRED+192}')
e('s_mov_b64 exec, s[28:29]')
lds_inc(C1)
stamp(2)
for G in range(16): kload(G)
lds_inc(C10)
lds_spin(C2, 1)
stamp(3)
vQ = 16
vS = 28
e(f'v_and_b32 v{vT0}, 7, v{vLANE}')
e(f'v_lshlrev_b32 v{vT0}, 4, v{vT0}')
for j in range(3):
    e(f'ds_read_b128 {v4(vQ+4*j)}, v{vT0} offset:{L_QBF+128*j}')
get_tag()
for G in range(16):
    vm.wait(f'k{G}')
    e(f'v_mov_b32 v{vS+G}, 0')
    e(f'v_mov_b32 v{vT0}, 0')
    e(f'v_mov_b32 v{vT1}, 0')
    accs = [vS + G, vT0, vT1]
    for d in range(4):
        for j in range(3):
            e(f'v_dot2c_f32_bf16 v{accs[j]}, v{vD+12*G+4*j+d}, v{vQ+4*j+d}')
    nop(2)
    e(f'v_add_f32 v{vT0}, v{vT0}, v{vT1}')
    e(f'v_add_f32 v{vS+G}, v{vS+G}, v{vT0}')
for G in range(16):
    e(f'v_add_f32 v{vS+G}, v{vS+G}, v{vS+G} quad_perm:[1,0,3,2] {DPP}')
for G in range(16):
    e(f'v_add_f32 v{vS+G}, v{vS+G}, v{vS+G} quad_perm:[2,3,0,1] {DPP}')
for G in range(16):
    e(f'v_add_f32 v{vS+G}, v{vS+G}, v{vS+G} row_half_mirror {DPP}')
for G in range(16):
    bf16_round(vS + G, vS + G)
    e(f'v_mul_f32 v{vS+G}, 0x3d93cd3a, v{vS+G}')
    bf16_round(vS + G, vS + G)
stamp(4)
e(f'v_max3_f32 v{vM}, v{vS}, v{vS+1}, v{vS+2}')
for G in range(3, 15, 2): e(f'v_max3_f32 v{vM}, v{vM}, v{vS+G}, v{vS+G+1}')
e(f'v_max_f32 v{vM}, v{vM}, v{vS+15}')
nop(1)
e(f'v_max_f32 v{vM}, v{vM}, v{vM} row_ror:8 {DPP}')
allreduce_rows('v_max_f32', vM, vT1)
e(f'v_mov_b32 v{vT2}, 0')
for G in range(16):
    e(f'v_sub_f32 v{vS+G}, v{vS+G}, v{vM}')
    e(f'v_mul_f32 v{vS+G}, 0x3fb8aa3b, v{vS+G}')
    e(f'v_exp_f32 v{vS+G}, v{vS+G}')
    nop(0)
    e(f'v_add_f32 v{vT2}, v{vT2}, v{vS+G}')
    e(f'v_cvt_pk_bf16_f32 v{vS+G}, v{vS+G}, 0')
e(f'v_lshrrev_b32 v{vT4}, 3, v{vLANE}')
e(f'v_lshlrev_b32 v{vT4}, 6, v{vT4}')
e(f's_lshl_b32 s{sT1}, s{sWAVE}, 9')
e(f'v_add_u32 v{vT4}, s{sT1}, v{vT4}')
e(f'v_and_b32 v{vT1}, 7, v{vLANE}')
e(f'v_cmp_eq_u32 vcc, 0, v{vT1}')
e('s_and_saveexec_b64 s[28:29], vcc')
for i in range(4): e(f'ds_write_b128 v{vT4}, {v4(vS+4*i)} offset:{L_P+16*i}')
e('s_mov_b64 exec, s[28:29]')
e(f's_lshl_b32 s{sT0}, s{sWAVE}, 2')
e(f'v_mov_b32 v{vT3}, s{sT0}')
e('s_waitcnt lgkmcnt(0)')
e(f'v_mov_b32 v{vT1}, 1')
e(f'ds_write_b32 v{vT3}, v{vT1} offset:{C4}')
nop(1)
e(f'v_add_f32 v{vT2}, v{vT2}, v{vT2} row_ror:8 {DPP}')
allreduce_rows('v_add_f32', vT2, vT1)
e(f'ds_write_b32 v{vT3}, v{vM} offset:{L_WMAX}')
e(f'ds_write_b32 v{vT3}, v{vT2} offset:{L_WSUM}')
lds_inc(C3)
e(f's_cmp_eq_u32 s{sWAVE}, 2')
e('s_cbranch_scc1 L_ffn')
e(f's_cmp_lg_u32 s{sWAVE}, 1')
e('s_cbranch_scc1 L_kwo')
lds_spin(C3, 4)
e(f'ds_read_b128 {v4(44)}, v{vT0} offset:{L_WMAX}')
e(f'ds_read_b128 {v4(48)}, v{vT0} offset:{L_WSUM}')
e('s_waitcnt lgkmcnt(0)')
e('v_max3_f32 v52, v44, v45, v46')
e('v_max_f32 v52, v52, v47')
e('v_mov_b32 v53, 0')
for w in range(4):
    e(f'v_sub_f32 v{44+w}, v{44+w}, v52')
    e(f'v_mul_f32 v{44+w}, 0x3fb8aa3b, v{44+w}')
    e(f'v_exp_f32 v{44+w}, v{44+w}')
    nop(0)
    e(f'v_fmac_f32 v53, v{44+w}, v{48+w}')
e(f'v_mov_b32 v54, v{vTG}')
e(f'v_mov_b32 v55, v{vTG+1}')
get_mode()
e('s_mov_b64 exec, 1')
gstore(52, vT0, SL_ML)
e('s_mov_b64 exec, -1')
e('s_branch L_kwo')
lab('L_ffn')
vG = 44
e(f'v_lshrrev_b32 v{vT2}, 3, v{vLANE}')
e(f'v_lshlrev_b32 v{vT2}, 12, v{vT2}')
e(f'v_and_b32 v{vT3}, 7, v{vLANE}')
e(f'v_lshlrev_b32 v{vT4}, 4, v{vT3}')
e(f'v_add_u32 v{vT2}, v{vT2}, v{vT4}')
e(f'v_mov_b32 v{vT1}, {OOB}')
e(f'v_cmp_gt_u32 s[30:31], 6, v{vT3}')
nop(1)
e(f'v_cndmask_b32 v{vT2}, v{vT1}, v{vT2}, s[30:31]')
e(f's_mul_i32 s{sT0}, s{sRQ}, 96')
e(f's_add_u32 s{sT0}, s{sT0}, s{sGRP}')
e(f's_mov_b32 s{sCNT}, 0')
lab('L_pff')
e(f'buffer_load_dwordx4 {v4(vG)}, v{vT2}, {srd(sWS)}, s{sT0} offen offset:{SL_G} sc1')
e(f'buffer_load_dwordx4 {v4(vG+4)}, v{vT2}, {srd(sWS)}, s{sT0} offen offset:{SL_U} sc1')
e('s_waitcnt vmcnt(0)')
tag_check(vT1, vT4, [vG, vG + 4])
poll_tail('L_pff', vT1, 's[30:31]')
for r in (vG, vG + 1, vG + 4, vG + 5):
    nop(1)
    e(f'v_add_f32 v{r}, v{r}, v{r} row_ror:8 {DPP}')
    allreduce_rows('v_add_f32', r, vT1)
for c in range(2):
    bf16_round(vG + c, vG + c)
    bf16_round(vG + 4 + c, vG + 4 + c)
    e(f'v_mul_f32 v{vT1}, 0xbfb8aa3b, v{vG+c}')
    e(f'v_exp_f32 v{vT1}, v{vT1}')
    nop(0)
    e(f'v_add_f32 v{vT1}, 1.0, v{vT1}')
    e(f'v_rcp_f32 v{vT1}, v{vT1}')
    nop(0)
    e(f'v_mul_f32 v{vT1}, v{vG+c}, v{vT1}')
    bf16_round(vT1, vT1)
    e(f'v_mul_f32 v{vT1}, v{vT1}, v{vG+4+c}')
    e(f'v_cvt_pk_bf16_f32 v{vG+8+c}, v{vT1}, 0')
e(f'v_and_b32 v{vT2}, 3, v{vLANE}')
e(f'v_lshlrev_b32 v{vT2}, 6, v{vT2}')
e(f'v_and_b32 v{vT4}, 4, v{vLANE}')
e(f'v_add_u32 v{vT2}, v{vT2}, v{vT4}')
e('s_mov_b64 exec, 0xff')
e(f'ds_write_b32 v{vT2}, v{vG+8} offset:{L_U+24}')
e(f'ds_write_b32 v{vT2}, v{vG+9} offset:{L_U+24+32}')
e('s_mov_b64 exec, -1')
lds_inc(C6)
lab('L_kwo')
if not NODEFER: lds_spin(C9, 4)
wo_setup()
vWO = vD
wo_issue(vm, vWO)
e('s_setprio 3')
stamp(5)
e(f's_cmp_lg_u32 s{sWAVE}, 0')
e('s_cbranch_scc1 L_stagec')
vML = 44
e(f'v_and_b32 v{vT2}, 7, v{vLANE}')
e(f'v_lshlrev_b32 v{vT2}, 12, v{vT2}')
e(f's_mov_b32 s{sCNT}, 0')
lab('L_pml')
e(f'buffer_load_dwordx4 {v4(vML)}, v{vT2}, {srd(sWS)}, s{sGRP} offen offset:{SL_ML} sc1')
e('s_waitcnt vmcnt(0)')
tag_check(vT1, vT4, [vML])
poll_tail('L_pml', vT1)
e(f'v_mov_b32 v{vT1}, v{vML}')
allreduce8('v_max_f32', vT1)
e(f'v_sub_f32 v{vT1}, v{vML}, v{vT1}')
e(f'v_mul_f32 v{vT1}, 0x3fb8aa3b, v{vT1}')
e(f'v_exp_f32 v{vT1}, v{vT1}')
nop(0)
e(f'v_mul_f32 v{vT2}, v{vT1}, v{vML+1}')
allreduce8('v_add_f32', vT2)
e(f'v_rcp_f32 v{vT2}, v{vT2}')
nop(0)
e(f'v_mul_f32 v{vT3}, v{vT1}, v{vT2}')
e(f'v_and_b32 v{vT2}, 1, v{vLANE}')
e(f'v_lshlrev_b32 v{vT2}, 4, v{vT2}')
e(f'v_and_b32 v{vT4}, 6, v{vLANE}')
e(f'v_lshlrev_b32 v{vT4}, 1, v{vT4}')
e(f'v_add_u32 v{vT2}, v{vT2}, v{vT4}')
e(f'ds_write_b32 v{vT2}, v{vT3} offset:{L_COEF}')
lds_inc(C7)
e('s_branch L_stagec')

lab('L_vwave')
vm = VM()
e('s_setprio 1')
vACC = 16
vP = 40
common_scalars()
e('s_waitcnt lgkmcnt(0)')
e(f's_cmp_lg_u32 s{sWAVE}, 7')
e('s_cbranch_scc1 L_notag')
e('s_setprio 3')
e(f'v_mov_b32 v{vT3}, 0')
if NOTAG:
    e(f'v_mov_b32 v{vTG}, 0x1234567')
    e(f'v_mov_b32 v{vTG+1}, 0x7654321')
    e('s_barrier')
    e('s_branch L_tagok')
e('s_cmp_lg_u32 s2, 0')
e('s_cbranch_scc1 L_tagrd')
e('s_or_b32 s37, s37, 0x80000000')
e(f'v_mov_b32 v16, s36')
e(f'v_mov_b32 v17, s37')
e(f'v_mov_b32 v18, 0')
e(f'v_mov_b32 v19, 0')
e('s_mov_b64 exec, 1')
e(f'buffer_atomic_cmpswap_x2 v[16:19], v{vT3}, {srd(sDBG)}, 0 offen sc1')
e('s_mov_b64 exec, -1')
lab('L_tagrd')
e(f'buffer_load_dwordx2 {v2(vTG)}, v{vT3}, {srd(sDBG)}, 0 offen sc1')
e('s_barrier')
e(f's_mov_b32 s{sCNT}, 0')
lab('L_tagl')
e('s_waitcnt vmcnt(0)')
e(f'v_cmp_eq_u32 vcc, 0, v{vTG+1}')
e(f's_add_u32 s{sCNT}, s{sCNT}, 1')
e(f's_cmp_gt_u32 s{sCNT}, {SPIN}')
e('s_cbranch_scc1 L_tagok')
e('s_cbranch_vccz L_tagok')
e(f'buffer_load_dwordx2 {v2(vTG)}, v{vT3}, {srd(sDBG)}, 0 offen sc1')
e('s_branch L_tagl')
lab('L_tagok')
e(f'ds_write_b64 v{vT3}, {v2(vTG)} offset:{L_TAG}')
lds_inc(C1)
e('s_setprio 1')
e('s_branch L_vgo')
lab('L_notag')
e('s_barrier')
lab('L_vgo')
stamp(1)
VPRE = VPRES[0] if VPRES else 2
def vload(G):
    for j in range(3):
        if WINN and G >= VPRE: vm.window(WINN)
        e(f'buffer_load_dwordx4 {v4(vD+12*G+4*j)}, v{vOFF}, {srd(sV)}, s{sKB} offen offset:{128*j} nt'); vm.issue(f'v{G}')
    adv()
for G in range(VPRE): vload(G)
e(f's_cmp_eq_u32 s{sWAVE}, 4')
e('s_cbranch_scc1 L_vrest')
e(f's_cmp_eq_u32 s{sWAVE}, 7')
e('s_cbranch_scc1 L_vrest')
e('s_setprio 3')
lds_spin(C1, 5, sleep=False)
get_tag()
e(f's_cmp_eq_u32 s{sWAVE}, 5')
e('s_cbranch_scc1 L_w5')
def publish_ffn(vTM, mode):
    e(f'v_lshlrev_b32 v{vT2}, 3, v{vLANE}')
    e(f'v_lshlrev_b32 v{vT3}, 4, v{vLANE}')
    for w in range(4):
        e(f'ds_read_b64 {v2(vTM+4+2*w)}, v{vT2} offset:{L_FRED+384*w}')
    e(f'v_mov_b32 v{vTM+2}, v{vTG}')
    e(f'v_mov_b32 v{vTM+3}, v{vTG+1}')
    e('s_waitcnt lgkmcnt(0)')
    for c in range(2):
        e(f'v_add_f32 v{vTM+4+c}, v{vTM+4+c}, v{vTM+6+c}')
        e(f'v_add_f32 v{vTM+8+c}, v{vTM+8+c}, v{vTM+10+c}')
    for c in range(2): e(f'v_add_f32 v{vTM+c}, v{vTM+4+c}, v{vTM+8+c}')
    e(f'v_cmp_gt_u32 vcc, 48, v{vLANE}')
    e('s_and_saveexec_b64 s[28:29], vcc')
    gstore(vTM, vT3, SL_G, mode)
    e('s_mov_b64 exec, s[28:29]')
publish_ffn(16, 'plain')
e('s_branch L_vsvc_done')
lab('L_w5')
def publish_id(mode):
    e(f'v_mov_b32 v44, s{sT2}')
    e(f'v_mov_b32 v45, 0')
    e(f'v_mov_b32 v46, v{vTG}')
    e(f'v_mov_b32 v47, v{vTG+1}')
    e(f'v_mov_b32 v{vT0}, 0')
    e('s_mov_b64 exec, 1')
    gstore(44, vT0, SL_ID, mode)
    e('s_mov_b64 exec, -1')
e(f's_getreg_b32 s{sT2}, hwreg(HW_REG_XCC_ID)')
e(f's_and_b32 s{sT2}, s{sT2}, 15')
publish192(16, SL_Q, 'plain')
publish_id('plain')
e(f's_mov_b32 s{sMODE}, 0')
e(f'v_and_b32 v{vT5}, 7, v{vLANE}')
e(f'v_lshlrev_b32 v{vT5}, 12, v{vT5}')
e(f's_mov_b32 s{sCNT}, 0')
if ALWAYS_SLOW: e('s_branch L_goslow')
lab('L_gp')
e(f'buffer_load_dwordx4 {v4(40)}, v{vT5}, {srd(sWS)}, s{sGRP} offen offset:{SL_ID} sc1')
e('s_waitcnt vmcnt(0)')
tag_check(vT1, vT4, [40])
e(f'v_cmp_ne_u32 vcc, 0, v{vT1}')
e(f's_add_u32 s{sCNT}, s{sCNT}, 1')
e('s_cbranch_vccz L_gp_all')
e(f's_cmp_gt_u32 s{sCNT}, {SPIN}')
e('s_cbranch_scc1 L_gp_done')
e(f's_cmp_lg_u32 s{sCNT}, {NFAST}')
e('s_cbranch_scc1 L_gp')
e(f's_cmp_lg_u32 s{sMODE}, 0')
e('s_cbranch_scc1 L_gp')
lab('L_goslow')
e(f's_mov_b32 s{sMODE}, 1')
if '--diagslow' in sys.argv:
    for _ in range(12): e('s_sleep 127')
publish192(16, SL_Q, 'wt')
publish_id('wt')
publish_ffn(48, 'wt')
e('s_branch L_gp')
lab('L_gp_all')
e(f's_cmp_lg_u32 s{sMODE}, 0')
e('s_cbranch_scc1 L_gp_done')
e(f'v_cmp_ne_u32 vcc, s{sT2}, v40')
e('s_cbranch_vccnz L_goslow')
lab('L_gp_done')
e(f'v_mov_b32 v{vT0}, 0')
e(f'v_mov_b32 v{vT1}, s{sMODE}')
e(f'ds_write_b32 v{vT0}, v{vT1} offset:{L_MODE}')
vQA = 16
vQB = 48
e(f'v_lshlrev_b32 v{vT3}, 4, v{vLANE}')
e(f'v_and_b32 v{vT2}, 31, v{vLANE}')
e(f'v_lshlrev_b32 v{vT2}, 4, v{vT2}')
e(f'v_lshrrev_b32 v{vT4}, 5, v{vLANE}')
e(f'v_lshlrev_b32 v{vT4}, 12, v{vT4}')
e(f'v_add_u32 v{vT2}, v{vT2}, v{vT4}')
for s_ in range(8): e(f's_add_u32 s{sC+s_}, s{sGRP}, {s_*WS_SLOT}')
e(f's_mov_b32 s{sCNT}, 0')
lab('L_gq')
for s_ in range(8):
    e(f'buffer_load_dwordx4 {v4(vQA+4*s_)}, v{vT3}, {srd(sWS)}, s{sC+s_} offen offset:{SL_Q} sc1')
for s_ in range(4):
    e(f'buffer_load_dwordx4 {v4(vQB+4*s_)}, v{vT2}, {srd(sWS)}, s{sC+2*s_} offen offset:{SL_Q+1024} sc1')
e('s_waitcnt vmcnt(0)')
tag_check(vT1, vT4, [vQA + 4 * i for i in range(12)])
poll_tail('L_gq', vT1)
for step in (4, 2, 1):
    for w in range(step):
        for c in range(2):
            e(f'v_add_f32 v{vQA+4*w+c}, v{vQA+4*w+c}, v{vQA+4*(w+step)+c}')
for step in (2, 1):
    for w in range(step):
        for c in range(2):
            e(f'v_add_f32 v{vQB+4*w+c}, v{vQB+4*w+c}, v{vQB+4*(w+step)+c}')
for c in range(2):
    nop(1)
    e(f'v_mov_b32 v{vT1}, v{vQB+c}')
    nop(1)
    e(f'v_permlane32_swap_b32 v{vT1}, v{vQB+c}')
    nop(1)
    e(f'v_add_f32 v{vQB+c}, v{vT1}, v{vQB+c}')
e(f'v_cvt_pk_bf16_f32 v{vQA}, v{vQA}, v{vQA+1}')
e(f'v_cvt_pk_bf16_f32 v{vQB}, v{vQB}, v{vQB+1}')
e(f'v_lshlrev_b32 v{vT4}, 2, v{vLANE}')
e(f'ds_write_b32 v{vT4}, v{vQA} offset:{L_QBF}')
e('s_mov_b32 exec_hi, 0')
e(f'ds_write_b32 v{vT4}, v{vQB} offset:{L_QBF+256}')
e('s_mov_b64 exec, -1')
lds_inc(C2)
if STAMPS: e(f's_memrealtime s[{sST+2}:{sST+3}]')
lab('L_vsvc_done')
e('s_setprio 1')
lab('L_vrest')
for i in range(24): e(f'v_mov_b32 v{vACC+i}, 0')
red_addr()
e(f's_sub_u32 s{sT4}, s{sWAVE}, 4')
e(f's_mul_i32 s{sT0}, s{sT4}, 768')
e(f'v_add_u32 v{vRA}, s{sT0}, v{vRA}')
e(f's_lshl_b32 s{sT3}, s{sT4}, 2')
e(f'v_mov_b32 v{vT7}, s{sT3}')
e(f'v_lshrrev_b32 v{vT2}, 3, v{vLANE}')
e(f'v_lshlrev_b32 v{vT2}, 6, v{vT2}')
e(f's_lshl_b32 s{sT3}, s{sT4}, 9')
e(f'v_add_u32 v{vT2}, s{sT3}, v{vT2}')
e(f'v_mov_b32 v{vT6}, v{vT2}')
wo_setup()
e(f'v_mov_b32 v{vT2}, v{vT6}')
e(f's_cmp_eq_u32 s{sWAVE}, 4')
e(f's_cselect_b32 s{sWOB}, s{sWOB}, {OOB}')
e(f's_cselect_b32 s{sW2B}, s{sW2B}, {OOB}')
if WINN: lds_spin(C10, 4)
VLEAD = 8
for G in range(VPRE, VLEAD): vload(G)
lds_spin(C4, 1, vaddr=vT7)
stamp(3)
for i in range(4): e(f'ds_read_b128 {v4(vP+4*i)}, v{vT2} offset:{L_P+16*i}')
get_tag()
def pv(G):
    vm.wait(f'v{G}')
    e(f'v_lshlrev_b32 v{vT0+(G&1)}, 16, v{vP+G}')
    for j in range(3):
        axpy(vACC + 8 * j, vD + 12 * G + 4 * j, vP + G, vT0 + (G & 1))
done = 0
for G in range(VLEAD, 16):
    vload(G)
    for _ in range(2):
        if done < G - 2:
            pv(done); done += 1
    if G == 12:
        assert done >= 3
        wo_issue(vm, vD)
    if G == 13:
        cmt('scale factor of this wave pair: exp(m_w - M_wg)')
        nop(2)
        lds_spin(C3, 4)
        e(f'ds_read_b128 {v4(56)}, v{vT0} offset:{L_WMAX}')
        e(f'ds_read_b32 v{vM}, v{vT7} offset:{L_WMAX}')
        e('s_waitcnt lgkmcnt(0)')
        e('v_max3_f32 v56, v56, v57, v58')
        e('v_max_f32 v56, v56, v59')
        e(f'v_sub_f32 v{vM}, v{vM}, v56')
        e(f'v_mul_f32 v{vM}, 0x3fb8aa3b, v{vM}')
        e(f'v_exp_f32 v{vM}, v{vM}')
        nop(0)
nop(2)
lds_inc(C9)
stamp(2)
e('s_setprio 3')
while done < 16:
    pv(done); done += 1
stamp(4)
reduce_r8(vACC, 3)
for j in range(3):
    for c in range(2): e(f'v_mul_f32 v{vACC+8*j+c}, v{vM}, v{vACC+8*j+c}')
for j in range(3):
    e(f'ds_write_b64 v{vRA}, {v2(vACC+8*j)} offset:{L_RED+256*j}')
lds_inc(C8)
stamp(5)
e(f's_cmp_eq_u32 s{sWAVE}, 4')
e('s_cbranch_scc1 L_stagec')
e(f's_cmp_eq_u32 s{sWAVE}, 6')
e('s_cbranch_scc1 L_merge')
e(f's_cmp_eq_u32 s{sWAVE}, 7')
e('s_cbranch_scc1 L_final')
lds_spin(C8, 4, sleep=False)
publish192(128, SL_O)
stamp(6)
stamp_out()
lab('L_merge')
vO = 128
vCF = 56
e(f'v_and_b32 v{vT3}, 31, v{vLANE}')
e(f'v_lshlrev_b32 v{vT2}, 4, v{vT3}')
e(f'v_lshrrev_b32 v{vT4}, 5, v{vLANE}')
e(f'v_lshlrev_b32 v{vT5}, 12, v{vT4}')
e(f'v_add_u32 v{vT2}, v{vT2}, v{vT5}')
e(f'v_mov_b32 v{vT1}, {OOB}')
e(f'v_cmp_gt_u32 s[30:31], 24, v{vT3}')
nop(1)
e(f'v_cndmask_b32 v{vT2}, v{vT1}, v{vT2}, s[30:31]')
e(f'v_lshlrev_b32 v{vT5}, 4, v{vT4}')
e(f'v_lshlrev_b32 v{vT3}, 1, v{vT3}')
e(f'v_add_u32 v{vT3}, v{vT3}, v{vT4}')
e(f'v_lshrrev_b32 v{vT4}, 3, v{vT3}')
e(f'v_lshlrev_b32 v{vT4}, 2, v{vT4}')
e(f'v_and_b32 v{vT3}, 7, v{vT3}')
e(f'v_lshlrev_b32 v{vT3}, 5, v{vT3}')
e(f'v_add_u32 v{vT3}, v{vT3}, v{vT4}')
e(f's_mul_i32 s{sT0}, s{sRQ}, 384')
e(f's_add_u32 s{sT0}, s{sT0}, s{sGRP}')
for i in range(4): e(f's_add_u32 s{sC+i}, s{sT0}, {2*i*WS_SLOT}')
e(f's_mov_b32 s{sCNT}, 0')
def po_issue(base):
    for i in range(4):
        e(f'buffer_load_dwordx4 {v4(base+4*i)}, v{vT2}, {srd(sWS)}, s{sC+i} offen offset:{SL_O} sc1')
def ring_poll(name, issue, n, base, mask, use):
    R = RING
    sets = [base + 4 * n * r for r in range(R)]
    for r in range(R):
        issue(sets[r])
        if r < R - 1: e(f's_sleep {SL}')
    lab(name)
    for r in range(R):
        e(f's_waitcnt vmcnt({n*(R-1)})')
        tag_check(vT1, vT4, [sets[r] + 4 * i for i in range(n)])
        e(f'v_cmp_ne_u32 vcc, 0, v{vT1}')
        if mask: e(f's_and_b64 vcc, vcc, {mask}')
        else: nop(0)
        e(f's_cbranch_vccz {name}_u{r}')
        issue(sets[r])
    e(f's_add_u32 s{sCNT}, s{sCNT}, 1')
    e(f's_cmp_le_u32 s{sCNT}, {SPIN}')
    e(f's_cbranch_scc1 {name}')
    e('s_waitcnt vmcnt(0)')
    for r in range(R):
        lab(f'{name}_u{r}')
        use(sets[r])
        if r < R - 1: e(f's_branch {name}_fin')
    lab(f'{name}_fin')
sets = {}
def po_merge(base):
    e(f'v_mul_f32 v{vT6}, v{vCF}, v{base}')
    e(f'v_mul_f32 v{vT7}, v{vCF}, v{base+1}')
    for i in range(1, 4):
        e(f'v_fmac_f32 v{vT6}, v{vCF+i}, v{base+4*i}')
        e(f'v_fmac_f32 v{vT7}, v{vCF+i}, v{base+4*i+1}')
def po_use(base):
    stamp(3)
    lds_spin(C7, 1, sleep=False)
    e(f'ds_read_b128 {v4(vCF)}, v{vT5} offset:{L_COEF}')
    e('s_waitcnt lgkmcnt(0)')
    po_merge(base)
ring_poll('L_po', po_issue, 4, 96, 's[30:31]', po_use)
nop(1)
e(f'v_permlane32_swap_b32 v{vT6}, v{vT7}')
nop(1)
e(f'v_add_f32 v{vT6}, v{vT6}, v{vT7}')
e(f'v_cvt_pk_bf16_f32 v{vT6}, v{vT6}, 0')
e('s_mov_b64 exec, s[30:31]')
e(f'ds_write_b32 v{vT3}, v{vT6} offset:{L_U}')
e('s_waitcnt lgkmcnt(0)')
e('s_barrier')
stamp(6)
stamp_out()
def stagec(label, nb):
    lab(label)
    vA = 16
    vU = 32
    for i in range(8 * nb): e(f'v_mov_b32 v{vA+i}, 0')
    lds_spin(C6, 1)
    e(f'v_lshrrev_b32 v{vT4}, 3, v{vLANE}')
    e(f'v_lshlrev_b32 v{vT4}, 5, v{vT4}')
    e(f'ds_read_b64 {v2(vU+6)}, v{vT4} offset:{L_U+24}')
    e(f'v_bfe_u32 v{vT2}, v{vLANE}, 1, 2')
    e(f'v_lshlrev_b32 v{vT2}, 14, v{vT2}')
    e(f'v_and_b32 v{vT3}, 1, v{vLANE}')
    e(f'v_lshlrev_b32 v{vT3}, 6, v{vT3}')
    e(f'v_add_u32 v{vT2}, v{vT2}, v{vT3}')
    e(f'v_and_b32 v{vT3}, 48, v{vLANE}')
    e(f'v_add_u32 v{vT2}, v{vT2}, v{vT3}')
    e(f's_lshl_b32 s{sT0}, s{sWAVE}, 16')
    e(f's_add_u32 s{sT0}, s{sT0}, s{sYB}')
    e(f's_add_u32 s{sT1}, s{sT0}, 65536')
    e(f'v_and_b32 v{vT3}, 8, v{vLANE}')
    e(f'v_cmp_eq_u32 s[30:31], 0, v{vT3}')
    for b_ in range(nb):
        e(f'v_mov_b32 v{48+4*b_+2}, v{vTG}')
        e(f'v_mov_b32 v{48+4*b_+3}, v{vTG+1}')
    e('s_waitcnt vmcnt(6) lgkmcnt(0)')
    for i in range(6, 8): e(f'v_lshlrev_b32 v{vU+8+i}, 16, v{vU+i}')
    for b_ in range(nb):
        for i in range(6, 8): axpy(vA + 8 * b_, vWO + 32 * b_ + 4 * i, vU + i, vU + 8 + i)
    e('s_waitcnt vmcnt(0)')
    stamp(1)
    e('s_barrier')
    stamp(6)
    e(f'ds_read_b128 {v4(vU)}, v{vT4} offset:{L_U}')
    e(f'ds_read_b64 {v2(vU+4)}, v{vT4} offset:{L_U+16}')
    e('s_waitcnt lgkmcnt(0)')
    for i in range(6): e(f'v_lshlrev_b32 v{vU+8+i}, 16, v{vU+i}')
    for b_ in range(nb):
        for i in range(6): axpy(vA + 8 * b_, vWO + 32 * b_ + 4 * i, vU + i, vU + 8 + i)
    reduce_r8(vA, nb)
    for b_ in range(nb):
        e(f'v_mov_b32 v{48+4*b_}, v{vA+8*b_}')
        e(f'v_mov_b32 v{48+4*b_+1}, v{vA+8*b_+1}')
    e('s_mov_b64 exec, s[30:31]')
    e(f'buffer_store_dwordx4 {v4(48)}, v{vT2}, {srd(sWS)}, s{sT0} offen sc1')
    if nb == 2: e(f'buffer_store_dwordx4 {v4(52)}, v{vT2}, {srd(sWS)}, s{sT1} offen sc1')
    stamp_out()
stagec('L_stagec', 1)
lab('L_final')
e(f's_cmp_ge_u32 s2, {NRED}')
e('s_cbranch_scc1 L_end2')
vY = 128
e(f'v_lshrrev_b32 v{vT0}, 2, v{vLANE}')
e(f'v_lshlrev_b32 v{vT0}, 7, v{vT0}')
e(f'v_and_b32 v{vT2}, 3, v{vLANE}')
e(f'v_lshlrev_b32 v{vT3}, 4, v{vT2}')
e(f'v_add_u32 v{vT0}, v{vT0}, v{vT3}')
e(f's_lshr_b32 s{sT0}, s2, 1')
e(f's_lshl_b32 s{sT0}, s{sT0}, 14')
e(f's_and_b32 s{sT1}, s2, 1')
e(f's_lshl_b32 s{sT1}, s{sT1}, 6')
e(f's_add_u32 s{sT0}, s{sT0}, s{sT1}')
e(f's_add_u32 s{sT0}, s{sT0}, {WS_Y}')
for i in range(1, 4): e(f's_add_u32 s{sC+i}, s{sT0}, {4096*i}')
e(f's_mov_b32 s{sC}, s{sT0}')
e(f'v_lshlrev_b32 v{vT2}, 2, v{vT2}')
e(f'v_lshrrev_b32 v{vT3}, 5, v{vLANE}')
e(f'v_lshlrev_b32 v{vT3}, 1, v{vT3}')
e(f'v_add_u32 v{vT2}, v{vT2}, v{vT3}')
e(f's_lshl_b32 s{sT1}, s2, 4')
e(f'buffer_load_ushort v{vT5}, v{vT2}, {srd(sX)}, s{sT1} offen')
e(f'v_and_b32 v{vT3}, 28, v{vLANE}')
e(f'v_cmp_eq_u32 s[30:31], 0, v{vT3}')
e('s_barrier')
stamp(6)
e(f's_mov_b32 s{sCNT}, 0')
def py_issue(base):
    for i in range(8):
        e(f'buffer_load_dwordx4 {v4(base+4*i)}, v{vT0}, {srd(sWS)}, s{sC+i//2} offen offset:{2048*(i&1)} sc1')
def py_sum(base):
    for step in (4, 2):
        for w in range(step):
            for c in range(2):
                e(f'v_add_f32 v{base+4*w+c}, v{base+4*w+c}, v{base+4*(w+step)+c}')
    for c in range(2): e(f'v_add_f32 v{vYO+c}, v{base+c}, v{base+4+c}')
vYO = 16
def py_use(base):
    stamp(3)
    py_sum(base)
ring_poll('L_py', py_issue, 8, 96, None, py_use)
vY = vYO
nop(1)
e(f'v_permlane32_swap_b32 v{vY}, v{vY+1}')
nop(1)
e(f'v_add_f32 v{vY}, v{vY}, v{vY+1}')
for dpp in ('row_ror:8', 'row_ror:4'):
    nop(1)
    e(f'v_add_f32 v{vY}, v{vY}, v{vY} {dpp} {DPP}')
nop(1)
e(f'v_mov_b32 v{vY+1}, v{vY}')
nop(1)
e(f'v_permlane16_swap_b32 v{vY+1}, v{vY}')
nop(1)
e(f'v_add_f32 v{vY}, v{vY}, v{vY+1}')
e(f'v_lshlrev_b32 v{vT5}, 16, v{vT5}')
e(f'v_add_f32 v{vY}, v{vT5}, v{vY}')
e(f'v_cvt_pk_bf16_f32 v{vY}, v{vY}, v{vY}')
if THR:
    e('s_memrealtime s[96:97]')
    e('s_waitcnt lgkmcnt(0)')
    e('s_sub_u32 s96, s96, s98')
    e(f's_cmp_gt_u32 s96, {THR[0]}')
    e('s_cselect_b32 s96, 0x7fc07fc0, 0')
    e(f'v_or_b32 v{vY}, s96, v{vY}')
e('s_mov_b64 exec, s[30:31]')
e(f'buffer_store_short v{vY}, v{vT2}, {srd(sOUT)}, s{sT1} offen')
lab('L_end2')
if STAMPS:
    e('s_mov_b64 exec, -1')
    lab('L_stamp_out')
    e(f's_memrealtime s[{sST+14}:{sST+15}]')
    e('s_waitcnt lgkmcnt(0)')
    for i in range(8): e(f'v_mov_b32 v{240+i}, s{sST+2*i}')
    e(f's_lshl_b32 s{sT0}, s2, 3')
    e(f's_add_u32 s{sT0}, s{sT0}, s{sWAVE}')
    e(f's_lshl_b32 s{sT0}, s{sT0}, 5')
    e(f's_add_u32 s{sT0}, s{sT0}, {WS_STAMP}')
    e(f'v_mov_b32 v{vT0}, 0')
    e('s_mov_b64 exec, 1')
    e(f'buffer_store_dwordx4 {v4(240)}, v{vT0}, {srd(sWS)}, s{sT0} offen')
    e(f'buffer_store_dwordx4 {v4(244)}, v{vT0}, {srd(sWS)}, s{sT0} offen offset:16')
lab('L_end')
e('s_endpgm')
L.append('.section .rodata,"a"')
L.append('.p2align 6')
L.append(f'.amdhsa_kernel {NAME}')
L.append('  .amdhsa_next_free_vgpr 256')
L.append('  .amdhsa_next_free_sgpr 102')
L.append('  .amdhsa_accum_offset 256')
L.append('  .amdhsa_group_segment_fixed_size 0')
L.append('  .amdhsa_kernarg_size 96')
L.append('  .amdhsa_user_sgpr_count 2')
L.append('  .amdhsa_user_sgpr_kernarg_segment_ptr 1')
L.append('  .amdhsa_system_sgpr_workgroup_id_x 1')
L.append('.end_amdhsa_kernel')
open(sys.argv[1], 'w').write('\n'.join(L) + '\n')
```

```python
import sys, copy
STAMPS = '--stamps' in sys.argv
NODEFER = '--nodefer' in sys.argv
THR = [int(a.split('=')[1]) for a in sys.argv if a.startswith('--thr=')]
NAME = 'parallel_sum__sliding_block_cached__glu_gated_swiglu__decode_kernel'

L = []
def e(s): L.append('    ' + s)
def lab(s): L.append(s + ':')
def cmt(s): L.append('    ; ' + s)

HEAD_STRIDE = 32768 * 384
WIN = 28672 * 384
WS_SLOT = 4096
SL_Q, SL_O, SL_G, SL_U, SL_ML, SL_ID = 0, 1536, 3072, 3456, 3840, 3968
NFAST = 4
ALWAYS_SLOW = '--slow' in sys.argv
WS_Y = 256 * WS_SLOT
WS_Y_BYTES = 40 * 16384
WS_USED = WS_Y + WS_Y_BYTES
WS_STAMP = 2 << 20
OOB = 0x40000000
SPIN = 0x4000
RINGS = [int(a.split('=')[1]) for a in sys.argv if a.startswith('--ring=')]
RING = RINGS[0] if RINGS else 1
SLS = [int(a.split('=')[1]) for a in sys.argv if a.startswith('--sl=')]
SL = SLS[0] if SLS else 6
DUP = '--dup' in sys.argv
NOPIPE = '--nopipe' in sys.argv
WINS = [int(a.split('=')[1]) for a in sys.argv if a.startswith('--win=')]
WINN = WINS[0] if WINS else 16
VPRES = [int(a.split('=')[1]) for a in sys.argv if a.startswith('--vpre=')]
NOTAG = '--notag' in sys.argv
NOQ = '--noq' in sys.argv
NRED = 80

sX, sK, sV, sWQ, sWO, sW1, sW3, sW2, sOUT, sDBG, sWS = [40 + 4 * i for i in range(11)]
def srd(b): return f's[{b}:{b+3}]'
sHEAD, sSPLIT, sWAVE = 3, 4, 5
sT0, sT1, sT2, sT3 = 6, 7, 8, 9
sKB = 10
sWQB = 11
sSLOT = 12
sGRP = 13
sWOB = 14
sW2B = 15
sCNT = 16
sFB = 17
sT4 = 18
sT5 = 19
sC = 20
sRQ, sCH = 32, 33
sYB = 34
sKE = 39
sMODE = 35
sST = 84

L_RED = 0
L_FRED = 3072
L_QBF = 4608
L_P = 5120
L_WMAX = 7168
L_WSUM = 7184
L_CNT = 7200
C1, C2, C3, C6, C7, C8, C9, C10 = [L_CNT + 4 * i for i in range(8)]
C4 = L_CNT + 32
L_COEF = 7264
L_TAG = 7296
L_MODE = 7304
L_U = 7312 + 112
LDS_BYTES = 7680

vTID = 0
vOFF = 1
vT0, vT1, vT2, vT3 = 2, 3, 4, 5
vLANE = 6
vRA = 7
vM = 8
vT4, vT5, vT6, vT7 = 9, 10, 11, 12
vTG = 14
vX = 60
vD = 64

class VM:
    def __init__(self): self.q = []
    def issue(self, tag): self.q.append(tag)
    def window(self, w):
        e(f's_waitcnt vmcnt({w-1})')
        if len(self.q) > w - 1: self.q = self.q[len(self.q) - (w - 1):] if w > 1 else []
    def wait(self, tag):
        if tag not in self.q: return
        idx = max(i for i, t in enumerate(self.q) if t == tag)
        n = len(self.q) - 1 - idx
        assert n <= 63, n
        e(f's_waitcnt vmcnt({n})')
        self.q = self.q[idx + 1:]

def stamp(i):
    if STAMPS: e(f's_memrealtime s[{sST+2*i}:{sST+2*i+1}]')
def stamp_out():
    if STAMPS:
        e('s_mov_b64 exec, -1')
        e('s_branch L_stamp_out')
    else:
        e('s_endpgm')
def nop(n): e(f's_nop {n}')
def v4(b): return f'v[{b}:{b+3}]'
def v2(b): return f'v[{b}:{b+1}]'
DPP = 'row_mask:0xf bank_mask:0xf'

def bf16_round(dst, src):
    e(f'v_cvt_pk_bf16_f32 v{dst}, v{src}, v{src}')
    e(f'v_and_b32 v{dst}, 0xffff0000, v{dst}')

def allreduce_rows(op, v, tmp):
    nop(1)
    e(f'v_mov_b32 v{tmp}, v{v}')
    nop(1)
    e(f'v_permlane16_swap_b32 v{tmp}, v{v}')
    nop(1)
    e(f'{op} v{v}, v{tmp}, v{v}')
    nop(1)
    e(f'v_mov_b32 v{tmp}, v{v}')
    nop(1)
    e(f'v_permlane32_swap_b32 v{tmp}, v{v}')
    nop(1)
    e(f'{op} v{v}, v{tmp}, v{v}')

def allreduce8(op, v):
    nop(1)
    e(f'{op} v{v}, v{v}, v{v} quad_perm:[1,0,3,2] {DPP}')
    nop(1)
    e(f'{op} v{v}, v{v}, v{v} quad_perm:[2,3,0,1] {DPP}')
    nop(1)
    e(f'{op} v{v}, v{v}, v{v} row_half_mirror {DPP}')

def allreduce64(op, v, tmp):
    allreduce8(op, v)
    nop(1)
    e(f'{op} v{v}, v{v}, v{v} row_mirror {DPP}')
    allreduce_rows(op, v, tmp)

def reduce_r8(acc, nj):
    nop(2)
    for j in range(nj):
        for ee in range(4): e(f'v_permlane32_swap_b32 v{acc+8*j+ee}, v{acc+8*j+ee+4}')
    nop(1)
    for j in range(nj):
        for ee in range(4): e(f'v_add_f32 v{acc+8*j+ee}, v{acc+8*j+ee}, v{acc+8*j+ee+4}')
    nop(1)
    for j in range(nj):
        for ee in range(2): e(f'v_permlane16_swap_b32 v{acc+8*j+ee}, v{acc+8*j+ee+2}')
    nop(1)
    for j in range(nj):
        for ee in range(2): e(f'v_add_f32 v{acc+8*j+ee}, v{acc+8*j+ee}, v{acc+8*j+ee+2}')
    nop(1)
    for j in range(nj):
        for ee in range(2): e(f'v_add_f32 v{acc+8*j+ee}, v{acc+8*j+ee}, v{acc+8*j+ee} row_ror:8 {DPP}')

def axpy(acc, data, lo, hi):
    for d in range(4):
        e(f'v_dot2c_f32_bf16 v{acc+2*d}, v{data+d}, v{lo}')
        e(f'v_dot2c_f32_bf16 v{acc+2*d+1}, v{data+d}, v{hi}')

uid = [0]
def lds_spin(addr, target, sleep=True, vaddr=None):
    uid[0] += 1
    n = uid[0]
    if vaddr is None:
        e(f'v_mov_b32 v{vT0}, 0'); vaddr = vT0
    e(f's_mov_b32 s{sCNT}, 0')
    lab(f'L_sp{n}')
    e(f'ds_read_b32 v{vT1}, v{vaddr} offset:{addr}')
    e('s_waitcnt lgkmcnt(0)')
    e(f'v_readfirstlane_b32 s{sT5}, v{vT1}')
    e(f's_add_u32 s{sCNT}, s{sCNT}, 1')
    e(f's_cmp_ge_u32 s{sT5}, {target}')
    e(f's_cbranch_scc1 L_spd{n}')
    e(f's_cmp_gt_u32 s{sCNT}, {SPIN*16}')
    e(f's_cbranch_scc1 L_spd{n}')
    if sleep: e('s_sleep 1')
    e(f's_branch L_sp{n}')
    lab(f'L_spd{n}')

def lds_inc(addr):
    e('s_waitcnt lgkmcnt(0)')
    e(f'v_mov_b32 v{vT0}, 0')
    e(f'v_mov_b32 v{vT1}, 1')
    e('s_mov_b64 exec, 1')
    e(f'ds_add_u32 v{vT0}, v{vT1} offset:{addr}')
    e('s_mov_b64 exec, -1')

def get_tag():
    e(f'v_mov_b32 v{vT0}, 0')
    e(f'ds_read_b64 {v2(vTG)}, v{vT0} offset:{L_TAG}')
    e('s_waitcnt lgkmcnt(0)')

def tag_check(dst, tmp, grans):
    first = True
    for g in grans:
        if first:
            e(f'v_xor_b32 v{dst}, v{g+2}, v{vTG}')
            e(f'v_xor_b32 v{tmp}, v{g+3}, v{vTG+1}')
            e(f'v_or_b32 v{dst}, v{dst}, v{tmp}')
            first = False
        else:
            e(f'v_xor_b32 v{g+2}, v{g+2}, v{vTG}')
            e(f'v_xor_b32 v{g+3}, v{g+3}, v{vTG+1}')
            e(f'v_or3_b32 v{dst}, v{dst}, v{g+2}, v{g+3}')

def poll_tail(name, chk, mask=None):
    e(f'v_cmp_ne_u32 vcc, 0, v{chk}')
    e(f's_add_u32 s{sCNT}, s{sCNT}, 1')
    if mask: e(f's_and_b64 vcc, vcc, {mask}')
    e(f's_cmp_gt_u32 s{sCNT}, {SPIN}')
    e(f's_cbranch_scc1 {name}_done')
    e(f's_cbranch_vccnz {name}')
    lab(f'{name}_done')

def red_addr():
    e(f'v_and_b32 v{vRA}, 7, v{vLANE}')
    e(f'v_lshlrev_b32 v{vRA}, 5, v{vRA}')
    e(f'v_lshrrev_b32 v{vT6}, 5, v{vLANE}')
    e(f'v_lshlrev_b32 v{vT6}, 4, v{vT6}')
    e(f'v_add_u32 v{vRA}, v{vRA}, v{vT6}')
    e(f'v_bfe_u32 v{vT6}, v{vLANE}, 4, 1')
    e(f'v_lshlrev_b32 v{vT6}, 3, v{vT6}')
    e(f'v_add_u32 v{vRA}, v{vRA}, v{vT6}')

def wo_setup():
    e(f'v_lshrrev_b32 v{vT0}, 3, v{vLANE}')
    e(f'v_and_b32 v{vT1}, 7, v{vLANE}')
    e(f'v_lshlrev_b32 v{vT1}, 4, v{vT1}')
    e(f'v_mul_u32_u24 v{vT4}, 1280, v{vT0}')
    e(f'v_add_u32 v{vT4}, v{vT4}, v{vT1}')
    e(f'v_mov_b32 v{vT2}, {OOB}')
    e(f'v_cmp_gt_u32 vcc, 32, v{vLANE}')
    nop(1)
    e(f'v_cndmask_b32 v{vT5}, v{vT2}, v{vT4}, vcc')
    e(f's_mul_i32 s{sT0}, s{sCH}, 640')
    e(f's_lshl_b32 s{sT1}, s{sWAVE}, 7')
    e(f's_add_u32 s{sT0}, s{sT0}, s{sT1}')
    e(f's_lshl_b32 s{sT1}, s{sHEAD}, 2')
    e(f's_add_u32 s{sT1}, s{sT1}, s{sRQ}')
    e(f's_mul_i32 s{sWOB}, s{sT1}, {48*1280}')
    e(f's_add_u32 s{sWOB}, s{sWOB}, s{sT0}')
    e(f's_mul_i32 s{sW2B}, s{sT1}, {12*1280}')
    e(f's_add_u32 s{sW2B}, s{sW2B}, s{sT0}')

def wo_issue(vm, base):
    e(f'buffer_load_dwordx4 {v4(base+24)}, v{vT4}, {srd(sW2)}, s{sW2B} offen nt'); vm.issue('wo')
    e(f's_add_u32 s{sW2B}, s{sW2B}, {8*1280}')
    e(f'buffer_load_dwordx4 {v4(base+28)}, v{vT5}, {srd(sW2)}, s{sW2B} offen nt'); vm.issue('wo')
    for i in range(6):
        e(f'buffer_load_dwordx4 {v4(base+4*i)}, v{vT4}, {srd(sWO)}, s{sWOB} offen nt'); vm.issue('wo')
        if i < 5: e(f's_add_u32 s{sWOB}, s{sWOB}, {8*1280}')

def adv():
    e(f's_add_u32 s{sKB}, s{sKB}, 3072')
    e(f's_sub_u32 s{sT5}, s{sKB}, {16*3072}')
    e(f's_cmp_ge_u32 s{sKB}, s{sKE}')
    e(f's_cselect_b32 s{sKB}, s{sT5}, s{sKB}')

sid = [0]
def gstore(data, vaddr, off, mode=None):
    base = f'buffer_store_dwordx4 {v4(data)}, v{vaddr}, {srd(sWS)}, s{sSLOT} offen offset:{off}'
    if mode == 'plain': e(base); return
    if mode == 'wt': e(base + ' sc1'); return
    sid[0] += 1
    n = sid[0]
    e(f's_cmp_eq_u32 s{sMODE}, 0')
    e(f's_cbranch_scc1 L_gs{n}')
    e(base + ' sc1')
    e(f's_branch L_gsd{n}')
    lab(f'L_gs{n}')
    e(base)
    lab(f'L_gsd{n}')

def get_mode():
    e(f'v_mov_b32 v{vT0}, 0')
    e(f'ds_read_b32 v{vT1}, v{vT0} offset:{L_MODE}')
    e('s_waitcnt lgkmcnt(0)')
    e(f'v_readfirstlane_b32 s{sMODE}, v{vT1}')

def publish192(base, slot_off, mode=None):
    e(f'v_lshlrev_b32 v{vT2}, 3, v{vLANE}')
    e(f'v_lshlrev_b32 v{vT3}, 4, v{vLANE}')
    for w in range(4):
        e(f'ds_read_b64 {v2(base+8+2*w)}, v{vT2} offset:{L_RED+768*w}')
    for w in range(4):
        e(f'ds_read_b64 {v2(base+16+2*w)}, v{vT2} offset:{L_RED+768*w+512}')
    e(f'v_mov_b32 v{base+2}, v{vTG}')
    e(f'v_mov_b32 v{base+3}, v{vTG+1}')
    e(f'v_mov_b32 v{base+6}, v{vTG}')
    e(f'v_mov_b32 v{base+7}, v{vTG+1}')
    e('s_waitcnt lgkmcnt(4)')
    for c in range(2):
        e(f'v_add_f32 v{base+8+c}, v{base+8+c}, v{base+10+c}')
        e(f'v_add_f32 v{base+12+c}, v{base+12+c}, v{base+14+c}')
    for c in range(2): e(f'v_add_f32 v{base+c}, v{base+8+c}, v{base+12+c}')
    gstore(base, vT3, slot_off, mode)
    e('s_waitcnt lgkmcnt(0)')
    for c in range(2):
        e(f'v_add_f32 v{base+16+c}, v{base+16+c}, v{base+18+c}')
        e(f'v_add_f32 v{base+20+c}, v{base+20+c}, v{base+22+c}')
    for c in range(2): e(f'v_add_f32 v{base+4+c}, v{base+16+c}, v{base+20+c}')
    e('s_mov_b32 exec_hi, 0')
    gstore(base + 4, vT3, slot_off + 1024, mode)
    e('s_mov_b64 exec, -1')

hdr = open('parallel_sum__sliding_block_cached__glu_gated_swiglu__decode.s.ref').read().split('\n')
for line in hdr:
    if line.startswith('; @launch'):
        L.append(f'; @launch grid=(256,1,1) block=(512,1,1) lds={LDS_BYTES}')
    elif line.startswith(';'):
        L.append(line)
    else:
        break
L.append('.amdgcn_target "amdgcn-amd-amdhsa--gfx950"')
L.append('.text')
L.append(f'.globl {NAME}')
L.append('.p2align 8')
L.append(f'.type {NAME},@function')
lab(NAME)
stamp(0)
if THR: e('s_memrealtime s[98:99]')
e('s_cmp_ge_u32 s2, 256')
e('s_cbranch_scc1 L_end')
for (sr, off) in [(sX, 0), (sWQ, 24), (sDBG, 80), (sV, 16), (sW1, 48), (sW3, 56), (sK, 8), (sWS, 88), (sWO, 32), (sW2, 64), (sOUT, 72)]:
    e(f's_load_dwordx2 s[{sr}:{sr+1}], s[0:1], {off}')
e('s_memrealtime s[36:37]')
e(f'v_lshrrev_b32 v{vT0}, 6, v0')
e(f'v_and_b32 v{vLANE}, 63, v0')
e(f'v_readfirstlane_b32 s{sWAVE}, v{vT0}')
e(f'v_mov_b32 v{vT3}, 0')
e(f'v_and_b32 v{vT4}, 15, v0')
e(f'v_lshlrev_b32 v{vT4}, 2, v{vT4}')
e(f'ds_write_b32 v{vT4}, v{vT3} offset:{L_CNT}')
for (sr, nb) in [(sX, 1280), (sWQ, 7864320), (sK, 402653184), (sWS, (WS_STAMP + 65536*4) if STAMPS else WS_USED), (sV, 402653184), (sW1, 1966080),
                 (sW3, 1966080), (sDBG, 256), (sWO, 7864320), (sW2, 1966080), (sOUT, 1280)]:
    e(f's_mov_b32 s{sr+2}, {nb}')
    e(f's_mov_b32 s{sr+3}, 0x00020000')
e(f's_and_b32 s{sHEAD}, s2, 7')
e(f's_lshr_b32 s{sSPLIT}, s2, 3')
e(f's_and_b32 s{sT0}, s{sSPLIT}, 3')
e(f's_lshl_b32 s{sHEAD}, s{sHEAD}, 2')
e(f's_add_u32 s{sHEAD}, s{sHEAD}, s{sT0}')
e(f's_lshr_b32 s{sSPLIT}, s{sSPLIT}, 2')
e(f'v_lshrrev_b32 v{vT0}, 3, v{vLANE}')
e(f'v_and_b32 v{vT1}, 7, v{vLANE}')
e(f'v_lshlrev_b32 v{vT2}, 4, v{vT1}')
e(f'v_mul_u32_u24 v{vOFF}, 384, v{vT0}')
e(f'v_add_u32 v{vOFF}, v{vOFF}, v{vT2}')
e(f's_mul_i32 s{sKB}, s{sHEAD}, {HEAD_STRIDE}')
e(f's_mul_i32 s{sT0}, s{sSPLIT}, {512*384}')
e(f's_add_u32 s{sKB}, s{sKB}, s{sT0}')
e(f's_and_b32 s{sT1}, s{sWAVE}, 3')
e(f's_mul_i32 s{sT0}, s{sT1}, {128*384}')
e(f's_add_u32 s{sKB}, s{sKB}, s{sT0}')
e(f's_add_u32 s{sKB}, s{sKB}, {WIN}')
e(f's_lshr_b32 s{sT0}, s2, 4')
e(f's_xor_b32 s{sT0}, s{sT0}, s2')
e(f's_lshl_b32 s{sT1}, s{sT1}, 2')
e(f's_xor_b32 s{sT0}, s{sT0}, s{sT1}')
e(f's_and_b32 s{sT0}, s{sT0}, 15')
e(f's_add_u32 s{sKE}, s{sKB}, {16*3072}')
e(f's_mul_i32 s{sT0}, s{sT0}, 3072')
e(f's_add_u32 s{sKB}, s{sKB}, s{sT0}')
e(f's_cmp_ge_u32 s{sWAVE}, 4')
e('s_cbranch_scc1 L_vwave')

def common_scalars():
    e(f's_lshl_b32 s{sGRP}, s{sHEAD}, 15')
    e(f's_lshl_b32 s{sT0}, s{sSPLIT}, 12')
    e(f's_add_u32 s{sSLOT}, s{sGRP}, s{sT0}')
    e(f's_lshr_b32 s{sRQ}, s{sSPLIT}, 1')
    e(f's_and_b32 s{sCH}, s{sSPLIT}, 1')
    e(f's_mul_i32 s{sYB}, s{sCH}, {20*16384}')
    e(f's_lshl_b32 s{sT0}, s{sHEAD}, 9')
    e(f's_add_u32 s{sYB}, s{sYB}, s{sT0}')
    e(f's_lshl_b32 s{sT0}, s{sRQ}, 7')
    e(f's_add_u32 s{sYB}, s{sYB}, s{sT0}')
    e(f's_add_u32 s{sYB}, s{sYB}, {WS_Y}')

vm = VM()
e('s_setprio 2')
vWQ = vD + 12 * 11
vAC = vD + 12 * 7
vFA = vAC + 24
vXS = 16
e(f's_mul_i32 s{sT0}, s{sSPLIT}, 80')
e(f's_mul_i32 s{sT1}, s{sWAVE}, 20')
e(f's_add_u32 s{sT0}, s{sT0}, s{sT1}')
e(f's_lshl_b32 s{sT3}, s{sT0}, 1')
e(f's_mul_i32 s{sWQB}, s{sT0}, 12288')
e(f's_mul_i32 s{sT1}, s{sHEAD}, 384')
e(f's_add_u32 s{sWQB}, s{sWQB}, s{sT1}')
e(f's_mul_i32 s{sFB}, s{sT0}, 3072')
e(f's_mul_i32 s{sT1}, s{sHEAD}, 96')
e(f's_add_u32 s{sFB}, s{sFB}, s{sT1}')
e(f'v_mul_u32_u24 v{vT3}, 20, v{vLANE}')
e(f'v_lshlrev_b32 v{vT4}, 1, v{vT0}')
e(f'v_mul_u32_u24 v{vT5}, 12288, v{vT0}')
e(f'v_add_u32 v{vT5}, v{vT5}, v{vT2}')
e(f'v_mul_u32_u24 v{vT6}, 3072, v{vT0}')
e(f'v_add_u32 v{vT6}, v{vT6}, v{vT2}')
e(f'v_mov_b32 v{vT7}, {OOB}')
e(f'v_cmp_gt_u32 vcc, 6, v{vT1}')
nop(1)
e(f'v_cndmask_b32 v{vT6}, v{vT7}, v{vT6}, vcc')
e(f'v_cmp_gt_u32 vcc, 32, v{vLANE}')
nop(1)
e(f'v_cndmask_b32 v{vM}, v{vT7}, v{vT5}, vcc')
e(f'v_cndmask_b32 v{vRA}, v{vT7}, v{vT6}, vcc')
e('s_waitcnt lgkmcnt(0)')
stamp(1)
e(f'buffer_load_dwordx4 {v4(vXS)}, v{vT3}, {srd(sX)}, 0 offen'); vm.issue('x')
e(f'buffer_load_dword v{vXS+4}, v{vT3}, {srd(sX)}, 0 offen offset:16'); vm.issue('x')
for k in range(3):
    e(f'buffer_load_ushort v{vX+k}, v{vT4}, {srd(sX)}, s{sT3} offen offset:{16*k}'); vm.issue('x')
for k in range(3):
    vo = vT5 if k < 2 else vM
    vf = vT6 if k < 2 else vRA
    for j in range(3):
        e(f'buffer_load_dwordx4 {v4(vWQ+20*k+4*j)}, v{vo}, {srd(sWQ)}, s{sWQB} offen offset:{128*j} nt'); vm.issue('wq')
    e(f'buffer_load_dwordx4 {v4(vWQ+20*k+12)}, v{vf}, {srd(sW1)}, s{sFB} offen nt'); vm.issue('wq')
    e(f'buffer_load_dwordx4 {v4(vWQ+20*k+16)}, v{vf}, {srd(sW3)}, s{sFB} offen nt'); vm.issue('wq')
    if k < 2:
        e(f's_add_u32 s{sWQB}, s{sWQB}, {8*12288}')
        e(f's_add_u32 s{sFB}, s{sFB}, {8*3072}')
def kload(G):
    for j in range(3):
        if WINN: vm.window(WINN)
        e(f'buffer_load_dwordx4 {v4(vD+12*G+4*j)}, v{vOFF}, {srd(sK)}, s{sKB} offen offset:{128*j} nt'); vm.issue(f'k{G}')
    adv()
common_scalars()
e('s_barrier')
vm.wait('x')
e(f'v_lshlrev_b32 v{vT0}, 16, v{vXS}')
e(f'v_and_b32 v{vT1}, 0xffff0000, v{vXS}')
e(f'v_add_f32 v{vT3}, v{vT0}, v{vT1}')
for d in range(1, 5):
    e(f'v_lshlrev_b32 v{vT0}, 16, v{vXS+d}')
    e(f'v_and_b32 v{vT1}, 0xffff0000, v{vXS+d}')
    e(f'v_add_f32 v{vT3}, v{vT3}, v{vT0}')
    e(f'v_add_f32 v{vT3}, v{vT3}, v{vT1}')
allreduce64('v_add_f32', vT3, vT4)
e(f'v_mul_f32 v{vT3}, 0x3acccccd, v{vT3}')
e(f'v_mov_b32 v{vT5}, 0')
for d in range(5):
    e(f'v_lshlrev_b32 v{vT0}, 16, v{vXS+d}')
    e(f'v_and_b32 v{vT1}, 0xffff0000, v{vXS+d}')
    e(f'v_sub_f32 v{vT0}, v{vT0}, v{vT3}')
    e(f'v_sub_f32 v{vT1}, v{vT1}, v{vT3}')
    e(f'v_fmac_f32 v{vT5}, v{vT0}, v{vT0}')
    e(f'v_fmac_f32 v{vT5}, v{vT1}, v{vT1}')
allreduce64('v_add_f32', vT5, vT4)
e(f'v_mul_f32 v{vT5}, 0x3acccccd, v{vT5}')
bf16_round(vT3, vT3)
bf16_round(vT5, vT5)
e(f'v_add_f32 v{vT5}, 0x3727c5ac, v{vT5}')
bf16_round(vT5, vT5)
e(f'v_sqrt_f32 v{vT5}, v{vT5}')
nop(0)
bf16_round(vT5, vT5)
e(f'v_rcp_f32 v{vT6}, v{vT5}')
nop(0)
for k in range(3):
    e(f'v_lshlrev_b32 v{vT0}, 16, v{vX+k}')
    e(f'v_sub_f32 v{vT0}, v{vT0}, v{vT3}')
    bf16_round(vT0, vT0)
    e(f'v_mul_f32 v{vT4}, v{vT0}, v{vT6}')
    e(f'v_fma_f32 v{vT0}, -v{vT4}, v{vT5}, v{vT0}')
    e(f'v_fmac_f32 v{vT4}, v{vT0}, v{vT6}')
    e(f'v_cvt_pk_bf16_f32 v{vX+k}, v{vT4}, 0')
for i in range(40): e(f'v_mov_b32 v{vAC+i}, 0')
red_addr()
vm.wait('wq')
for k in range(3):
    e(f'v_lshlrev_b32 v{vT1}, 16, v{vX+k}')
    for j in range(3): axpy(vAC + 8 * j, vWQ + 20 * k + 4 * j, vX + k, vT1)
    axpy(vFA, vWQ + 20 * k + 12, vX + k, vT1)
    axpy(vFA + 8, vWQ + 20 * k + 16, vX + k, vT1)
reduce_r8(vAC, 5)
e(f's_mul_i32 s{sT0}, s{sWAVE}, 768')
e(f'v_add_u32 v{vT2}, s{sT0}, v{vRA}')
for j in range(3):
    e(f'ds_write_b64 v{vT2}, {v2(vAC+8*j)} offset:{L_RED+256*j}')
e(f's_mul_i32 s{sT0}, s{sWAVE}, 384')
e(f'v_add_u32 v{vT2}, s{sT0}, v{vRA}')
e(f'v_and_b32 v{vT1}, 7, v{vLANE}')
e(f'v_cmp_gt_u32 vcc, 6, v{vT1}')
e('s_and_saveexec_b64 s[28:29], vcc')
e(f'ds_write_b64 v{vT2}, {v2(vFA)} offset:{L_FRED}')
e(f'ds_write_b64 v{vT2}, {v2(vFA+8)} offset:{L_FRED+192}')
e('s_mov_b64 exec, s[28:29]')
lds_inc(C1)
stamp(2)
for G in range(16): kload(G)
lds_inc(C10)
lds_spin(C2, 1)
stamp(3)
vQ = 16
vS = 28
e(f'v_and_b32 v{vT0}, 7, v{vLANE}')
e(f'v_lshlrev_b32 v{vT0}, 4, v{vT0}')
for j in range(3):
    e(f'ds_read_b128 {v4(vQ+4*j)}, v{vT0} offset:{L_QBF+128*j}')
get_tag()
for G in range(16):
    vm.wait(f'k{G}')
    e(f'v_mov_b32 v{vS+G}, 0')
    e(f'v_mov_b32 v{vT0}, 0')
    e(f'v_mov_b32 v{vT1}, 0')
    accs = [vS + G, vT0, vT1]
    for d in range(4):
        for j in range(3):
            e(f'v_dot2c_f32_bf16 v{accs[j]}, v{vD+12*G+4*j+d}, v{vQ+4*j+d}')
    nop(2)
    e(f'v_add_f32 v{vT0}, v{vT0}, v{vT1}')
    e(f'v_add_f32 v{vS+G}, v{vS+G}, v{vT0}')
for G in range(16):
    e(f'v_add_f32 v{vS+G}, v{vS+G}, v{vS+G} quad_perm:[1,0,3,2] {DPP}')
for G in range(16):
    e(f'v_add_f32 v{vS+G}, v{vS+G}, v{vS+G} quad_perm:[2,3,0,1] {DPP}')
for G in range(16):
    e(f'v_add_f32 v{vS+G}, v{vS+G}, v{vS+G} row_half_mirror {DPP}')
for G in range(16):
    bf16_round(vS + G, vS + G)
    e(f'v_mul_f32 v{vS+G}, 0x3d93cd3a, v{vS+G}')
    bf16_round(vS + G, vS + G)
stamp(4)
e(f'v_max3_f32 v{vM}, v{vS}, v{vS+1}, v{vS+2}')
for G in range(3, 15, 2): e(f'v_max3_f32 v{vM}, v{vM}, v{vS+G}, v{vS+G+1}')
e(f'v_max_f32 v{vM}, v{vM}, v{vS+15}')
nop(1)
e(f'v_max_f32 v{vM}, v{vM}, v{vM} row_ror:8 {DPP}')
allreduce_rows('v_max_f32', vM, vT1)
e(f'v_mov_b32 v{vT2}, 0')
for G in range(16):
    e(f'v_sub_f32 v{vS+G}, v{vS+G}, v{vM}')
    e(f'v_mul_f32 v{vS+G}, 0x3fb8aa3b, v{vS+G}')
    e(f'v_exp_f32 v{vS+G}, v{vS+G}')
    nop(0)
    e(f'v_add_f32 v{vT2}, v{vT2}, v{vS+G}')
    e(f'v_cvt_pk_bf16_f32 v{vS+G}, v{vS+G}, 0')
e(f'v_lshrrev_b32 v{vT4}, 3, v{vLANE}')
e(f'v_lshlrev_b32 v{vT4}, 6, v{vT4}')
e(f's_lshl_b32 s{sT1}, s{sWAVE}, 9')
e(f'v_add_u32 v{vT4}, s{sT1}, v{vT4}')
e(f'v_and_b32 v{vT1}, 7, v{vLANE}')
e(f'v_cmp_eq_u32 vcc, 0, v{vT1}')
e('s_and_saveexec_b64 s[28:29], vcc')
for i in range(4): e(f'ds_write_b128 v{vT4}, {v4(vS+4*i)} offset:{L_P+16*i}')
e('s_mov_b64 exec, s[28:29]')
e(f's_lshl_b32 s{sT0}, s{sWAVE}, 2')
e(f'v_mov_b32 v{vT3}, s{sT0}')
e('s_waitcnt lgkmcnt(0)')
e(f'v_mov_b32 v{vT1}, 1')
e(f'ds_write_b32 v{vT3}, v{vT1} offset:{C4}')
nop(1)
e(f'v_add_f32 v{vT2}, v{vT2}, v{vT2} row_ror:8 {DPP}')
allreduce_rows('v_add_f32', vT2, vT1)
e(f'ds_write_b32 v{vT3}, v{vM} offset:{L_WMAX}')
e(f'ds_write_b32 v{vT3}, v{vT2} offset:{L_WSUM}')
lds_inc(C3)
e(f's_cmp_eq_u32 s{sWAVE}, 2')
e('s_cbranch_scc1 L_ffn')
e(f's_cmp_lg_u32 s{sWAVE}, 1')
e('s_cbranch_scc1 L_kwo')
lds_spin(C3, 4)
e(f'ds_read_b128 {v4(44)}, v{vT0} offset:{L_WMAX}')
e(f'ds_read_b128 {v4(48)}, v{vT0} offset:{L_WSUM}')
e('s_waitcnt lgkmcnt(0)')
e('v_max3_f32 v52, v44, v45, v46')
e('v_max_f32 v52, v52, v47')
e('v_mov_b32 v53, 0')
for w in range(4):
    e(f'v_sub_f32 v{44+w}, v{44+w}, v52')
    e(f'v_mul_f32 v{44+w}, 0x3fb8aa3b, v{44+w}')
    e(f'v_exp_f32 v{44+w}, v{44+w}')
    nop(0)
    e(f'v_fmac_f32 v53, v{44+w}, v{48+w}')
e(f'v_mov_b32 v54, v{vTG}')
e(f'v_mov_b32 v55, v{vTG+1}')
get_mode()
e('s_mov_b64 exec, 1')
gstore(52, vT0, SL_ML)
e('s_mov_b64 exec, -1')
e('s_branch L_kwo')
lab('L_ffn')
vG = 44
e(f'v_lshrrev_b32 v{vT2}, 3, v{vLANE}')
e(f'v_lshlrev_b32 v{vT2}, 12, v{vT2}')
e(f'v_and_b32 v{vT3}, 7, v{vLANE}')
e(f'v_lshlrev_b32 v{vT4}, 4, v{vT3}')
e(f'v_add_u32 v{vT2}, v{vT2}, v{vT4}')
e(f'v_mov_b32 v{vT1}, {OOB}')
e(f'v_cmp_gt_u32 s[30:31], 6, v{vT3}')
nop(1)
e(f'v_cndmask_b32 v{vT2}, v{vT1}, v{vT2}, s[30:31]')
e(f's_mul_i32 s{sT0}, s{sRQ}, 96')
e(f's_add_u32 s{sT0}, s{sT0}, s{sGRP}')
e(f's_mov_b32 s{sCNT}, 0')
lab('L_pff')
e(f'buffer_load_dwordx4 {v4(vG)}, v{vT2}, {srd(sWS)}, s{sT0} offen offset:{SL_G} sc1')
e(f'buffer_load_dwordx4 {v4(vG+4)}, v{vT2}, {srd(sWS)}, s{sT0} offen offset:{SL_U} sc1')
e('s_waitcnt vmcnt(0)')
tag_check(vT1, vT4, [vG, vG + 4])
poll_tail('L_pff', vT1, 's[30:31]')
for r in (vG, vG + 1, vG + 4, vG + 5):
    nop(1)
    e(f'v_add_f32 v{r}, v{r}, v{r} row_ror:8 {DPP}')
    allreduce_rows('v_add_f32', r, vT1)
for c in range(2):
    bf16_round(vG + c, vG + c)
    bf16_round(vG + 4 + c, vG + 4 + c)
    e(f'v_mul_f32 v{vT1}, 0xbfb8aa3b, v{vG+c}')
    e(f'v_exp_f32 v{vT1}, v{vT1}')
    nop(0)
    e(f'v_add_f32 v{vT1}, 1.0, v{vT1}')
    e(f'v_rcp_f32 v{vT1}, v{vT1}')
    nop(0)
    e(f'v_mul_f32 v{vT1}, v{vG+c}, v{vT1}')
    bf16_round(vT1, vT1)
    e(f'v_mul_f32 v{vT1}, v{vT1}, v{vG+4+c}')
    e(f'v_cvt_pk_bf16_f32 v{vG+8+c}, v{vT1}, 0')
e(f'v_and_b32 v{vT2}, 3, v{vLANE}')
e(f'v_lshlrev_b32 v{vT2}, 6, v{vT2}')
e(f'v_and_b32 v{vT4}, 4, v{vLANE}')
e(f'v_add_u32 v{vT2}, v{vT2}, v{vT4}')
e('s_mov_b64 exec, 0xff')
e(f'ds_write_b32 v{vT2}, v{vG+8} offset:{L_U+24}')
e(f'ds_write_b32 v{vT2}, v{vG+9} offset:{L_U+24+32}')
e('s_mov_b64 exec, -1')
lds_inc(C6)
lab('L_kwo')
if not NODEFER: lds_spin(C9, 4)
wo_setup()
vWO = vD
wo_issue(vm, vWO)
e('s_setprio 3')
stamp(5)
e(f's_cmp_lg_u32 s{sWAVE}, 0')
e('s_cbranch_scc1 L_stagec')
vML = 44
e(f'v_and_b32 v{vT2}, 7, v{vLANE}')
e(f'v_lshlrev_b32 v{vT2}, 12, v{vT2}')
e(f's_mov_b32 s{sCNT}, 0')
lab('L_pml')
e(f'buffer_load_dwordx4 {v4(vML)}, v{vT2}, {srd(sWS)}, s{sGRP} offen offset:{SL_ML} sc1')
e('s_waitcnt vmcnt(0)')
tag_check(vT1, vT4, [vML])
poll_tail('L_pml', vT1)
e(f'v_mov_b32 v{vT1}, v{vML}')
allreduce8('v_max_f32', vT1)
e(f'v_sub_f32 v{vT1}, v{vML}, v{vT1}')
e(f'v_mul_f32 v{vT1}, 0x3fb8aa3b, v{vT1}')
e(f'v_exp_f32 v{vT1}, v{vT1}')
nop(0)
e(f'v_mul_f32 v{vT2}, v{vT1}, v{vML+1}')
allreduce8('v_add_f32', vT2)
e(f'v_rcp_f32 v{vT2}, v{vT2}')
nop(0)
e(f'v_mul_f32 v{vT3}, v{vT1}, v{vT2}')
e(f'v_and_b32 v{vT2}, 1, v{vLANE}')
e(f'v_lshlrev_b32 v{vT2}, 4, v{vT2}')
e(f'v_and_b32 v{vT4}, 6, v{vLANE}')
e(f'v_lshlrev_b32 v{vT4}, 1, v{vT4}')
e(f'v_add_u32 v{vT2}, v{vT2}, v{vT4}')
e(f'ds_write_b32 v{vT2}, v{vT3} offset:{L_COEF}')
lds_inc(C7)
e('s_branch L_stagec')

lab('L_vwave')
vm = VM()
e('s_setprio 1')
vACC = 16
vP = 40
common_scalars()
e('s_waitcnt lgkmcnt(0)')
e(f's_cmp_lg_u32 s{sWAVE}, 7')
e('s_cbranch_scc1 L_notag')
e('s_setprio 3')
e(f'v_mov_b32 v{vT3}, 0')
if NOTAG:
    e(f'v_mov_b32 v{vTG}, 0x1234567')
    e(f'v_mov_b32 v{vTG+1}, 0x7654321')
    e('s_barrier')
    e('s_branch L_tagok')
e('s_cmp_lg_u32 s2, 0')
e('s_cbranch_scc1 L_tagrd')
e('s_or_b32 s37, s37, 0x80000000')
e(f'v_mov_b32 v16, s36')
e(f'v_mov_b32 v17, s37')
e(f'v_mov_b32 v18, 0')
e(f'v_mov_b32 v19, 0')
e('s_mov_b64 exec, 1')
e(f'buffer_atomic_cmpswap_x2 v[16:19], v{vT3}, {srd(sDBG)}, 0 offen sc1')
e('s_mov_b64 exec, -1')
lab('L_tagrd')
e(f'buffer_load_dwordx2 {v2(vTG)}, v{vT3}, {srd(sDBG)}, 0 offen sc1')
e('s_barrier')
e(f's_mov_b32 s{sCNT}, 0')
lab('L_tagl')
e('s_waitcnt vmcnt(0)')
e(f'v_cmp_eq_u32 vcc, 0, v{vTG+1}')
e(f's_add_u32 s{sCNT}, s{sCNT}, 1')
e(f's_cmp_gt_u32 s{sCNT}, {SPIN}')
e('s_cbranch_scc1 L_tagok')
e('s_cbranch_vccz L_tagok')
e(f'buffer_load_dwordx2 {v2(vTG)}, v{vT3}, {srd(sDBG)}, 0 offen sc1')
e('s_branch L_tagl')
lab('L_tagok')
e(f'ds_write_b64 v{vT3}, {v2(vTG)} offset:{L_TAG}')
lds_inc(C1)
e('s_setprio 1')
e('s_branch L_vgo')
lab('L_notag')
e('s_barrier')
lab('L_vgo')
stamp(1)
VPRE = VPRES[0] if VPRES else 2
def vload(G):
    for j in range(3):
        if WINN and G >= VPRE: vm.window(WINN)
        e(f'buffer_load_dwordx4 {v4(vD+12*G+4*j)}, v{vOFF}, {srd(sV)}, s{sKB} offen offset:{128*j} nt'); vm.issue(f'v{G}')
    adv()
for G in range(VPRE): vload(G)
e(f's_cmp_eq_u32 s{sWAVE}, 4')
e('s_cbranch_scc1 L_vrest')
e(f's_cmp_eq_u32 s{sWAVE}, 7')
e('s_cbranch_scc1 L_vrest')
e('s_setprio 3')
lds_spin(C1, 5, sleep=False)
get_tag()
e(f's_cmp_eq_u32 s{sWAVE}, 5')
e('s_cbranch_scc1 L_w5')
def publish_ffn(vTM, mode):
    e(f'v_lshlrev_b32 v{vT2}, 3, v{vLANE}')
    e(f'v_lshlrev_b32 v{vT3}, 4, v{vLANE}')
    for w in range(4):
        e(f'ds_read_b64 {v2(vTM+4+2*w)}, v{vT2} offset:{L_FRED+384*w}')
    e(f'v_mov_b32 v{vTM+2}, v{vTG}')
    e(f'v_mov_b32 v{vTM+3}, v{vTG+1}')
    e('s_waitcnt lgkmcnt(0)')
    for c in range(2):
        e(f'v_add_f32 v{vTM+4+c}, v{vTM+4+c}, v{vTM+6+c}')
        e(f'v_add_f32 v{vTM+8+c}, v{vTM+8+c}, v{vTM+10+c}')
    for c in range(2): e(f'v_add_f32 v{vTM+c}, v{vTM+4+c}, v{vTM+8+c}')
    e(f'v_cmp_gt_u32 vcc, 48, v{vLANE}')
    e('s_and_saveexec_b64 s[28:29], vcc')
    gstore(vTM, vT3, SL_G, mode)
    e('s_mov_b64 exec, s[28:29]')
publish_ffn(16, 'plain')
e('s_branch L_vsvc_done')
lab('L_w5')
def publish_id(mode):
    e(f'v_mov_b32 v44, s{sT2}')
    e(f'v_mov_b32 v45, 0')
    e(f'v_mov_b32 v46, v{vTG}')
    e(f'v_mov_b32 v47, v{vTG+1}')
    e(f'v_mov_b32 v{vT0}, 0')
    e('s_mov_b64 exec, 1')
    gstore(44, vT0, SL_ID, mode)
    e('s_mov_b64 exec, -1')
e(f's_getreg_b32 s{sT2}, hwreg(HW_REG_XCC_ID)')
e(f's_and_b32 s{sT2}, s{sT2}, 15')
publish192(16, SL_Q, 'plain')
publish_id('plain')
e(f's_mov_b32 s{sMODE}, 0')
e(f'v_and_b32 v{vT5}, 7, v{vLANE}')
e(f'v_lshlrev_b32 v{vT5}, 12, v{vT5}')
e(f's_mov_b32 s{sCNT}, 0')
if ALWAYS_SLOW: e('s_branch L_goslow')
lab('L_gp')
e(f'buffer_load_dwordx4 {v4(40)}, v{vT5}, {srd(sWS)}, s{sGRP} offen offset:{SL_ID} sc1')
e('s_waitcnt vmcnt(0)')
tag_check(vT1, vT4, [40])
e(f'v_cmp_ne_u32 vcc, 0, v{vT1}')
e(f's_add_u32 s{sCNT}, s{sCNT}, 1')
e('s_cbranch_vccz L_gp_all')
e(f's_cmp_gt_u32 s{sCNT}, {SPIN}')
e('s_cbranch_scc1 L_gp_done')
e(f's_cmp_lg_u32 s{sCNT}, {NFAST}')
e('s_cbranch_scc1 L_gp')
e(f's_cmp_lg_u32 s{sMODE}, 0')
e('s_cbranch_scc1 L_gp')
lab('L_goslow')
e(f's_mov_b32 s{sMODE}, 1')
if '--diagslow' in sys.argv:
    for _ in range(12): e('s_sleep 127')
publish192(16, SL_Q, 'wt')
publish_id('wt')
publish_ffn(48, 'wt')
e('s_branch L_gp')
lab('L_gp_all')
e(f's_cmp_lg_u32 s{sMODE}, 0')
e('s_cbranch_scc1 L_gp_done')
e(f'v_cmp_ne_u32 vcc, s{sT2}, v40')
e('s_cbranch_vccnz L_goslow')
lab('L_gp_done')
e(f'v_mov_b32 v{vT0}, 0')
e(f'v_mov_b32 v{vT1}, s{sMODE}')
e(f'ds_write_b32 v{vT0}, v{vT1} offset:{L_MODE}')
vQA = 16
vQB = 48
e(f'v_lshlrev_b32 v{vT3}, 4, v{vLANE}')
e(f'v_and_b32 v{vT2}, 31, v{vLANE}')
e(f'v_lshlrev_b32 v{vT2}, 4, v{vT2}')
e(f'v_lshrrev_b32 v{vT4}, 5, v{vLANE}')
e(f'v_lshlrev_b32 v{vT4}, 12, v{vT4}')
e(f'v_add_u32 v{vT2}, v{vT2}, v{vT4}')
for s_ in range(8): e(f's_add_u32 s{sC+s_}, s{sGRP}, {s_*WS_SLOT}')
e(f's_mov_b32 s{sCNT}, 0')
lab('L_gq')
for s_ in range(8):
    e(f'buffer_load_dwordx4 {v4(vQA+4*s_)}, v{vT3}, {srd(sWS)}, s{sC+s_} offen offset:{SL_Q} sc1')
for s_ in range(4):
    e(f'buffer_load_dwordx4 {v4(vQB+4*s_)}, v{vT2}, {srd(sWS)}, s{sC+2*s_} offen offset:{SL_Q+1024} sc1')
e('s_waitcnt vmcnt(0)')
tag_check(vT1, vT4, [vQA + 4 * i for i in range(12)])
poll_tail('L_gq', vT1)
for step in (4, 2, 1):
    for w in range(step):
        for c in range(2):
            e(f'v_add_f32 v{vQA+4*w+c}, v{vQA+4*w+c}, v{vQA+4*(w+step)+c}')
for step in (2, 1):
    for w in range(step):
        for c in range(2):
            e(f'v_add_f32 v{vQB+4*w+c}, v{vQB+4*w+c}, v{vQB+4*(w+step)+c}')
for c in range(2):
    nop(1)
    e(f'v_mov_b32 v{vT1}, v{vQB+c}')
    nop(1)
    e(f'v_permlane32_swap_b32 v{vT1}, v{vQB+c}')
    nop(1)
    e(f'v_add_f32 v{vQB+c}, v{vT1}, v{vQB+c}')
e(f'v_cvt_pk_bf16_f32 v{vQA}, v{vQA}, v{vQA+1}')
e(f'v_cvt_pk_bf16_f32 v{vQB}, v{vQB}, v{vQB+1}')
e(f'v_lshlrev_b32 v{vT4}, 2, v{vLANE}')
e(f'ds_write_b32 v{vT4}, v{vQA} offset:{L_QBF}')
e('s_mov_b32 exec_hi, 0')
e(f'ds_write_b32 v{vT4}, v{vQB} offset:{L_QBF+256}')
e('s_mov_b64 exec, -1')
lds_inc(C2)
if STAMPS: e(f's_memrealtime s[{sST+2}:{sST+3}]')
lab('L_vsvc_done')
e('s_setprio 1')
lab('L_vrest')
for i in range(24): e(f'v_mov_b32 v{vACC+i}, 0')
red_addr()
e(f's_sub_u32 s{sT4}, s{sWAVE}, 4')
e(f's_mul_i32 s{sT0}, s{sT4}, 768')
e(f'v_add_u32 v{vRA}, s{sT0}, v{vRA}')
e(f's_lshl_b32 s{sT3}, s{sT4}, 2')
e(f'v_mov_b32 v{vT7}, s{sT3}')
e(f'v_lshrrev_b32 v{vT2}, 3, v{vLANE}')
e(f'v_lshlrev_b32 v{vT2}, 6, v{vT2}')
e(f's_lshl_b32 s{sT3}, s{sT4}, 9')
e(f'v_add_u32 v{vT2}, s{sT3}, v{vT2}')
e(f'v_mov_b32 v{vT6}, v{vT2}')
wo_setup()
e(f'v_mov_b32 v{vT2}, v{vT6}')
e(f's_cmp_eq_u32 s{sWAVE}, 4')
e(f's_cselect_b32 s{sWOB}, s{sWOB}, {OOB}')
e(f's_cselect_b32 s{sW2B}, s{sW2B}, {OOB}')
if WINN: lds_spin(C10, 4)
VLEAD = 8
for G in range(VPRE, VLEAD): vload(G)
lds_spin(C4, 1, vaddr=vT7)
stamp(3)
for i in range(4): e(f'ds_read_b128 {v4(vP+4*i)}, v{vT2} offset:{L_P+16*i}')
get_tag()
def pv(G):
    vm.wait(f'v{G}')
    e(f'v_lshlrev_b32 v{vT0+(G&1)}, 16, v{vP+G}')
    for j in range(3):
        axpy(vACC + 8 * j, vD + 12 * G + 4 * j, vP + G, vT0 + (G & 1))
done = 0
for G in range(VLEAD, 16):
    vload(G)
    for _ in range(2):
        if done < G - 2:
            pv(done); done += 1
    if G == 12:
        assert done >= 3
        wo_issue(vm, vD)
    if G == 13:
        cmt('scale factor of this wave pair: exp(m_w - M_wg)')
        nop(2)
        lds_spin(C3, 4)
        e(f'ds_read_b128 {v4(56)}, v{vT0} offset:{L_WMAX}')
        e(f'ds_read_b32 v{vM}, v{vT7} offset:{L_WMAX}')
        e('s_waitcnt lgkmcnt(0)')
        e('v_max3_f32 v56, v56, v57, v58')
        e('v_max_f32 v56, v56, v59')
        e(f'v_sub_f32 v{vM}, v{vM}, v56')
        e(f'v_mul_f32 v{vM}, 0x3fb8aa3b, v{vM}')
        e(f'v_exp_f32 v{vM}, v{vM}')
        nop(0)
nop(2)
lds_inc(C9)
stamp(2)
e('s_setprio 3')
while done < 16:
    pv(done); done += 1
stamp(4)
reduce_r8(vACC, 3)
for j in range(3):
    for c in range(2): e(f'v_mul_f32 v{vACC+8*j+c}, v{vM}, v{vACC+8*j+c}')
for j in range(3):
    e(f'ds_write_b64 v{vRA}, {v2(vACC+8*j)} offset:{L_RED+256*j}')
lds_inc(C8)
stamp(5)
e(f's_cmp_eq_u32 s{sWAVE}, 4')
e('s_cbranch_scc1 L_stagec')
e(f's_cmp_eq_u32 s{sWAVE}, 6')
e('s_cbranch_scc1 L_merge')
e(f's_cmp_eq_u32 s{sWAVE}, 7')
e('s_cbranch_scc1 L_final')
lds_spin(C8, 4, sleep=False)
publish192(128, SL_O)
stamp(6)
stamp_out()
lab('L_merge')
vO = 128
vCF = 56
e(f'v_and_b32 v{vT3}, 31, v{vLANE}')
e(f'v_lshlrev_b32 v{vT2}, 4, v{vT3}')
e(f'v_lshrrev_b32 v{vT4}, 5, v{vLANE}')
e(f'v_lshlrev_b32 v{vT5}, 12, v{vT4}')
e(f'v_add_u32 v{vT2}, v{vT2}, v{vT5}')
e(f'v_mov_b32 v{vT1}, {OOB}')
e(f'v_cmp_gt_u32 s[30:31], 24, v{vT3}')
nop(1)
e(f'v_cndmask_b32 v{vT2}, v{vT1}, v{vT2}, s[30:31]')
e(f'v_lshlrev_b32 v{vT5}, 4, v{vT4}')
e(f'v_lshlrev_b32 v{vT3}, 1, v{vT3}')
e(f'v_add_u32 v{vT3}, v{vT3}, v{vT4}')
e(f'v_lshrrev_b32 v{vT4}, 3, v{vT3}')
e(f'v_lshlrev_b32 v{vT4}, 2, v{vT4}')
e(f'v_and_b32 v{vT3}, 7, v{vT3}')
e(f'v_lshlrev_b32 v{vT3}, 5, v{vT3}')
e(f'v_add_u32 v{vT3}, v{vT3}, v{vT4}')
e(f's_mul_i32 s{sT0}, s{sRQ}, 384')
e(f's_add_u32 s{sT0}, s{sT0}, s{sGRP}')
for i in range(4): e(f's_add_u32 s{sC+i}, s{sT0}, {2*i*WS_SLOT}')
e(f's_mov_b32 s{sCNT}, 0')
def po_issue(base):
    for i in range(4):
        e(f'buffer_load_dwordx4 {v4(base+4*i)}, v{vT2}, {srd(sWS)}, s{sC+i} offen offset:{SL_O} sc1')
def ring_poll(name, issue, n, base, mask, use):
    R = RING
    sets = [base + 4 * n * r for r in range(R)]
    for r in range(R):
        issue(sets[r])
        if r < R - 1: e(f's_sleep {SL}')
    lab(name)
    for r in range(R):
        e(f's_waitcnt vmcnt({n*(R-1)})')
        tag_check(vT1, vT4, [sets[r] + 4 * i for i in range(n)])
        e(f'v_cmp_ne_u32 vcc, 0, v{vT1}')
        if mask: e(f's_and_b64 vcc, vcc, {mask}')
        else: nop(0)
        e(f's_cbranch_vccz {name}_u{r}')
        issue(sets[r])
    e(f's_add_u32 s{sCNT}, s{sCNT}, 1')
    e(f's_cmp_le_u32 s{sCNT}, {SPIN}')
    e(f's_cbranch_scc1 {name}')
    e('s_waitcnt vmcnt(0)')
    for r in range(R):
        lab(f'{name}_u{r}')
        use(sets[r])
        if r < R - 1: e(f's_branch {name}_fin')
    lab(f'{name}_fin')
sets = {}
def po_merge(base):
    e(f'v_mul_f32 v{vT6}, v{vCF}, v{base}')
    e(f'v_mul_f32 v{vT7}, v{vCF}, v{base+1}')
    for i in range(1, 4):
        e(f'v_fmac_f32 v{vT6}, v{vCF+i}, v{base+4*i}')
        e(f'v_fmac_f32 v{vT7}, v{vCF+i}, v{base+4*i+1}')
def po_use(base):
    stamp(3)
    lds_spin(C7, 1, sleep=False)
    e(f'ds_read_b128 {v4(vCF)}, v{vT5} offset:{L_COEF}')
    e('s_waitcnt lgkmcnt(0)')
    po_merge(base)
ring_poll('L_po', po_issue, 4, 96, 's[30:31]', po_use)
nop(1)
e(f'v_permlane32_swap_b32 v{vT6}, v{vT7}')
nop(1)
e(f'v_add_f32 v{vT6}, v{vT6}, v{vT7}')
e(f'v_cvt_pk_bf16_f32 v{vT6}, v{vT6}, 0')
e('s_mov_b64 exec, s[30:31]')
e(f'ds_write_b32 v{vT3}, v{vT6} offset:{L_U}')
e('s_waitcnt lgkmcnt(0)')
e('s_barrier')
stamp(6)
stamp_out()
def stagec(label, nb):
    lab(label)
    vA = 16
    vU = 32
    for i in range(8 * nb): e(f'v_mov_b32 v{vA+i}, 0')
    lds_spin(C6, 1)
    e(f'v_lshrrev_b32 v{vT4}, 3, v{vLANE}')
    e(f'v_lshlrev_b32 v{vT4}, 5, v{vT4}')
    e(f'ds_read_b64 {v2(vU+6)}, v{vT4} offset:{L_U+24}')
    e(f'v_bfe_u32 v{vT2}, v{vLANE}, 1, 2')
    e(f'v_lshlrev_b32 v{vT2}, 14, v{vT2}')
    e(f'v_and_b32 v{vT3}, 1, v{vLANE}')
    e(f'v_lshlrev_b32 v{vT3}, 6, v{vT3}')
    e(f'v_add_u32 v{vT2}, v{vT2}, v{vT3}')
    e(f'v_and_b32 v{vT3}, 48, v{vLANE}')
    e(f'v_add_u32 v{vT2}, v{vT2}, v{vT3}')
    e(f's_lshl_b32 s{sT0}, s{sWAVE}, 16')
    e(f's_add_u32 s{sT0}, s{sT0}, s{sYB}')
    e(f's_add_u32 s{sT1}, s{sT0}, 65536')
    e(f'v_and_b32 v{vT3}, 8, v{vLANE}')
    e(f'v_cmp_eq_u32 s[30:31], 0, v{vT3}')
    for b_ in range(nb):
        e(f'v_mov_b32 v{48+4*b_+2}, v{vTG}')
        e(f'v_mov_b32 v{48+4*b_+3}, v{vTG+1}')
    e('s_waitcnt vmcnt(6) lgkmcnt(0)')
    for i in range(6, 8): e(f'v_lshlrev_b32 v{vU+8+i}, 16, v{vU+i}')
    for b_ in range(nb):
        for i in range(6, 8): axpy(vA + 8 * b_, vWO + 32 * b_ + 4 * i, vU + i, vU + 8 + i)
    e('s_waitcnt vmcnt(0)')
    stamp(1)
    e('s_barrier')
    stamp(6)
    e(f'ds_read_b128 {v4(vU)}, v{vT4} offset:{L_U}')
    e(f'ds_read_b64 {v2(vU+4)}, v{vT4} offset:{L_U+16}')
    e('s_waitcnt lgkmcnt(0)')
    for i in range(6): e(f'v_lshlrev_b32 v{vU+8+i}, 16, v{vU+i}')
    for b_ in range(nb):
        for i in range(6): axpy(vA + 8 * b_, vWO + 32 * b_ + 4 * i, vU + i, vU + 8 + i)
    reduce_r8(vA, nb)
    for b_ in range(nb):
        e(f'v_mov_b32 v{48+4*b_}, v{vA+8*b_}')
        e(f'v_mov_b32 v{48+4*b_+1}, v{vA+8*b_+1}')
    e('s_mov_b64 exec, s[30:31]')
    e(f'buffer_store_dwordx4 {v4(48)}, v{vT2}, {srd(sWS)}, s{sT0} offen sc1')
    if nb == 2: e(f'buffer_store_dwordx4 {v4(52)}, v{vT2}, {srd(sWS)}, s{sT1} offen sc1')
    stamp_out()
stagec('L_stagec', 1)
lab('L_final')
e(f's_cmp_ge_u32 s2, {NRED}')
e('s_cbranch_scc1 L_end2')
vY = 128
e(f'v_lshrrev_b32 v{vT0}, 2, v{vLANE}')
e(f'v_lshlrev_b32 v{vT0}, 7, v{vT0}')
e(f'v_and_b32 v{vT2}, 3, v{vLANE}')
e(f'v_lshlrev_b32 v{vT3}, 4, v{vT2}')
e(f'v_add_u32 v{vT0}, v{vT0}, v{vT3}')
e(f's_lshr_b32 s{sT0}, s2, 1')
e(f's_lshl_b32 s{sT0}, s{sT0}, 14')
e(f's_and_b32 s{sT1}, s2, 1')
e(f's_lshl_b32 s{sT1}, s{sT1}, 6')
e(f's_add_u32 s{sT0}, s{sT0}, s{sT1}')
e(f's_add_u32 s{sT0}, s{sT0}, {WS_Y}')
for i in range(1, 4): e(f's_add_u32 s{sC+i}, s{sT0}, {4096*i}')
e(f's_mov_b32 s{sC}, s{sT0}')
e(f'v_lshlrev_b32 v{vT2}, 2, v{vT2}')
e(f'v_lshrrev_b32 v{vT3}, 5, v{vLANE}')
e(f'v_lshlrev_b32 v{vT3}, 1, v{vT3}')
e(f'v_add_u32 v{vT2}, v{vT2}, v{vT3}')
e(f's_lshl_b32 s{sT1}, s2, 4')
e(f'buffer_load_ushort v{vT5}, v{vT2}, {srd(sX)}, s{sT1} offen')
e(f'v_and_b32 v{vT3}, 28, v{vLANE}')
e(f'v_cmp_eq_u32 s[30:31], 0, v{vT3}')
e('s_barrier')
stamp(6)
e(f's_mov_b32 s{sCNT}, 0')
def py_issue(base):
    for i in range(8):
        e(f'buffer_load_dwordx4 {v4(base+4*i)}, v{vT0}, {srd(sWS)}, s{sC+i//2} offen offset:{2048*(i&1)} sc1')
def py_sum(base):
    for step in (4, 2):
        for w in range(step):
            for c in range(2):
                e(f'v_add_f32 v{base+4*w+c}, v{base+4*w+c}, v{base+4*(w+step)+c}')
    for c in range(2): e(f'v_add_f32 v{vYO+c}, v{base+c}, v{base+4+c}')
vYO = 16
def py_use(base):
    stamp(3)
    py_sum(base)
ring_poll('L_py', py_issue, 8, 96, None, py_use)
vY = vYO
nop(1)
e(f'v_permlane32_swap_b32 v{vY}, v{vY+1}')
nop(1)
e(f'v_add_f32 v{vY}, v{vY}, v{vY+1}')
for dpp in ('row_ror:8', 'row_ror:4'):
    nop(1)
    e(f'v_add_f32 v{vY}, v{vY}, v{vY} {dpp} {DPP}')
nop(1)
e(f'v_mov_b32 v{vY+1}, v{vY}')
nop(1)
e(f'v_permlane16_swap_b32 v{vY+1}, v{vY}')
nop(1)
e(f'v_add_f32 v{vY}, v{vY}, v{vY+1}')
e(f'v_lshlrev_b32 v{vT5}, 16, v{vT5}')
e(f'v_add_f32 v{vY}, v{vT5}, v{vY}')
e(f'v_cvt_pk_bf16_f32 v{vY}, v{vY}, v{vY}')
if THR:
    e('s_memrealtime s[96:97]')
    e('s_waitcnt lgkmcnt(0)')
    e('s_sub_u32 s96, s96, s98')
    e(f's_cmp_gt_u32 s96, {THR[0]}')
    e('s_cselect_b32 s96, 0x7fc07fc0, 0')
    e(f'v_or_b32 v{vY}, s96, v{vY}')
e('s_mov_b64 exec, s[30:31]')
e(f'buffer_store_short v{vY}, v{vT2}, {srd(sOUT)}, s{sT1} offen')
lab('L_end2')
if STAMPS:
    e('s_mov_b64 exec, -1')
    lab('L_stamp_out')
    e(f's_memrealtime s[{sST+14}:{sST+15}]')
    e('s_waitcnt lgkmcnt(0)')
    for i in range(8): e(f'v_mov_b32 v{240+i}, s{sST+2*i}')
    e(f's_lshl_b32 s{sT0}, s2, 3')
    e(f's_add_u32 s{sT0}, s{sT0}, s{sWAVE}')
    e(f's_lshl_b32 s{sT0}, s{sT0}, 5')
    e(f's_add_u32 s{sT0}, s{sT0}, {WS_STAMP}')
    e(f'v_mov_b32 v{vT0}, 0')
    e('s_mov_b64 exec, 1')
    e(f'buffer_store_dwordx4 {v4(240)}, v{vT0}, {srd(sWS)}, s{sT0} offen')
    e(f'buffer_store_dwordx4 {v4(244)}, v{vT0}, {srd(sWS)}, s{sT0} offen offset:16')
lab('L_end')
e('s_endpgm')
L.append('.section .rodata,"a"')
L.append('.p2align 6')
L.append(f'.amdhsa_kernel {NAME}')
L.append('  .amdhsa_next_free_vgpr 256')
L.append('  .amdhsa_next_free_sgpr 102')
L.append('  .amdhsa_accum_offset 256')
L.append('  .amdhsa_group_segment_fixed_size 0')
L.append('  .amdhsa_kernarg_size 96')
L.append('  .amdhsa_user_sgpr_count 2')
L.append('  .amdhsa_user_sgpr_kernarg_segment_ptr 1')
L.append('  .amdhsa_system_sgpr_workgroup_id_x 1')
L.append('.end_amdhsa_kernel')
open(sys.argv[1], 'w').write('\n'.join(L) + '\n')
```

```python
import sys,re
def add_meta(asm, name, block):
    m = re.search(r"\.amdhsa_next_free_vgpr\s+(\d+)", asm); v = m.group(1)
    m = re.search(r"\.amdhsa_next_free_sgpr\s+(\d+)", asm); s = m.group(1)
    return asm + f"""
.amdgpu_metadata
---
amdhsa.version: [1, 2]
amdhsa.kernels:
  - .name: {name}
    .symbol: {name}.kd
    .kernarg_segment_size: 96
    .kernarg_segment_align: 8
    .group_segment_fixed_size: 0
    .private_segment_fixed_size: 0
    .wavefront_size: 64
    .sgpr_count: {s}
    .vgpr_count: {v}
    .max_flat_workgroup_size: {block}
    .args:
      - {{.name: kernargs, .size: 96, .offset: 0, .value_kind: by_value}}
...
.end_amdgpu_metadata
"""
if __name__ == "__main__":
    src, dst, name, block = sys.argv[1:5]
    open(dst,"w").write(add_meta(open(src).read(), name, int(block)))
```

```python
import sys, meta, subprocess
out = sys.argv[1]
opts = sys.argv[2:]
WQ = 'wq' in opts; WO = 'wo' in opts; CLR = 'clr' in opts; PRIO = 'prio' in opts; WINS=[int(o[3:]) for o in opts if o.startswith('win')]; WINN=WINS[0] if WINS else None
KFIRST='kfirst' in opts; ROT='rot' in opts; ROT2='rot2' in opts
POL=[o[4:] for o in opts if o.startswith('pol_')]
POL=(' '+POL[0].replace('_',' ')) if POL else ' nt'
L=[]
e=lambda s: L.append('  '+s)
L.append('''.amdgcn_target "amdgcn-amd-amdhsa--gfx950"
.text
.globl st_kernel
.p2align 8
.type st_kernel,@function
st_kernel:''')
e('s_memrealtime s[84:85]')
sX, sK, sV, sWQ, sWO, sW1, sW3, sW2, sOUT, sDBG, sWS = [40 + 4 * i for i in range(11)]
for (sr, off) in [(sWQ, 24), (sV, 16), (sW1, 48), (sW3, 56), (sK, 8), (sWS, 88), (sWO, 32), (sW2, 64), (sDBG, 80)]:
    e(f's_load_dwordx2 s[{sr}:{sr+1}], s[0:1], {off}')
for (sr, nb) in [(sWQ, 7864320), (sK, 402653184), (sWS, 0x1000000), (sV, 402653184), (sW1, 1966080), (sW3, 1966080), (sWO, 7864320), (sW2, 1966080), (sDBG, 256)]:
    e(f's_mov_b32 s{sr+2}, {nb}'); e(f's_mov_b32 s{sr+3}, 0x00020000')
e('v_lshrrev_b32 v2, 6, v0'); e('v_and_b32 v6, 63, v0'); e('v_readfirstlane_b32 s5, v2')
if 'm1' in opts:
    e('s_and_b32 s3, s2, 31'); e('s_lshr_b32 s4, s2, 5')
elif 'm2' in opts:
    e('s_lshr_b32 s3, s2, 3'); e('s_and_b32 s4, s2, 7')
else:
    e('s_and_b32 s3, s2, 7'); e('s_lshr_b32 s4, s2, 3'); e('s_and_b32 s6, s4, 3'); e('s_lshl_b32 s3, s3, 2'); e('s_add_u32 s3, s3, s6'); e('s_lshr_b32 s4, s4, 2')
e('v_lshrrev_b32 v2, 3, v6'); e('v_and_b32 v3, 7, v6'); e('v_lshlrev_b32 v4, 4, v3'); e('v_mul_u32_u24 v1, 384, v2'); e('v_add_u32 v1, v1, v4')
e(f's_mul_i32 s10, s3, {32768*384}')
e(f's_mul_i32 s6, s4, {512*384}'); e('s_add_u32 s10, s10, s6')
e('s_and_b32 s7, s5, 3')
e(f's_mul_i32 s6, s7, {128*384}'); e('s_add_u32 s10, s10, s6')
e(f's_add_u32 s10, s10, {28672*384}')
e('s_mul_i32 s6, s4, 80'); e('s_mul_i32 s7, s5, 20'); e('s_add_u32 s6, s6, s7')
e('s_mul_i32 s11, s6, 12288'); e('s_mul_i32 s7, s3, 384'); e('s_add_u32 s11, s11, s7')
e('s_mul_i32 s17, s6, 3072')
if 'm1' in opts:
    e('s_and_b32 s7, s3, 7'); e('s_lshl_b32 s7, s7, 2'); e('s_lshr_b32 s19, s3, 3'); e('s_add_u32 s7, s7, s19'); e('s_mul_i32 s7, s7, 96')
else:
    e('s_mul_i32 s7, s3, 96')
e('s_add_u32 s17, s17, s7')
e('v_mul_u32_u24 v10, 12288, v2'); e('v_add_u32 v10, v10, v4')
e('v_mul_u32_u24 v11, 3072, v2'); e('v_add_u32 v11, v11, v4')
e('v_mov_b32 v12, 0x40000000')
e('v_cmp_gt_u32 vcc, 6, v3'); e('s_nop 1'); e('v_cndmask_b32 v11, v12, v11, vcc')
e('v_cmp_gt_u32 vcc, 32, v6'); e('s_nop 1'); e('v_cndmask_b32 v8, v12, v10, vcc'); e('v_cndmask_b32 v7, v12, v11, vcc')
e('v_mul_u32_u24 v13, 1280, v2'); e('v_add_u32 v13, v13, v4'); e('v_cndmask_b32 v14, v12, v13, vcc')
e('s_lshr_b32 s32, s4, 1'); e('s_and_b32 s33, s4, 1')
e('s_mul_i32 s6, s33, 640'); e('s_lshl_b32 s7, s5, 7'); e('s_add_u32 s6, s6, s7')
e('s_lshl_b32 s7, s3, 2'); e('s_add_u32 s7, s7, s32')
e(f's_mul_i32 s14, s7, {48*1280}'); e('s_add_u32 s14, s14, s6')
e(f's_mul_i32 s15, s7, {12*1280}'); e('s_add_u32 s15, s15, s6')
e('s_cmp_lt_u32 s5, 5'); e('s_cselect_b32 s14, s14, 0x40000000'); e('s_cselect_b32 s15, s15, 0x40000000')
ROTANY = ROT or ROT2 or 'roth' in opts or 'rots' in opts or 'il' in opts
GS = 12288 if 'il' in opts else 3072
if ROTANY:
    if 'roth' in opts:
        e('s_lshl_b32 s6, s2, 2'); e('s_and_b32 s7, s5, 3'); e('s_add_u32 s6, s6, s7'); e('s_mul_i32 s6, s6, 0x9E3779B1'); e('s_lshr_b32 s6, s6, 28')
    elif 'rots' in opts:
        e('s_lshl_b32 s6, s4, 1'); e('s_add_u32 s6, s6, s3'); e('s_and_b32 s7, s5, 3'); e('s_lshl_b32 s7, s7, 2'); e('s_add_u32 s6, s6, s7')
    elif 'il' in opts:
        e('s_mul_i32 s6, s2, 0x9E3779B1'); e('s_lshr_b32 s6, s6, 28')
        e('s_and_b32 s7, s5, 3'); e(f's_mul_i32 s19, s7, {128*384}'); e('s_sub_u32 s10, s10, s19'); e('s_mul_i32 s19, s7, 3072'); e('s_add_u32 s10, s10, s19')
    else:
        e('s_lshr_b32 s6, s2, 4'); e('s_xor_b32 s6, s6, s2'); e('s_and_b32 s7, s5, 3'); e('s_lshl_b32 s7, s7, 2'); e('s_xor_b32 s6, s6, s7')
        if ROT2:
            e('s_lshr_b32 s7, s5, 2'); e('s_lshl_b32 s7, s7, 3'); e('s_xor_b32 s6, s6, s7')
    e('s_and_b32 s6, s6, 15')
    e(f's_add_u32 s18, s10, {16*GS}')
    e(f's_mul_i32 s6, s6, {GS}'); e('s_add_u32 s10, s10, s6')
e('s_waitcnt lgkmcnt(0)')
e('s_cmp_ge_u32 s5, 4'); e('s_cbranch_scc1 L_v')
if PRIO: e('s_setprio 2')
if WQ:
    for k in range(3):
        vo = 10 if k < 2 else 8; vf = 11 if k < 2 else 7
        for j in range(3):
            e(f'buffer_load_dwordx4 v[{196+20*k+4*j}:{199+20*k+4*j}], v{vo}, s[{sWQ}:{sWQ+3}], s11 offen offset:{128*j} nt')
        e(f'buffer_load_dwordx4 v[{196+20*k+12}:{199+20*k+12}], v{vf}, s[{sW1}:{sW1+3}], s17 offen nt')
        e(f'buffer_load_dwordx4 v[{196+20*k+16}:{199+20*k+16}], v{vf}, s[{sW3}:{sW3+3}], s17 offen nt')
        e(f's_add_u32 s11, s11, {8*12288}'); e(f's_add_u32 s17, s17, {8*3072}')
    e('s_barrier')
    if not KFIRST: e('s_waitcnt vmcnt(0)')
e('s_memrealtime s[86:87]')
for G in range(16):
    for j in range(3):
        if WINN is not None: e(f's_waitcnt vmcnt({WINN-1})')
        e(f'buffer_load_dwordx4 v[{64+12*G+4*j}:{67+12*G+4*j}], v1, s[{sK}:{sK+3}], s10 offen offset:{128*j}{POL}')
    e(f's_add_u32 s10, s10, {GS}')
    if ROTANY:
        e(f's_sub_u32 s19, s10, {16*GS}'); e('s_cmp_ge_u32 s10, s18'); e('s_cselect_b32 s10, s19, s10')
e('s_memrealtime s[88:89]')
if WINN is not None: e('s_barrier')
e('s_waitcnt vmcnt(0)')
e('s_memrealtime s[90:91]')
if WINN is not None: e('s_barrier')
if PRIO: e('s_setprio 0')
e('s_branch L_wo')
L.append('L_v:')
if PRIO: e('s_setprio 1')
SC = '' if 'nosc' in opts else ' sc1'
e('s_lshl_b32 s20, s3, 3'); e('s_add_u32 s21, s20, s4'); e('s_lshl_b32 s22, s21, 11'); e('s_add_u32 s22, s22, 0x200000')
e('s_lshl_b32 s23, s20, 11'); e('s_add_u32 s23, s23, 0x200000')
e('v_lshlrev_b32 v20, 4, v6')
for i in range(4): e(f'v_mov_b32 v{24+i}, -1')
if CLR:
    e('s_cmp_lg_u32 s5, 7'); e('s_cbranch_scc1 L_noclr')
    e('v_lshlrev_b32 v21, 14, v2'); e('v_add_u32 v21, v21, v4')
    e('s_lshl_b32 s24, s21, 7'); e('s_add_u32 s24, s24, 0x300000')
    e(f'buffer_store_dwordx4 v[24:27], v20, s[{sWS}:{sWS+3}], s22 offen{SC}')
    e(f'buffer_store_dwordx4 v[24:27], v20, s[{sWS}:{sWS+3}], s22 offen offset:1024{SC}')
    for i in range(3):
        e(f'buffer_store_dwordx4 v[24:27], v21, s[{sWS}:{sWS+3}], s24 offen{SC}')
        e(f's_add_u32 s24, s24, {8*16384}')
    e('s_barrier'); e('s_setprio 3'); e('s_waitcnt vmcnt(0)')
    e('v_mov_b32 v22, 0'); e('v_mov_b32 v23, 1'); e('s_mov_b64 exec, 1')
    e(f'buffer_store_byte v23, v22, s[{sDBG}:{sDBG+3}], s21 offen sc1')
    e('s_mov_b64 exec, -1'); e('s_setprio 1'); e('s_branch L_vgo')
    L.append('L_noclr:')
if WQ: e('s_barrier')
L.append('L_vgo:')
e('s_memrealtime s[86:87]')
for G in range(16):
    if G == 2 and ('pub' in opts or 'poll' in opts or 'gat' in opts):
        e('s_cmp_lg_u32 s5, 5'); e('s_cbranch_scc1 L_nosvc')
        if 'lowp' not in opts: e('s_setprio 3')
        e('s_waitcnt vmcnt(0)')
        if 'pub' in opts:
            e(f'buffer_store_dwordx4 v[24:27], v20, s[{sWS}:{sWS+3}], s22 offen offset:1024{SC}')
        if 'pub2' in opts:
            e(f'buffer_store_dwordx4 v[24:27], v20, s[{sWS}:{sWS+3}], s22 offen{SC}')
        if 'poll' in opts:
            e('v_mov_b32 v22, 0')
            e(f'buffer_load_dwordx2 v[28:29], v22, s[{sDBG}:{sDBG+3}], s20 offen sc1')
            e('s_waitcnt vmcnt(0)')
        if 'gat' in opts:
            for i in range(8):
                GP = ' nt' if 'gnt' in opts else ('' if 'gpl' in opts else ' sc1')
                e(f'buffer_load_dwordx4 v[{32+4*i}:{35+4*i}], v20, s[{sWS}:{sWS+3}], s23 offen offset:1024{GP}')
                e('s_add_u32 s23, s23, 2048')
            e('s_waitcnt vmcnt(0)')
        e('s_memrealtime s[86:87]')
        e('s_setprio 1')
        L.append('L_nosvc:')
    if WINN is not None and G == 2: e('s_barrier')
    for j in range(3):
        if WINN is not None: e(f's_waitcnt vmcnt({WINN-1})')
        e(f'buffer_load_dwordx4 v[{64+12*G+4*j}:{67+12*G+4*j}], v1, s[{sV}:{sV+3}], s10 offen offset:{128*j}{POL}')
    e(f's_add_u32 s10, s10, {GS}')
    if ROTANY:
        e(f's_sub_u32 s19, s10, {16*GS}'); e('s_cmp_ge_u32 s10, s18'); e('s_cselect_b32 s10, s19, s10')
e('s_memrealtime s[88:89]')
if WINN is not None: e('s_barrier')
e('s_waitcnt vmcnt(36)')
e('s_memrealtime s[90:91]')
L.append('L_wo:')
if WO:
    e(f'buffer_load_dwordx4 v[88:91], v13, s[{sW2}:{sW2+3}], s15 offen nt')
    e(f's_add_u32 s15, s15, {8*1280}')
    e(f'buffer_load_dwordx4 v[92:95], v14, s[{sW2}:{sW2+3}], s15 offen nt')
    for i in range(6):
        e(f'buffer_load_dwordx4 v[{64+4*i}:{67+4*i}], v13, s[{sWO}:{sWO+3}], s14 offen nt')
        e(f's_add_u32 s14, s14, {8*1280}')
    e('s_waitcnt vmcnt(8)')
else:
    e('s_waitcnt vmcnt(0)')
e('s_memrealtime s[92:93]')
e('s_waitcnt vmcnt(0)')
e('s_memrealtime s[94:95]')
e('s_waitcnt lgkmcnt(0)')
for i in range(6): e(f'v_mov_b32 v{200+i}, s{84+2*i}')
e('s_getreg_b32 s30, hwreg(HW_REG_XCC_ID)'); e('s_getreg_b32 s31, hwreg(HW_REG_HW_ID)'); e('v_mov_b32 v206, s30'); e('v_mov_b32 v207, s31')
e('s_lshl_b32 s6, s2, 3'); e('s_add_u32 s6, s6, s5'); e('s_lshl_b32 s6, s6, 5')
e('v_mov_b32 v2, 0')
e('s_mov_b64 exec, 1')
e(f'buffer_store_dwordx4 v[200:203], v2, s[{sWS}:{sWS+3}], s6 offen')
e(f'buffer_store_dwordx4 v[204:207], v2, s[{sWS}:{sWS+3}], s6 offen offset:16')
e('s_endpgm')
L.append('''.section .rodata,"a"
.p2align 6
.amdhsa_kernel st_kernel
  .amdhsa_next_free_vgpr 256
  .amdhsa_next_free_sgpr 102
  .amdhsa_accum_offset 256
  .amdhsa_group_segment_fixed_size 0
  .amdhsa_kernarg_size 96
  .amdhsa_user_sgpr_count 2
  .amdhsa_user_sgpr_kernarg_segment_ptr 1
  .amdhsa_system_sgpr_workgroup_id_x 1
.end_amdhsa_kernel
''')
open(out+'.s','w').write(meta.add_meta('\n'.join(L),'st_kernel',512))
subprocess.check_call(['clang','-x','assembler','-target','amdgcn-amd-amdhsa','-mcpu=gfx950',out+'.s','-o',out+'.co'])
```
